```python
import torch

def _softmax(x, axis=-1):
    return torch.softmax(x, dim=axis)
def _gelu(x):
    return torch.nn.functional.gelu(x, approximate="tanh")
def _silu(x):
    return torch.nn.functional.silu(x)
def _sigmoid(x):
    return torch.sigmoid(x)
def _layernorm(x, axis=-1, eps=1e-5):
    m = x.mean(dim=axis, keepdim=True)
    v = x.var(dim=axis, keepdim=True, unbiased=False)
    return (x - m) / torch.sqrt(v + eps)
def _scatter_add(tgt, idx, src, axis=0):
    return tgt.clone().index_add_(axis, idx, src)
def _segment_sum(src, seg, n):
    out = torch.zeros((n,) + src.shape[1:], dtype=src.dtype)
    return out.index_add_(0, seg, src)
def _pad(x, pw):
    flat = tuple(v for pair in reversed(pw) for v in pair)
    return torch.nn.functional.pad(x, flat)

kernel_name = 'standalone__gqa_block_cached__near_ridge'

def setup_inputs():

    _w = (lambda a: (lambda t: t.to(torch.bfloat16) if t.is_floating_point() else t)(torch.as_tensor(a)))
    B, Sq, D = 8, 128, 448
    Hq, Hkv, Sk, Dh = 16, 8, 1024, 256
    assert Hq % Hkv == 0, (Hq, Hkv)
    return {
        "x": _w((lambda *s: torch.randn(*s, dtype=torch.bfloat16) * 0.8)(B, Sq, D)),
        "k_cache": _w((lambda *s: torch.randn(*s, dtype=torch.bfloat16) * 0.8)(B, Hkv, Sk, Dh)),
        "v_cache": _w((lambda *s: torch.randn(*s, dtype=torch.bfloat16) * 0.05)(B, Hkv, Sk, Dh)),
        "wq": _w((lambda *s: torch.randn(*s, dtype=torch.bfloat16) * 0.8)(D, Hq * Dh) * (D ** -0.5)),
        "wo": _w((lambda *s: torch.randn(*s, dtype=torch.bfloat16) * 0.05)(Hq * Dh, D) * ((Hq * Dh) ** -0.5)),
    }

def reference(x, k_cache, v_cache, wq, wo):
    B, Sq, D = x.shape
    Hq, Dh = 16, 256
    Hkv = k_cache.shape[1]
    rep = Hq // Hkv
    q = (lambda x, *d: x.permute(*d))((x @ wq).reshape(B, Sq, Hq, Dh), 0, 2, 1, 3)
    k = (lambda x, n, axis: torch.repeat_interleave(x, n, dim=axis))(k_cache, rep, axis=1)
    v = (lambda x, n, axis: torch.repeat_interleave(x, n, dim=axis))(v_cache, rep, axis=1)
    scores = torch.einsum("bhqd,bhkd->bhqk", q, k) * (Dh ** -0.5)
    p = _softmax(scores, axis=-1)
    o = torch.einsum("bhqk,bhkd->bhqd", p, v)
    return (lambda x, *d: x.permute(*d))(o, 0, 2, 1, 3).reshape(B, Sq, Hq * Dh) @ wo
```

```python
import math, sys

KNAME = "gqa_main_kernel"
RNAME = "gqa_reduce_kernel"
HEADER = open("standalone__gqa_block_cached__near_ridge.s.ref").read().split("; Override launch")[0]

class Cfg:
    mapping = 1
    kv_fl = "nt"
    w_fl = ""
    st_fl = ""
    LA = 6
    dma_order = "simple"
    probe = None

ACC = 128
S0, S1 = 0 + 32, 0 + 48
PB = 64
VM, VL0, VL1, VMX, VT0, VT1, VT2, VT3 = 72, 73, 74, 75, 76, 77, 78, 79
AK = 80
AV = 104
VOK = 116
VOV = 120
VOWQ = 122
VOX = 124
VOWO = 126
VST = 127
QF = 0
FR = 64
NF = 8
XF = 96

SRD_X, SRD_K, SRD_V, SRD_WQ, SRD_WO, SRD_WS = 8, 12, 16, 20, 24, 28
S_W, S_B, S_H, S_S = 3, 32, 33, 34
S_XB, S_KVB, S_WQB, S_WOB, S_C, S_W4K, S_YB, S_T, S_T2 = 35, 36, 37, 38, 39, 42, 43, 44, 45
S_RET = 40

def srd(n): return f"s[{n}:{n+3}]"

class Op:
    def __init__(self, text, kind="x", prod=None, cons=None, tile=None):
        self.text, self.kind, self.prod, self.cons, self.tile = text, kind, prod, cons, tile

def gen_main(cfg):
    L = []
    A = L.append
    A(f".globl {KNAME}"); A(".p2align 8"); A(f".type {KNAME},@function"); A(f"{KNAME}:")
    A("s_cmp_lt_u32 s2, 256"); A("s_cbranch_scc1 L_main_go"); A("s_endpgm"); A("L_main_go:")
    A("s_load_dwordx8 s[48:55], s[0:1], 0")
    A("s_load_dwordx2 s[56:57], s[0:1], 32")
    A("s_load_dwordx2 s[58:59], s[0:1], 56")
    A("v_lshrrev_b32 v1, 6, v0"); A("v_and_b32 v2, 63, v0")
    A(f"v_readfirstlane_b32 s{S_W}, v1")
    A("s_and_b32 s46, s2, 7"); A("s_lshr_b32 s47, s2, 3")
    if cfg.mapping == 1:
        A(f"s_mov_b32 s{S_B}, s46"); A("s_lshr_b32 s46, s47, 2")
    else:
        A(f"s_lshr_b32 s{S_B}, s47, 2")
    A("s_and_b32 s60, s47, 1"); A(f"s_lshl_b32 s{S_H}, s46, 1"); A(f"s_add_u32 s{S_H}, s{S_H}, s60")
    A(f"s_lshr_b32 s{S_S}, s47, 1"); A(f"s_and_b32 s{S_S}, s{S_S}, 1")
    A(f"s_lshl_b32 s{S_W4K}, s{S_W}, 12")
    A(f"s_lshl_b32 s{S_KVB}, s{S_B}, 3"); A(f"s_add_u32 s{S_KVB}, s{S_KVB}, s46"); A(f"s_lshl_b32 s{S_KVB}, s{S_KVB}, 1")
    A(f"s_add_u32 s{S_KVB}, s{S_KVB}, s{S_S}"); A(f"s_lshl_b32 s{S_KVB}, s{S_KVB}, 18"); A(f"s_add_u32 s{S_KVB}, s{S_KVB}, s{S_W4K}")
    A(f"s_lshl_b32 s{S_XB}, s{S_B}, 2"); A(f"s_add_u32 s{S_XB}, s{S_XB}, s{S_W}"); A(f"s_mul_i32 s{S_XB}, s{S_XB}, {32*896}")
    A(f"s_lshl_b32 s{S_WQB}, s{S_W}, 16"); A(f"s_lshl_b32 s60, s{S_H}, 9"); A(f"s_add_u32 s{S_WQB}, s{S_WQB}, s60")
    A(f"s_lshl_b32 s{S_WOB}, s{S_H}, 3"); A(f"s_add_u32 s{S_WOB}, s{S_WOB}, s{S_W}"); A(f"s_mul_i32 s{S_WOB}, s{S_WOB}, {32*896}")
    A(f"s_lshl_b32 s{S_YB}, s{S_B}, 2"); A(f"s_add_u32 s{S_YB}, s{S_YB}, s{S_W}"); A(f"s_mul_i32 s{S_YB}, s{S_YB}, {28*32}")
    A(f"s_lshl_b32 s60, s{S_H}, 1"); A(f"s_add_u32 s{S_YB}, s{S_YB}, s60"); A(f"s_add_u32 s{S_YB}, s{S_YB}, s{S_S}"); A(f"s_lshl_b32 s{S_YB}, s{S_YB}, 10")
    c = math.log2(math.e) / 16.0
    import struct
    A(f"s_mov_b32 s{S_C}, {struct.unpack('<I', struct.pack('<f', c))[0]:#x}")
    A("v_lshrrev_b32 v3, 5, v2")
    A("v_and_b32 v4, 31, v2")
    A("v_lshrrev_b32 v5, 3, v2")
    A("v_and_b32 v6, 7, v2")
    A("v_lshrrev_b32 v7, 4, v2")
    A(f"v_lshlrev_b32 v{VST}, 4, v2")
    A(f"s_and_b32 s60, s{S_W}, 1"); A("s_lshl_b32 s60, s60, 3")
    A("v_xor_b32 v8, v4, v3"); A("v_xor_b32 v8, s60, v8")
    A("v_lshlrev_b32 v8, 4, v8"); A("v_lshl_add_u32 v8, v3, 9, v8")
    for ii in range(4):
        A(f"v_xor_b32 v{VOK+ii}, {2*ii*16}, v8")
    A("v_lshlrev_b32 v9, 2, v3"); A("v_xor_b32 v9, v4, v9"); A("v_lshlrev_b32 v9, 4, v9")
    A(f"v_lshl_add_u32 v{VOV}, v3, 9, v9"); A(f"v_xor_b32 v{VOV+1}, {8*16}, v{VOV}")
    A(f"v_lshl_add_u32 v{VOWQ}, v3, 13, v9"); A(f"v_xor_b32 v{VOWQ+1}, {8*16}, v{VOWQ}")
    A("v_mul_u32_u24 v10, 896, v5")
    A("v_xor_b32 v11, v6, v7"); A(f"v_lshl_add_u32 v{VOX}, v11, 4, v10")
    A("v_xor_b32 v11, 4, v11"); A(f"v_lshl_add_u32 v{VOX+1}, v11, 4, v10")
    A("v_and_b32 v11, 1, v7"); A("v_lshlrev_b32 v11, 2, v11"); A("v_xor_b32 v11, v6, v11"); A(f"v_lshl_add_u32 v{VOWO}, v11, 4, v10")
    A("s_waitcnt lgkmcnt(0)")
    for n, (lo, size) in zip((SRD_X, SRD_K, SRD_V, SRD_WQ, SRD_WO, SRD_WS),
                             ((48, 8*128*448*2), (50, 32 << 20), (52, 32 << 20), (54, 448*4096*2), (56, 4096*448*2), (58, 256 << 20))):
        A(f"s_mov_b32 s{n}, s{lo}"); A(f"s_and_b32 s{n+1}, s{lo+1}, 0xffff"); A(f"s_mov_b32 s{n+2}, {size:#x}"); A(f"s_mov_b32 s{n+3}, 0x20000")

    def dma_ops(tile, slot):
        kind = tile[0]
        ops = []
        base = slot * 16384
        ops.append([f"s_add_u32 m0, s{S_W4K}, {base}"])
        res = []
        for ii in range(4):
            pre = []
            if kind in ("K", "V"):
                j = tile[1]
                if ii == 0: pre = None
                so = f"s_add_u32 s{S_T}, s{S_KVB}, {j*16384}"
                vo = VOK + ii if kind == "K" else VOV + (ii & 1)
                sr = SRD_K if kind == "K" else SRD_V
                fl = cfg.kv_fl
            elif kind == "WQ":
                t = tile[1]
                so = f"s_add_u32 s{S_T}, s{S_WQB}, {t*262144 + ii*(16384-1024)}"
                vo = VOWQ + (ii & 1); sr = SRD_WQ; fl = cfg.w_fl
            elif kind == "X":
                g = tile[1]
                so = f"s_add_u32 s{S_T}, s{S_XB}, {g*128 + ii*(7168-1024)}"
                vo = VOX + (ii & 1); sr = SRD_X; fl = cfg.w_fl
            elif kind == "WO":
                cc, hh = tile[1], tile[2]
                so = f"s_add_u32 s{S_T}, s{S_WOB}, {hh*128*896 + cc*128 + ii*(7168-1024)}"
                vo = VOWO; sr = SRD_WO; fl = cfg.w_fl
            fl = (" " + fl) if fl else ""
            res.append([Op(f"s_add_u32 m0, s{S_W4K}, {base}"), Op(so),
                        Op(f"buffer_load_dwordx4 v{vo}, {srd(sr)}, s{S_T} offen offset:{ii*1024}{fl} lds", kind="vm", tile=tile)])
        return res

    order = []
    qt = []
    for g in range(7): qt += [("X", g), ("WQ", 2*g), ("WQ", 2*g+1)]
    at = [("K", 0)]
    for j in range(16):
        if j < 15: at.append(("K", j+1))
        at.append(("V", j))
    ot = [("WO", c_, hh) for c_ in range(7) for hh in range(2)]
    order = qt + at + ot

    M = []
    def acc(db): return f"v[{ACC+16*db}:{ACC+16*db+15}]"
    def win(base_off):
        return base_off >> 16, base_off & 0xffff
    for g in range(7):
        for tp in range(4):
            for db in range(8):
                M.append(dict(ph="Q", g=g, tp=tp, db=db, tile=("WQ", 2*g + (tp >> 1))))
    def qk(j):
        for s in range(16): M.append(dict(ph="QK", j=j, s=s, tile=("K", j)))
    def pv(j):
        for t in range(2):
            for db in range(8): M.append(dict(ph="PV", j=j, t=t, db=db, tile=("V", j)))
    qk(0)
    for j in range(16):
        if j < 15: qk(j+1)
        pv(j)
    for c_ in range(7):
        for tp in range(16):
            for nb in range(2): M.append(dict(ph="O", c=c_, tp=tp, nb=nb, tile=("WO", c_, tp >> 3)))
    N = len(M)
    LA = cfg.LA
    first_use, last_use = {}, {}
    for n, m in enumerate(M):
        tl = [m["tile"]]
        if m["ph"] == "Q" and m["db"] == 0: tl.append(("X", m["g"]))
        for t in tl:
            first_use.setdefault(t, n); last_use[t] = n
    bars = [-1]
    steps = [0] + [32*g for g in range(1, 7)] + [224] + [240 + 32*j for j in range(16)] + [736 + 32*c_ for c_ in range(7)]
    steps = sorted(set(steps))
    bars = [max(-1, s - LA - 1) if s > 0 else -1 for s in steps]
    slot_of = {}
    fill = {n: [] for n in range(-1, N)}

    idx = {}
    for n, m in enumerate(M):
        key = (m["ph"], m.get("j", m.get("g", m.get("c"))))
        idx.setdefault(key, n)
    def Sreg(j): return S0 if j % 2 == 0 else S1
    def spread(ops, start, end):
        k = end - start
        for i, o in enumerate(ops):
            fill[start + (i * k) // len(ops)].append(o)
    def softmax_ops(j):
        s = Sreg(j); ops = []
        for r in range(16):
            ops.append(Op(f"v_fma_f32 v{s+r}, v{s+r}, s{S_C}, -v{VM}"))
        res = []
        seq = []
        for r in range(16 + 3):
            if r < 16: seq.append(Op(f"v_fma_f32 v{s+r}, v{s+r}, s{S_C}, -v{VM}"))
            if 0 <= r - 1 < 16: seq.append(Op(f"v_exp_f32 v{s+r-1}, v{s+r-1}"))
            if 0 <= r - 3 < 16:
                q = r - 3
                vl = VL0 if q % 2 == 0 else VL1
                seq.append(Op(f"v_add_f32 v{vl}, v{vl}, v{s+q}"))
                if q % 2 == 1: seq.append(Op(f"v_cvt_pk_bf16_f32 v{PB + q//2}, v{s+q-1}, v{s+q}"))
        return seq
    def max_ops(j):
        s = Sreg(j)
        seq = [Op(f"v_max3_f32 v{VMX}, v{s}, v{s+1}, v{s+2}"), Op(f"v_max3_f32 v{VT0}, v{s+3}, v{s+4}, v{s+5}")]
        seq += [Op(f"v_max3_f32 v{VMX}, v{VMX}, v{s+6}, v{s+7}"), Op(f"v_max3_f32 v{VT0}, v{VT0}, v{s+8}, v{s+9}")]
        seq += [Op(f"v_max3_f32 v{VMX}, v{VMX}, v{s+10}, v{s+11}"), Op(f"v_max3_f32 v{VT0}, v{VT0}, v{s+12}, v{s+13}")]
        seq += [Op(f"v_max3_f32 v{VMX}, v{VMX}, v{s+14}, v{s+15}"), Op(f"v_max_f32 v{VMX}, v{VMX}, v{VT0}")]
        return seq
    qp = [Op("s_nop 15")]
    for n in range(64):
        t = VT0 + (n % 4)
        qp.append(Op(f"v_cvt_pk_bf16_f32 v{t}, v{ACC+2*n}, v{ACC+2*n+1}"))
        if n >= 1: qp.append(Op(f"v_accvgpr_write_b32 a{QF+n-1}, v{VT0 + ((n-1) % 4)}"))
    qp.append(Op(f"v_accvgpr_write_b32 a{QF+63}, v{VT0+3}")); qp.append(Op("s_nop 1"))
    fill[223] += qp
    e0 = idx[("QK", 0)] + 15
    im = [Op("s_nop 15")] + max_ops(0) + [Op(f"v_mov_b32 v{VT0}, v{VMX}"), Op("s_nop 1"), Op(f"v_permlane32_swap_b32 v{VT0}, v{VMX}"), Op("s_nop 1"),
          Op(f"v_max_f32 v{VMX}, v{VMX}, v{VT0}"), Op(f"v_mul_f32 v{VM}, s{S_C}, v{VMX}"), Op(f"v_mov_b32 v{VL0}, 0"), Op(f"v_mov_b32 v{VL1}, 0")]
    fill[e0] += im
    stubs = []
    for j in range(16):
        pvs = idx[("PV", j)]
        if j < 15:
            qs = idx[("QK", j+1)]
            spread(softmax_ops(j), qs, qs + 15)
            fill[qs + 15].append(Op("s_nop 1"))
            mo = max_ops(j+1) + [Op(f"v_fma_f32 v{VT0}, v{VMX}, s{S_C}, -v{VM}"), Op(f"v_cmp_lt_f32 vcc, 0x41000000, v{VT0}")]
            spread(mo, pvs + 6, pvs + 13)
            fill[pvs + 15].append(Op(f"s_cbranch_vccnz L_stub_{j}")); fill[pvs + 15].append(Op(f"L_back_{j}:"))
            stubs.append(j)
        else:
            fill[pvs - 1] += softmax_ops(j) + [Op("s_nop 1")]
    eo = idx[("PV", 15)] + 15
    ep = [Op(f"v_add_f32 v{VL0}, v{VL0}, v{VL1}"), Op("s_nop 0"), Op(f"v_mov_b32 v{VT0}, v{VL0}"), Op("s_nop 1"), Op(f"v_permlane32_swap_b32 v{VT0}, v{VL0}"), Op("s_nop 1"),
          Op(f"v_add_f32 v{VT1}, v{VL0}, v{VT0}"), Op(f"v_mov_b32 v{VT0}, v{VM}")]
    ep += [Op(f"s_lshl_b32 s{S_T2}, s{S_B}, 2"), Op(f"s_add_u32 s{S_T2}, s{S_T2}, s{S_W}"), Op(f"s_lshl_b32 s{S_T2}, s{S_T2}, 4"), Op(f"s_add_u32 s{S_T2}, s{S_T2}, s{S_H}"),
           Op(f"s_lshl_b32 s{S_T2}, s{S_T2}, 1"), Op(f"s_add_u32 s{S_T2}, s{S_T2}, s{S_S}"), Op(f"s_lshl_b32 s{S_T2}, s{S_T2}, 8"), Op(f"s_add_u32 s{S_T2}, s{S_T2}, {32<<20}"),
           Op(f"v_lshlrev_b32 v{VT2}, 3, v4"), Op(f"buffer_store_dwordx2 v[{VT0}:{VT1}], v{VT2}, {srd(SRD_WS)}, s{S_T2} offen{(' '+cfg.st_fl) if cfg.st_fl else ''}", kind="vm", tile=("ST",))]
    for n in range(64):
        ep.append(Op(f"v_cvt_pk_bf16_f32 v{ACC+n}, v{ACC+2*n}, v{ACC+2*n+1}"))
    ep.append(Op("s_nop 1"))
    fill[eo] += ep
    def Y(c_, nb): return 192 + 32 * (c_ & 1) + 16 * nb
    def ystore(c_):
        seq = []
        for nb in range(2):
            for t in range(2):
                d = S0 + 4 * (2*nb + t) + 16 * (c_ & 1)
                y = Y(c_, nb) + 8 * t
                for i in range(4): seq.append(Op(f"v_cvt_pk_bf16_f32 v{d+i}, v{y+2*i}, v{y+2*i+1}"))
                u = (2*c_ + nb) * 2 + t
                seq.append(Op(f"s_add_u32 s{S_T2}, s{S_YB}, {u*32768}"))
                seq.append(Op(f"buffer_store_dwordx4 v[{d}:{d+3}], v{VST}, {srd(SRD_WS)}, s{S_T2} offen{(' '+cfg.st_fl) if cfg.st_fl else ''}", kind="vm", tile=("ST",)))
        return seq
    for c_ in range(7):
        if c_ < 6:
            st = idx[("O", c_+1)]
            spread(ystore(c_), st + 6, st + 24)
        else:
            fill[N-1] += [Op("s_nop 15")] + ystore(c_)

    def addr_q():
        o = []
        o += ["v_bfe_u32 v12, v2, 2, 2", "v_and_b32 v13, 3, v2", "v_and_b32 v14, 1, v7"]
        o += ["v_and_b32 v15, 1, v13", "v_lshlrev_b32 v15, 4, v15", "v_lshrrev_b32 v16, 1, v13", "v_lshl_add_u32 v15, v16, 3, v15", "v_lshl_add_u32 v15, v14, 5, v15"]
        o += ["v_lshl_add_u32 v16, v3, 3, v12", "v_lshl_add_u32 v16, v16, 9, v15", "v_lshl_add_u32 v16, v12, 6, v16"]
        for d in range(4):
            for w in range(3):
                r = AK + w*4 + d
                if w == 0: o.append(f"v_xor_b32 v{r}, {d*64}, v16")
                else: o.append(f"v_add_u32 v{r}, {w*65536}, v{AK+d}")
        o += ["v_bfe_u32 v17, v2, 1, 3", "v_xor_b32 v17, v17, v3", "v_lshlrev_b32 v17, 4, v17", "v_lshl_add_u32 v17, v4, 7, v17", f"v_add_u32 v17, s{S_W4K}, v17"]
        for d in range(4):
            for w in range(3):
                r = AK + 12 + w*4 + d
                if w == 0: o.append(f"v_xor_b32 v{r}, {d*32}, v17")
                else: o.append(f"v_add_u32 v{r}, {w*65536}, v{AK+12+d}")
        o += ["v_lshl_add_u32 v18, v3, 2, v12", "v_lshlrev_b32 v18, 9, v18", "v_lshl_add_u32 v18, v12, 6, v18", "v_lshl_add_u32 v18, v14, 5, v18", "v_lshl_add_u32 v18, v13, 3, v18"]
        for d in range(4):
            for w in range(3):
                r = AV + w*4 + d
                if w == 0: o.append(f"v_xor_b32 v{r}, {d*64}, v18")
                else: o.append(f"v_add_u32 v{r}, {w*65536}, v{AV+d}")
        o += ["v_and_b32 v19, 15, v2", "v_xor_b32 v19, v19, v3", "v_lshlrev_b32 v19, 4, v19", "v_lshl_add_u32 v19, v4, 9, v19"]
        o += ["v_lshl_add_u32 v20, v3, 2, v12", "v_lshl_add_u32 v20, v20, 7, v15", "v_lshrrev_b32 v21, 1, v12", "v_lshl_add_u32 v20, v21, 6, v20"]
        return o
    def addr_k():
        o = []
        for d in range(8):
            for w in range(3):
                r = AK + w*8 + d
                if w == 0: o.append(Op(f"v_xor_b32 v{r}, {d*32}, v19"))
                else: o.append(Op(f"v_add_u32 v{r}, {w*65536}, v{AK+d}"))
        return o
    def addr_wo():
        o = []
        for d in range(2):
            for w in range(3):
                r = 22 + w*2 + d
                if w == 0: o.append(f"v_xor_b32 v{r}, {d*64}, v20")
                else: o.append(f"v_add_u32 v{r}, {w*65536}, v{22+d}")
        return o

    def reads_for(n):
        m = M[n]; ops = []
        fr = FR + 4 * (n % NF)
        sb = slot_of[m["tile"]] * 16384
        if m["ph"] == "Q":
            if m["db"] == 0:
                xb = slot_of[("X", m["g"])] * 16384
                w, off = win(xb)
                xr = XF + 4 * (m["tp"])
                ops.append(Op(f"ds_read_b128 a[{xr}:{xr+3}], v{AK+12+w*4+m['tp']} offset:{off}", kind="lds", prod=("X", m["g"], m["tp"]), tile=("X", m["g"])))
            t = m["tp"] & 1; db = m["db"]
            for hh in range(2):
                w, off = win(sb + (16*t + 4*hh) * 512 + (db >> 2) * 256)
                ops.append(Op(f"ds_read_b64_tr_b16 a[{fr+2*hh}:{fr+2*hh+1}], v{AK+w*4+(db&3)} offset:{off}", kind="lds", prod=("F", n), tile=m["tile"]))
        elif m["ph"] == "QK":
            s = m["s"]
            w, off = win(sb + (s >> 3) * 256)
            ops.append(Op(f"ds_read_b128 a[{fr}:{fr+3}], v{AK+w*8+(s&7)} offset:{off}", kind="lds", prod=("F", n), tile=m["tile"]))
        elif m["ph"] == "PV":
            t, db = m["t"], m["db"]
            for hh in range(2):
                w, off = win(sb + (16*t + 8*hh) * 512 + (db >> 2) * 256)
                ops.append(Op(f"ds_read_b64_tr_b16 a[{fr+2*hh}:{fr+2*hh+1}], v{AV+w*4+(db&3)} offset:{off}", kind="lds", prod=("F", n), tile=m["tile"]))
        elif m["ph"] == "O":
            tp, nb = m["tp"], m["nb"]
            for hh in range(2):
                w, off = win(sb + (16*(tp & 7) + 8*hh) * 128)
                ops.append(Op(f"ds_read_b64_tr_b16 a[{fr+2*hh}:{fr+2*hh+1}], v{22+w*2+nb} offset:{off}", kind="lds", prod=("F", n), tile=m["tile"]))
        return ops
    def mfma(n):
        m = M[n]; fr = FR + 4 * (n % NF); a = f"a[{fr}:{fr+3}]"
        cons = [("F", n)]
        if m["ph"] == "Q":
            xr = XF + 4 * m["tp"]; d = acc(m["db"]); cons.append(("X", m["g"], m["tp"]))
            cc = "0" if (m["g"] == 0 and m["tp"] == 0) else d
            t = f"v_mfma_f32_32x32x16_bf16 {d}, {a}, a[{xr}:{xr+3}], {cc}"
        elif m["ph"] == "QK":
            s = Sreg(m["j"]); d = f"v[{s}:{s+15}]"; q = QF + 4 * m["s"]
            t = f"v_mfma_f32_32x32x16_bf16 {d}, {a}, a[{q}:{q+3}], {'0' if m['s'] == 0 else d}"
        elif m["ph"] == "PV":
            d = acc(m["db"]); p = PB + 4 * m["t"]
            t = f"v_mfma_f32_32x32x16_bf16 {d}, {a}, v[{p}:{p+3}], {'0' if (m['j'] == 0 and m['t'] == 0) else d}"
        else:
            y = Y(m["c"], m["nb"]); d = f"v[{y}:{y+15}]"; o = ACC + 4 * m["tp"]
            t = f"v_mfma_f32_32x32x16_bf16 {d}, {a}, v[{o}:{o+3}], {'0' if m['tp'] == 0 else d}"
        return Op(t, kind="mfma", cons=cons)

    ops = []
    free_slots = list(range(10))
    pending = list(order)
    cur_dma = []
    resident = {}
    covered = set()
    def try_dma(k):
        nonlocal cur_dma
        for _ in range(k):
            if not cur_dma:
                if not pending or not free_slots: return
                t = pending.pop(0); s = free_slots.pop(0); slot_of[t] = s; resident[t] = s
                cur_dma = dma_ops(t, s)
            ops.extend(cur_dma.pop(0))
    def barrier(p, nextp):
        need = [t for t in first_use if t not in covered and read_gap(first_use[t]) <= nextp_eff(nextp)]
        for t in need:
            while t not in slot_of or (cur_dma and cur_dma[0][2].tile == t):
                before = len(ops); try_dma(1)
                assert len(ops) > before, f"cannot issue DMA for {t} before barrier at {p}"
        ops.append(Op("WAITVM", kind="waitvm", cons=need))
        ops.append(Op("s_barrier"))
        covered.update(need)
        for t in list(resident):
            if last_use[t] <= p:
                free_slots.append(resident.pop(t))
    CUT = 224
    def read_gap(n):
        g = n - LA
        if n >= CUT and g < CUT - 1: g = CUT - 1
        return max(g, -1)
    def nextp_eff(nextp): return nextp - 1 if nextp is not None else N
    for l in addr_q() + addr_wo(): A(l)
    try_dma(40)
    rd_by_gap = {}
    for n in range(N): rd_by_gap.setdefault(read_gap(n), []).append(n)
    for g in range(-1, N):
        if g >= 0: ops.append(mfma(g))
        if g in bars:
            i = bars.index(g)
            barrier(g, bars[i+1] if i + 1 < len(bars) else None)
        if g == CUT - 1:
            ops.extend(addr_k())
        for n in rd_by_gap.get(g, []):
            for o in reads_for(n):
                assert o.tile in covered, (n, o.tile, g)
                ops.append(o)
        ops.extend(fill[g])
        if g % 2 == 0: try_dma(1)
    assert not pending and not cur_dma
    lds_q, vm_q = [], []
    for o in ops:
        if o.kind == "lds":
            lds_q.append(o.prod); assert len(lds_q) <= 15 or True
            A(o.text)
        elif o.kind == "vm":
            vm_q.append(o.tile); A(o.text)
        elif o.kind == "mfma":
            last = max((i for i, t in enumerate(lds_q) if t in o.cons), default=-1)
            if last >= 0:
                k = len(lds_q) - 1 - last
                A(f"s_waitcnt lgkmcnt({min(k,15)})")
                lds_q = lds_q[last+1:] if k <= 15 else lds_q[-15:]
            A(o.text)
        elif o.kind == "waitvm":
            last = max((i for i, t in enumerate(vm_q) if t in o.cons), default=-1)
            if last >= 0:
                k = len(vm_q) - 1 - last
                assert k <= 63
                A(f"s_waitcnt vmcnt({k})")
                vm_q = vm_q[last+1:]
        else:
            A(o.text)
    A("s_endpgm")
    for j in stubs:
        A(f"L_stub_{j}:"); A(f"s_call_b64 s[{S_RET}:{S_RET+1}], L_rescale"); A(f"s_branch L_back_{j}")
    A("L_rescale:")
    A("s_nop 15")
    A(f"v_mov_b32 v{VT0}, v{VMX}"); A("s_nop 1"); A(f"v_permlane32_swap_b32 v{VT0}, v{VMX}"); A("s_nop 1")
    A(f"v_max_f32 v{VMX}, v{VMX}, v{VT0}"); A(f"v_mul_f32 v{VMX}, s{S_C}, v{VMX}"); A(f"v_max_f32 v{VMX}, v{VMX}, v{VM}")
    A(f"v_sub_f32 v{VT0}, v{VM}, v{VMX}"); A(f"v_exp_f32 v{VT0}, v{VT0}"); A(f"v_mov_b32 v{VM}, v{VMX}")
    A(f"v_mul_f32 v{VL0}, v{VL0}, v{VT0}"); A(f"v_mul_f32 v{VL1}, v{VL1}, v{VT0}")
    for r in range(128): A(f"v_mul_f32 v{ACC+r}, v{ACC+r}, v{VT0}")
    A("s_nop 1")
    A(f"s_setpc_b64 s[{S_RET}:{S_RET+1}]")
    return L

def gen_reduce(cfg):
    L = []; A = L.append
    A(f".globl {RNAME}"); A(".p2align 8"); A(f".type {RNAME},@function"); A(f"{RNAME}:")
    A("s_cmp_lt_u32 s2, 224"); A("s_cbranch_scc1 L_red_go"); A("s_endpgm"); A("L_red_go:")
    A("s_load_dwordx2 s[4:5], s[0:1], 40"); A("s_load_dwordx2 s[6:7], s[0:1], 56")
    A("v_lshrrev_b32 v1, 6, v0"); A("v_and_b32 v2, 63, v0"); A("v_readfirstlane_b32 s3, v1")
    A("s_and_b32 s16, s2, 7"); A("s_lshr_b32 s17, s2, 3"); A("s_lshl_b32 s17, s17, 2"); A("s_add_u32 s17, s17, s3")
    A("s_mul_i32 s18, s17, 147"); A("s_lshr_b32 s18, s18, 12")
    A("s_mul_i32 s19, s18, 28"); A("s_sub_u32 s19, s17, s19")
    A("s_mul_i32 s20, s16, 112"); A("s_add_u32 s20, s20, s17"); A("s_lshl_b32 s20, s20, 15")
    A("s_lshl_b32 s21, s16, 2"); A("s_add_u32 s21, s21, s18")
    A("s_lshl_b32 s22, s21, 13"); A(f"s_add_u32 s22, s22, {32<<20}")
    A(f"s_mul_i32 s23, s21, {32*896}"); A("s_lshl_b32 s24, s19, 5"); A("s_add_u32 s23, s23, s24")
    A("v_lshlrev_b32 v3, 4, v2"); A("v_lshlrev_b32 v4, 3, v2")
    A("v_and_b32 v5, 31, v2"); A("v_mul_u32_u24 v5, 896, v5"); A("v_lshrrev_b32 v6, 5, v2"); A("v_lshl_add_u32 v5, v6, 4, v5")
    A("s_waitcnt lgkmcnt(0)")
    A("s_mov_b32 s8, s4"); A("s_and_b32 s9, s5, 0xffff"); A(f"s_mov_b32 s10, {8*128*448*2}"); A("s_mov_b32 s11, 0x20000")
    A("s_mov_b32 s12, s6"); A("s_and_b32 s13, s7, 0xffff"); A(f"s_mov_b32 s14, {256<<20}"); A("s_mov_b32 s15, 0x20000")
    ML = 16
    D = 64
    for h in range(16):
        A(f"buffer_load_dwordx2 v[{ML+2*h}:{ML+2*h+1}], v4, s[12:15], s22 offen offset:{(h%8)*512}")
        if h == 7: A("s_add_u32 s22, s22, 4096")
    for p in range(32):
        A(f"buffer_load_dwordx4 v[{D+4*p}:{D+4*p+3}], v3, s[12:15], s20 offen offset:{(p%4)*1024}")
        if p % 4 == 3: A("s_add_u32 s20, s20, 4096")
    A("s_waitcnt vmcnt(32)")
    for h in range(16):
        m, l = ML + 2*h, ML + 2*h + 1
        A(f"v_mov_b32 v8, v{m}"); A(f"v_mov_b32 v9, v{l}"); A("s_nop 1")
        A(f"v_permlane32_swap_b32 v{m}, v8"); A(f"v_permlane32_swap_b32 v{l}, v9"); A("s_nop 1")
        A(f"v_max_f32 v10, v{m}, v8"); A(f"v_sub_f32 v{m}, v{m}, v10"); A("v_sub_f32 v8, v8, v10")
        A(f"v_exp_f32 v{m}, v{m}"); A("v_exp_f32 v8, v8"); A("s_nop 0")
        A(f"v_mul_f32 v{l}, v{l}, v{m}"); A(f"v_fmac_f32 v{l}, v9, v8"); A(f"v_rcp_f32 v{l}, v{l}"); A("s_nop 0")
        A(f"v_mul_f32 v{m}, v{m}, v{l}"); A(f"v_mul_f32 v{l}, v8, v{l}")
    for i in range(8): A(f"v_mov_b32 v{48+i}, 0")
    for p in range(32):
        A(f"s_waitcnt vmcnt({31-p})")
        w = ML + p
        for i in range(4):
            A(f"v_lshlrev_b32 v8, 16, v{D+4*p+i}"); A(f"v_and_b32 v9, 0xffff0000, v{D+4*p+i}")
            A(f"v_fmac_f32 v{48+2*i}, v8, v{w}"); A(f"v_fmac_f32 v{49+2*i}, v9, v{w}")
    for i in range(4): A(f"v_cvt_pk_bf16_f32 v{56+i}, v{48+2*i}, v{49+2*i}")
    A("buffer_store_dwordx4 v[56:59], v5, s[8:11], s23 offen")
    A("s_endpgm")
    return L

def kd(name, vgpr, accum, sgpr=102):
    return f""".amdhsa_kernel {name}
  .amdhsa_next_free_vgpr {vgpr}
  .amdhsa_next_free_sgpr {sgpr}
  .amdhsa_accum_offset {accum}
  .amdhsa_group_segment_fixed_size 0
  .amdhsa_kernarg_size 64
  .amdhsa_user_sgpr_count 2
  .amdhsa_user_sgpr_kernarg_segment_ptr 1
  .amdhsa_system_sgpr_workgroup_id_x 1
.end_amdhsa_kernel"""

def gen(cfg):
    out = [HEADER.rstrip()]
    out.append(f"; @launch kernel={KNAME} grid=(256,1,1) block=(256,1,1) lds=163840")
    out.append(f"; @launch kernel={RNAME} grid=(224,1,1) block=(256,1,1) lds=0")
    out.append('.amdgcn_target "amdgcn-amd-amdhsa--gfx950"'); out.append(".text")
    out += gen_main(cfg); out += gen_reduce(cfg)
    out.append('.section .rodata,"a"'); out.append(".p2align 6"); out.append(kd(KNAME, 512, 256))
    out.append(".p2align 6"); out.append(kd(RNAME, 192, 192))
    return "\n".join(out) + "\n"

if __name__ == "__main__":
    cfg = Cfg()
    for a in sys.argv[2:]:
        k, v = a.split("=")
        setattr(cfg, k, int(v) if v.lstrip("-").isdigit() else v)
    open(sys.argv[1], "w").write(gen(cfg))
```

```python
import math, sys, struct

KNAME = "gqa_main_kernel"
RNAME = "gqa_reduce_kernel"
HEADER = open("standalone__gqa_block_cached__near_ridge.s.ref").read().split("; Override launch")[0]

class Cfg:
    kv_fl = ""
    w_fl = ""
    st_fl = ""
    LA = 4
    BO = 2
    fol = 2
    lead = 4
    rot = 1
    stamps = 0
    nodma = 0
    prio = 0

S0, S1 = 0, 16
FR, NF = 32, 5
VKB, VVB, VA, VM, VL, VMX, VT0, VT1, VST = 52, 53, 54, 58, 59, 60, 61, 62, 63
OA = 64
QF = 0
SLOT = 32768
SRD_X, SRD_K, SRD_V, SRD_WQ, SRD_WO, SRD_WS = 8, 12, 16, 20, 24, 28
S_W, S_B, S_H, S_QH, S_J = 3, 32, 33, 34, 35
S_QB, S_KH, S_C, S_YB, S_T, S_T2, S_ROT = 36, 37, 38, 39, 42, 43, 44
S_RET = 40
S_XB, S_KVB, S_WQB, S_WOB, S_LW8K, S_G = 45, 46, 47, 60, 61, 62
def srd(n): return f"s[{n}:{n+3}]"
def fl(x): return (" " + x) if x else ""

class Op:
    def __init__(self, text, kind="x", prod=None, cons=None, item=None):
        self.text, self.kind, self.prod, self.cons, self.item = text, kind, prod, cons, item

ITEMS = [("WQ", g) for g in range(7)] + [("QX",)]
ATT = [("K", 0)]
for j in range(16):
    if j < 15: ATT.append(("K", j+1))
    ATT.append(("V", j))
ITEMS += ATT + [("OXa",), ("OXb",), ("OXc",)] + [("WO", c) for c in range(7)]
IDX = {t: i for i, t in enumerate(ITEMS)}
def slot(t): return (IDX[t] % 5) * SLOT
XBASE = 3 * SLOT
BARS = [("X", [("X",), ("WQ", 0)], []), ("W1", [("WQ", 1)], [("X",), ("WQ", 0)])]
for g in range(2, 7): BARS.append((f"W{g}", [("WQ", g)], [("WQ", g-1)]))
BARS.append(("QX", [("K", 0)], [("WQ", 6)]))
prev = ("QX",)
for i, t in enumerate(ATT):
    if i == 0: continue
    fr_ = [ATT[i-1]] + ([("QX",)] if i == 1 else [])
    BARS.append((f"A{i}", [t], fr_))
BARS.append(("X1", [], [("V", 15)]))
BARS.append(("X2", [("WO", 0)], [("OXa",), ("OXb",)]))
for c in range(1, 7): BARS.append((f"O{c}", [("WO", c)], [("WO", c-1)] + ([("OXc",)] if c == 1 else [])))

def common_setup(A, cfg):
    A("s_cmp_lt_u32 s2, 256"); A("s_cbranch_scc1 L_main_go"); A("s_endpgm"); A("L_main_go:")
    if cfg.stamps: A("s_memrealtime s[64:65]" if cfg.stamps == 1 else "s_memtime s[64:65]")
    A("s_load_dwordx8 s[48:55], s[0:1], 0")
    A("s_load_dwordx2 s[56:57], s[0:1], 32")
    A("s_load_dwordx2 s[58:59], s[0:1], 56")
    A("v_lshrrev_b32 v1, 6, v0"); A("v_and_b32 v2, 63, v0")
    A(f"v_readfirstlane_b32 s{S_W}, v1")
    A("s_and_b32 s4, s2, 7"); A("s_lshr_b32 s5, s2, 3")
    A(f"s_lshr_b32 s{S_B}, s5, 2"); A(f"s_and_b32 s{S_J}, s5, 3")
    A(f"s_and_b32 s6, s{S_J}, 1"); A(f"s_lshl_b32 s{S_H}, s4, 1"); A(f"s_add_u32 s{S_H}, s{S_H}, s6")
    A(f"s_lshr_b32 s{S_QH}, s{S_J}, 1")
    if cfg.rot:
        A(f"s_lshl_b32 s{S_ROT}, s{S_B}, 1"); A(f"s_add_u32 s{S_ROT}, s{S_ROT}, s{S_QH}")
        for _ in range(2):
            A(f"s_sub_u32 s6, s{S_ROT}, 7"); A(f"s_cmp_ge_u32 s{S_ROT}, 7"); A(f"s_cselect_b32 s{S_ROT}, s6, s{S_ROT}")
    else:
        A(f"s_mov_b32 s{S_ROT}, 0")
    A("v_lshrrev_b32 v3, 5, v2"); A("v_and_b32 v4, 31, v2"); A("v_lshrrev_b32 v7, 4, v2")
    A(f"s_cmp_ge_u32 s{S_W}, 4"); A("s_cbranch_scc1 L_loader")

def stamp_tail(A, cfg, nw):
    if not cfg.stamps: return
    A("s_waitcnt vmcnt(0)"); A("s_memrealtime s[94:95]" if cfg.stamps == 1 else "s_memtime s[94:95]"); A("s_waitcnt lgkmcnt(0)")
    A(f"s_lshl_b32 s{S_T}, s2, 2"); A(f"s_add_u32 s{S_T}, s{S_T}, s{S_W}"); A(f"s_lshl_b32 s{S_T}, s{S_T}, 7"); A(f"s_add_u32 s{S_T}, s{S_T}, {64<<20}")
    for i in range(32): A(f"v_mov_b32 v{64+i}, s{64+i}")
    A("v_mov_b32 v1, 0"); A("s_mov_b64 exec, 1")
    for i in range(8): A(f"buffer_store_dwordx4 v[{64+4*i}:{67+4*i}], v1, {srd(SRD_WS)}, s{S_T} offen offset:{16*i}")

def mk_srd(A, n, lo, size):
    A(f"s_mov_b32 s{n}, s{lo}"); A(f"s_and_b32 s{n+1}, s{lo+1}, 0xffff"); A(f"s_mov_b32 s{n+2}, {size:#x}"); A(f"s_mov_b32 s{n+3}, 0x20000")

def gen_loader(A, cfg):
    A("L_loader:")
    A(f"s_sub_u32 s7, s{S_W}, 4")
    A(f"s_lshl_b32 s{S_LW8K}, s7, 13")
    A(f"s_lshl_b32 s{S_KVB}, s{S_B}, 3"); A(f"s_add_u32 s{S_KVB}, s{S_KVB}, s4"); A(f"s_lshl_b32 s{S_KVB}, s{S_KVB}, 19"); A(f"s_add_u32 s{S_KVB}, s{S_KVB}, s{S_LW8K}")
    A(f"s_lshl_b32 s{S_XB}, s{S_B}, 3"); A(f"s_lshl_b32 s6, s{S_QH}, 2"); A(f"s_add_u32 s{S_XB}, s{S_XB}, s6"); A(f"s_add_u32 s{S_XB}, s{S_XB}, s7"); A(f"s_mul_i32 s{S_XB}, s{S_XB}, {16*896}")
    A(f"s_lshl_b32 s{S_WQB}, s7, 17"); A(f"s_lshl_b32 s6, s{S_H}, 9"); A(f"s_add_u32 s{S_WQB}, s{S_WQB}, s6")
    A(f"s_lshl_b32 s{S_WOB}, s{S_H}, 2"); A(f"s_add_u32 s{S_WOB}, s{S_WOB}, s7"); A(f"s_mul_i32 s{S_WOB}, s{S_WOB}, {64*896}")
    A("v_lshrrev_b32 v5, 3, v2"); A("v_and_b32 v6, 7, v2")
    VOK, VOV, VOWQ, VOX, VOWO = 16, 24, 26, 28, 30
    A("v_mul_u32_u24 v10, 896, v5")
    A("v_xor_b32 v11, v6, v7"); A(f"v_lshl_add_u32 v{VOX}, v11, 4, v10")
    A("v_xor_b32 v11, 4, v11"); A(f"v_lshl_add_u32 v{VOX+1}, v11, 4, v10")
    A("v_lshlrev_b32 v9, 2, v3"); A("v_xor_b32 v9, v4, v9"); A("v_lshlrev_b32 v9, 4, v9")
    A(f"v_lshl_add_u32 v{VOWQ}, v3, 13, v9"); A(f"v_xor_b32 v{VOWQ+1}, 0x80, v{VOWQ}")
    A("s_lshr_b32 s6, s7, 1"); A("s_lshl_b32 s6, s6, 8")
    A(f"v_lshl_add_u32 v{VOV}, v3, 9, v9"); A(f"v_xor_b32 v{VOV}, s6, v{VOV}"); A(f"v_xor_b32 v{VOV+1}, 0x80, v{VOV}")
    A("v_xor_b32 v8, v4, v3"); A("v_lshlrev_b32 v8, 4, v8"); A("v_lshl_add_u32 v8, v3, 9, v8")
    for ii in range(8): A(f"v_xor_b32 v{VOK+ii}, {ii*32}, v8")
    A("v_and_b32 v11, 1, v7"); A("v_lshlrev_b32 v11, 2, v11"); A("v_xor_b32 v11, v6, v11"); A(f"v_lshl_add_u32 v{VOWO}, v11, 4, v10")
    A(f"s_mov_b32 s70, s{S_ROT}")
    for g in range(1, 7):
        A(f"s_add_u32 s{70+g}, s{69+g}, 1"); A(f"s_cmp_eq_u32 s{70+g}, 7"); A(f"s_cselect_b32 s{70+g}, 0, s{70+g}")
    A("s_waitcnt lgkmcnt(0)")
    mk_srd(A, SRD_X, 48, 8*128*448*2); mk_srd(A, SRD_WQ, 54, 448*4096*2)
    mk_srd(A, SRD_K, 50, 32 << 20); mk_srd(A, SRD_V, 52, 32 << 20); mk_srd(A, SRD_WO, 56, 4096*448*2)
    def dma(t):
        k = t[0]; n = 0
        if k == "X":
            A("s_lshr_b32 s6, s%d, 2" % S_LW8K)
            for g in range(7):
                A(f"s_lshl_b32 s{S_T}, s{70+g}, 7"); A(f"s_add_u32 s{S_T}, s{S_T}, s{S_XB}")
                A(f"s_add_u32 m0, s6, {XBASE + g*8192}")
                A(f"s_add_u32 s{S_T2}, s{S_T}, {7168-1024}")
                A(f"buffer_load_dwordx4 v{VOX}, {srd(SRD_X)}, s{S_T} offen{fl(cfg.w_fl)} lds")
                A(f"buffer_load_dwordx4 v{VOX+1}, {srd(SRD_X)}, s{S_T2} offen offset:1024{fl(cfg.w_fl)} lds")
            return 14
        sb = slot(t)
        if k in ("K", "V"):
            for hh in range(2):
                A(f"s_add_u32 m0, s{S_LW8K}, {sb + hh*4096}")
                A(f"s_add_u32 s{S_T}, s{S_KVB}, {t[1]*32768 + hh*4096}")
                for i4 in range(4):
                    ii = hh*4 + i4
                    vo = VOK + ii if k == "K" else VOV + (ii & 1)
                    A(f"buffer_load_dwordx4 v{vo}, {srd(SRD_K if k == 'K' else SRD_V)}, s{S_T} offen offset:{i4*1024}{fl(cfg.kv_fl)} lds")
        else:
            if k == "WQ":
                A(f"s_lshl_b32 s{S_G}, s{70+t[1]}, 19"); A(f"s_add_u32 s{S_G}, s{S_G}, s{S_WQB}"); stride = 16384
            else:
                A(f"s_lshl_b32 s{S_G}, s{70+t[1]}, 7"); A(f"s_add_u32 s{S_G}, s{S_G}, s{S_WOB}"); stride = 7168
            for ii in range(8):
                if ii % 4 == 0: A(f"s_add_u32 m0, s{S_LW8K}, {sb + (ii//4)*4096}")
                A(f"s_add_u32 s{S_T}, s{S_G}, {ii*stride - (ii%4)*1024}")
                vo = VOWQ + (ii & 1) if k == "WQ" else VOWO
                A(f"buffer_load_dwordx4 v{vo}, {srd(SRD_WQ if k == 'WQ' else SRD_WO)}, s{S_T} offen offset:{(ii%4)*1024}{fl(cfg.w_fl)} lds")
        return 8
    for j in range(1, 4):
        A(f"s_cmp_eq_u32 s{S_J}, {j}"); A(f"s_cbranch_scc1 L_ld{j}")
    need_bar = {}
    for bi, (nm, needs, frees) in enumerate(BARS):
        for t in needs: need_bar[t] = bi
    for j in range(4):
        A(f"L_ld{j}:")
        q = []
        busy = {}
        def issue(t):
            n = dma(t) if not (cfg.nodma and t[0] in ("K", "V", "WO") ) else 0
            q.extend([t] * n)
        issue(("X",)); busy[3] = ("X",); busy[4] = ("X",)
        todo = [t for t in ITEMS]
        def pump(bi):
            cand = []
            for t in todo:
                s = IDX[t] % 5
                if s in busy: continue
                if any(IDX[u] % 5 == s and IDX[u] < IDX[t] for u in todo): continue
                if t[0] in ("QX", "OXa", "OXb", "OXc"):
                    cand.append((0, t)); continue
                nb = need_bar[t]
                if t[0] in ("K", "V"):
                    own = (ATT.index(t) & 3) == j
                    la = cfg.lead if own else cfg.fol
                    if nb - bi > la: continue
                cand.append((IDX[t], t))
            for _, t in sorted(cand):
                todo.remove(t); busy[IDX[t] % 5] = t
                if t[0] not in ("QX", "OXa", "OXb", "OXc"): issue(t)
        pump(-1)
        for bi, (nm, needs, frees) in enumerate(BARS):
            for t in needs: assert t == ("X",) or t not in todo, (j, nm, t)
            last = max((i for i, t in enumerate(q) if t in needs), default=-1)
            if last >= 0:
                k = len(q) - 1 - last; assert k <= 63
                A(f"s_waitcnt vmcnt({k})"); del q[:last+1]
            A("s_barrier")
            for t in frees:
                for s in [s for s, u in busy.items() if u == t]: del busy[s]
            pump(bi)
        assert not todo, todo
        A("s_endpgm")

def gen_main(cfg):
    L = []; A = L.append
    A(f".globl {KNAME}"); A(".p2align 8"); A(f".type {KNAME},@function"); A(f"{KNAME}:")
    common_setup(A, cfg)
    if cfg.prio: A(f"s_setprio {cfg.prio}")
    A(f"s_and_b32 s{S_QB}, s{S_W}, 1"); A(f"s_lshr_b32 s{S_KH}, s{S_W}, 1")
    c = math.log2(math.e) / 16.0
    A(f"s_mov_b32 s{S_C}, {struct.unpack('<I', struct.pack('<f', c))[0]:#x}")
    A(f"s_lshl_b32 s{S_YB}, s{S_B}, 1"); A(f"s_add_u32 s{S_YB}, s{S_YB}, s{S_QH}"); A(f"s_lshl_b32 s{S_YB}, s{S_YB}, 1"); A(f"s_add_u32 s{S_YB}, s{S_YB}, s{S_QB}")
    A(f"s_mul_i32 s{S_YB}, s{S_YB}, 28"); A(f"s_lshl_b32 s6, s{S_KH}, 1"); A(f"s_add_u32 s{S_YB}, s{S_YB}, s6"); A(f"s_lshl_b32 s{S_YB}, s{S_YB}, 4")
    A(f"s_add_u32 s{S_YB}, s{S_YB}, s{S_H}"); A(f"s_lshl_b32 s{S_YB}, s{S_YB}, 10")
    A(f"v_lshlrev_b32 v{VST}, 4, v2")
    A("v_bfe_u32 v12, v2, 2, 2"); A("v_and_b32 v13, 3, v2"); A("v_and_b32 v14, 1, v7")
    A("v_and_b32 v15, 1, v13"); A("v_lshlrev_b32 v15, 4, v15"); A("v_lshrrev_b32 v16, 1, v13"); A("v_lshl_add_u32 v15, v16, 3, v15"); A("v_lshl_add_u32 v15, v14, 5, v15")
    A(f"s_lshl_b32 s6, s{S_KH}, 8"); A(f"s_lshl_b32 s7, s{S_KH}, 14")
    VWQ, VWO, VXA = 20, VT1, 24
    A(f"v_lshl_add_u32 v{VWQ}, v3, 3, v12"); A(f"v_lshl_add_u32 v{VWQ}, v{VWQ}, 9, v15"); A(f"v_lshl_add_u32 v{VWQ}, v12, 6, v{VWQ}"); A(f"v_add_u32 v{VWQ}, s6, v{VWQ}")
    A(f"v_lshl_add_u32 v{VVB}, v3, 2, v12"); A(f"v_lshlrev_b32 v{VVB}, 9, v{VVB}"); A(f"v_lshl_add_u32 v{VVB}, v12, 6, v{VVB}"); A(f"v_lshl_add_u32 v{VVB}, v14, 5, v{VVB}")
    A(f"v_lshl_add_u32 v{VVB}, v13, 3, v{VVB}"); A(f"v_add_u32 v{VVB}, s7, v{VVB}")
    A(f"v_and_b32 v{VKB}, 15, v2"); A(f"v_xor_b32 v{VKB}, v{VKB}, v3"); A(f"v_lshlrev_b32 v{VKB}, 4, v{VKB}"); A(f"v_lshl_add_u32 v{VKB}, v4, 9, v{VKB}"); A(f"v_add_u32 v{VKB}, s7, v{VKB}")
    A(f"v_lshl_add_u32 v{VWO}, v3, 2, v12"); A(f"v_lshl_add_u32 v{VWO}, v{VWO}, 7, v15"); A("v_lshrrev_b32 v17, 1, v12"); A(f"v_lshl_add_u32 v{VWO}, v17, 6, v{VWO}")
    A(f"s_lshl_b32 s6, s{S_KH}, 6"); A(f"v_xor_b32 v{VWO}, s6, v{VWO}")
    A("v_bfe_u32 v17, v2, 1, 3"); A("v_xor_b32 v17, v17, v3"); A("v_lshlrev_b32 v17, 4, v17"); A("v_lshl_add_u32 v17, v4, 7, v17")
    A(f"s_lshl_b32 s6, s{S_QB}, 12"); A(f"s_add_u32 s6, s6, {XBASE}"); A("v_add_u32 v17, s6, v17")
    for d in range(4): A(f"v_xor_b32 v{VXA+d}, {d*32}, v17")
    A("s_waitcnt lgkmcnt(0)")
    mk_srd(A, SRD_WS, 58, 256 << 20)

    def xreg(n):
        return f"v[{128+4*n}:{131+4*n}]" if n < 16 else f"a[{4*(n-16)}:{4*(n-16)+3}]"
    M = []
    for g in range(7):
        for tp in range(4):
            for d in range(4): M.append(dict(ph="Q", g=g, tp=tp, d=d, item=("WQ", g)))
    def qk(j):
        for s8 in range(8):
            for hi in range(2): M.append(dict(ph="QK", j=j, s8=s8, hi=hi, item=("K", j)))
    def pv(j):
        for t in range(2):
            for db in range(8): M.append(dict(ph="PV", j=j, t=t, db=db, item=("V", j)))
    for t in ATT: (qk if t[0] == "K" else pv)(t[1])
    for c_ in range(7):
        for tp in range(16): M.append(dict(ph="O", c=c_, tp=tp, item=("WO", c_)))
    N = len(M); assert N == 736
    start = {}
    for n, m in enumerate(M): start.setdefault(m["item"], n)
    LA, BO = cfg.LA, cfg.BO
    fill = {n: [] for n in range(-1, N)}
    pre = {n: [] for n in range(-1, N)}
    hard = {start[("K", 0)], start[("WO", 0)], 0}
    def read_gap(n):
        s = start[M[n]["item"]]
        lo = s - 1 if s in hard else s - 1 - BO + 1 - 1
        return max(n - LA, lo)
    def bar_ops(): return [Op("s_waitcnt lgkmcnt(0)", kind="drain"), Op("s_barrier")]
    for t in ITEMS:
        if t in start and start[t] not in hard:
            pre[start[t] - 1 - BO] = bar_ops() + pre[start[t] - 1 - BO]
    def Sreg(j): return S0 if j % 2 == 0 else S1
    def spread(ops, a, b):
        k = b - a
        for i, o in enumerate(ops): fill[a + (i * k) // len(ops)].append(o)
    def softmax_ops(j):
        s = Sreg(j); seq = []
        for r in range(16 + 3):
            if r < 16: seq.append(Op(f"v_fma_f32 v{s+r}, v{s+r}, s{S_C}, -v{VM}"))
            if 0 <= r - 1 < 16: seq.append(Op(f"v_exp_f32 v{s+r-1}, v{s+r-1}"))
            if 0 <= r - 3 < 16:
                q = r - 3
                seq.append(Op(f"v_add_f32 v{VL}, v{VL}, v{s+q}"))
                if q % 2 == 1: seq.append(Op(f"v_cvt_pk_bf16_f32 v{s + q//2}, v{s+q-1}, v{s+q}", kind="cvt%d" % (q // 2)))
        return seq
    def max_ops(j):
        s = Sreg(j)
        seq = [Op(f"v_max3_f32 v{VMX}, v{s}, v{s+1}, v{s+2}"), Op(f"v_max3_f32 v{VT0}, v{s+3}, v{s+4}, v{s+5}")]
        seq += [Op(f"v_max3_f32 v{VMX}, v{VMX}, v{s+6}, v{s+7}"), Op(f"v_max3_f32 v{VT0}, v{VT0}, v{s+8}, v{s+9}")]
        seq += [Op(f"v_max3_f32 v{VMX}, v{VMX}, v{s+10}, v{s+11}"), Op(f"v_max3_f32 v{VT0}, v{VT0}, v{s+12}, v{s+13}")]
        seq += [Op(f"v_max3_f32 v{VMX}, v{VMX}, v{s+14}, v{s+15}"), Op(f"v_max_f32 v{VMX}, v{VMX}, v{VT0}")]
        return seq
    p0 = [Op("s_barrier")]
    for n in range(28):
        g, tp = n // 4, n % 4
        p0.append(Op(f"ds_read_b128 {xreg(n)}, v{VXA+tp} offset:{g*8192}", kind="lds", prod=("X", n)))
    pre[-1] = p0
    e = start[("K", 0)] - 1
    qx = [Op(f"s_lshl_b32 s6, s{S_QB}, 14"), Op(f"s_add_u32 s6, s6, {slot(('QX',))}"), Op(f"v_add_u32 v{VA}, s6, v{VST}"),
          Op(f"s_lshl_b32 s7, s{S_KH}, 13"), Op(f"v_add_u32 v{VA+1}, s7, v{VA}"), Op("s_nop 7")]
    for n in range(32):
        qx.append(Op(f"v_cvt_pk_bf16_f32 v{OA+n}, v{OA+2*n}, v{OA+2*n+1}"))
        if n % 4 == 3: qx.append(Op(f"ds_write_b128 v{VA+1}, v[{OA+n-3}:{OA+n}] offset:{(n//4)*1024}", kind="lds", prod=("w",)))
    qx += bar_ops()
    for s in range(16):
        sn = (s // 2) + 8 * (s % 2)
        qx.append(Op(f"ds_read_b128 a[{QF+4*sn}:{QF+4*sn+3}], v{VA} offset:{sn*1024}", kind="lds", prod=("Q", sn)))
    pre[e] = qx
    e0 = start[("K", 0)] + 15
    im = [Op("s_nop 15")] + max_ops(0) + [Op(f"v_mov_b32 v{VT0}, v{VMX}"), Op("s_nop 1"), Op(f"v_permlane32_swap_b32 v{VT0}, v{VMX}"), Op("s_nop 1"),
          Op(f"v_max_f32 v{VMX}, v{VMX}, v{VT0}"), Op(f"v_mul_f32 v{VM}, s{S_C}, v{VMX}"), Op(f"v_mov_b32 v{VL}, 0")]
    fill[e0] += im
    stubs = []
    for j in range(16):
        pvs = start[("V", j)]
        sm = softmax_ops(j)
        if j < 15:
            qs = start[("K", j+1)]
            i3 = max(i for i, o in enumerate(sm) if o.kind == "cvt3") + 1
            cut = 44
            assert cut >= i3
            spread(sm[:cut], qs, qs + 16)
            spread(sm[cut:], pvs, pvs + 6)
            mo = max_ops(j+1) + [Op(f"v_fma_f32 v{VT0}, v{VMX}, s{S_C}, -v{VM}"), Op(f"v_cmp_lt_f32 vcc, 0x41000000, v{VT0}")]
            spread(mo, pvs + 7, pvs + 13)
            fill[pvs + 15].append(Op(f"s_cbranch_vccnz L_stub_{j}")); fill[pvs + 15].append(Op(f"L_back_{j}:"))
            stubs.append(j)
        else:
            fill[pvs - 1] += sm + [Op("s_nop 1")]
    e = start[("WO", 0)] - 1
    oa, ob, oc = slot(("OXa",)), slot(("OXb",)), slot(("OXc",))
    T = S0
    ox = [Op(f"v_mov_b32 v{VT0}, v{VL}"), Op(f"s_cmp_eq_u32 s{S_QB}, 0"), Op(f"s_cselect_b32 s6, {oa}, {ob}"), Op(f"v_permlane32_swap_b32 v{VT0}, v{VL}"),
          Op(f"s_lshl_b32 s7, s{S_KH}, 14"), Op(f"s_add_u32 s{S_T}, s6, s7"), Op("s_xor_b32 s7, s7, 0x4000"), Op("s_add_u32 s6, s6, s7"),
          Op(f"v_add_f32 v{VM+1}, v{VL}, v{VT0}"),
          Op(f"v_add_u32 v{VA}, s{S_T}, v{VST}"),
          Op(f"v_add_u32 v{VA+1}, s6, v{VST}"),
          Op(f"s_lshl_b32 s6, s{S_QB}, 14"), Op(f"s_add_u32 s6, s6, {oc}"), Op(f"v_add_u32 v{VA+2}, s6, v{VST}"),
          Op(f"s_lshl_b32 s7, s{S_KH}, 13"), Op(f"v_add_u32 v{VA+3}, s7, v{VA+2}"),
          Op(f"v_xor_b32 v{VMX}, 0x2000, v{VA+3}"),
          Op(f"ds_write_b64 v{VMX}, v[{VM}:{VM+1}]", kind="lds", prod=("w",))]
    assert VL == VM + 1
    for i in range(16):
        r = OA + 64 + 4*i
        ox.append(Op(f"ds_write_b128 v{VA}, v[{r}:{r+3}] offset:{i*1024}", kind="lds", prod=("w",)))
    ox += bar_ops()
    ox.append(Op(f"ds_read_b64 v[{T}:{T+1}], v{VA+3}", kind="lds", prod=("ml",)))
    for i in range(12):
        r = OA + 64 + 4*i
        ox.append(Op(f"ds_read_b128 v[{r}:{r+3}], v{VA+1} offset:{i*1024}", kind="lds", prod=("o", i)))
    ox += [Op(f"v_max_f32 v{T+2}, v{T}, v{VM}", kind="use", cons=[("ml",)]), Op(f"v_sub_f32 v{T+3}, v{VM}, v{T+2}"), Op(f"v_sub_f32 v{T+4}, v{T}, v{T+2}"),
           Op(f"v_exp_f32 v{T+3}, v{T+3}"), Op(f"v_exp_f32 v{T+4}, v{T+4}"), Op("s_nop 0"),
           Op(f"v_mul_f32 v{T+5}, v{VL}, v{T+3}"), Op(f"v_fmac_f32 v{T+5}, v{T+1}, v{T+4}"), Op(f"v_rcp_f32 v{T+5}, v{T+5}"), Op("s_nop 0"),
           Op(f"v_mul_f32 v{T+3}, v{T+3}, v{T+5}"), Op(f"v_mul_f32 v{T+4}, v{T+4}, v{T+5}")]
    for i in range(16):
        if i < 4:
            r = OA + 64 + 4*(12+i)
        for k in range(4):
            r0 = OA + 4*i + k
            ox.append(Op(f"v_mul_f32 v{r0}, v{r0}, v{T+3}"))
        for k in range(4):
            r0 = OA + 4*i + k
            ox.append(Op(f"v_fmac_f32 v{r0}, v{r0+64}, v{T+4}", kind="use", cons=[("o", i)]))
        if i < 4:
            ox.append(Op(f"ds_read_b128 v[{r}:{r+3}], v{VA+1} offset:{(12+i)*1024}", kind="lds", prod=("o", 12+i)))
        ox.append(Op(f"v_cvt_pk_bf16_f32 v{OA+2*i}, v{OA+4*i}, v{OA+4*i+1}")); ox.append(Op(f"v_cvt_pk_bf16_f32 v{OA+2*i+1}, v{OA+4*i+2}, v{OA+4*i+3}"))
        if i % 2 == 1: ox.append(Op(f"ds_write_b128 v{VA+3}, v[{OA+2*i-2}:{OA+2*i+1}] offset:{(i//2)*1024}", kind="lds", prod=("w",)))
    ox += bar_ops()
    for s in range(16):
        ox.append(Op(f"ds_read_b128 a[{QF+4*s}:{QF+4*s+3}], v{VA+2} offset:{s*1024}", kind="lds", prod=("Of", s)))
    ox.append(Op(f"s_mov_b32 s{S_G}, s{S_ROT}"))
    pre[e] = [Op("s_nop 7")] + ox
    def Y(c_): return OA + 64 + 16 * (c_ & 1)
    def ystore(c_):
        seq = [Op(f"s_lshl_b32 s{S_T2}, s{S_G}, 16"), Op(f"s_add_u32 s{S_T2}, s{S_T2}, s{S_YB}")]
        for t in range(2):
            d = S0 + 4 * t + 8 * (c_ & 1); y = Y(c_) + 8 * t
            for i in range(4): seq.append(Op(f"v_cvt_pk_bf16_f32 v{d+i}, v{y+2*i}, v{y+2*i+1}"))
            seq.append(Op(f"buffer_store_dwordx4 v[{d}:{d+3}], v{VST}, {srd(SRD_WS)}, s{S_T2} offen{fl(cfg.st_fl)}"))
            if t == 0: seq.append(Op(f"s_add_u32 s{S_T2}, s{S_T2}, 16384"))
        seq += [Op(f"s_add_u32 s{S_G}, s{S_G}, 1"), Op(f"s_cmp_eq_u32 s{S_G}, 7"), Op(f"s_cselect_b32 s{S_G}, 0, s{S_G}")]
        return seq
    for c_ in range(7):
        if c_ < 6:
            ys = ystore(c_); st = start[("WO", c_+1)]
            spread(ys[:-3], st + 5, st + 12); fill[st + 12] += ys[-3:]
        else: fill[N-1] += [Op("s_nop 15")] + ystore(c_)

    def reads_for(n):
        m = M[n]; ops = []; fr = FR + 4 * (n % NF); sb = slot(m["item"]); first = (n == start[m["item"]])
        if m["ph"] == "Q":
            d = m["d"]
            if m["tp"] == 0:
                ops.append(Op(f"v_add_u32 v{VA}, {sb}, v{VWQ}") if d == 0 else Op(f"v_xor_b32 v{VA+d}, {d*64}, v{VA}"))
            for hh in range(2):
                ops.append(Op(f"ds_read_b64_tr_b16 v[{fr+2*hh}:{fr+2*hh+1}], v{VA+d} offset:{(16*m['tp'] + 4*hh)*512}", kind="lds", prod=("F", n)))
        elif m["ph"] == "QK":
            s8, hi = m["s8"], m["hi"]
            r = VA if s8 == 0 else VA + 1 + (s8 % 2)
            if hi == 0:
                ops.append(Op(f"v_add_u32 v{VA}, {sb}, v{VKB}") if s8 == 0 else Op(f"v_xor_b32 v{r}, {s8*32}, v{VA}"))
            ops.append(Op(f"ds_read_b128 v[{fr}:{fr+3}], v{r} offset:{hi*256}", kind="lds", prod=("F", n)))
        elif m["ph"] == "PV":
            t, db = m["t"], m["db"]
            if t == 0 and db < 4:
                ops.append(Op(f"v_add_u32 v{VA}, {sb}, v{VVB}") if db == 0 else Op(f"v_xor_b32 v{VA+db}, {db*64}, v{VA}"))
            for hh in range(2):
                ops.append(Op(f"ds_read_b64_tr_b16 v[{fr+2*hh}:{fr+2*hh+1}], v{VA+(db&3)} offset:{(16*t + 8*hh)*512 + (db>>2)*256}", kind="lds", prod=("F", n)))
        else:
            if m["tp"] == 0: ops.append(Op(f"v_add_u32 v{VA}, {sb}, v{VWO}"))
            for hh in range(2):
                ops.append(Op(f"ds_read_b64_tr_b16 v[{fr+2*hh}:{fr+2*hh+1}], v{VA} offset:{(16*m['tp'] + 8*hh)*128}", kind="lds", prod=("F", n)))
        return ops
    def mfma(n):
        m = M[n]; fr = FR + 4 * (n % NF); a = f"v[{fr}:{fr+3}]"; cons = [("F", n)]
        if m["ph"] == "Q":
            d = f"v[{OA+16*m['d']}:{OA+16*m['d']+15}]"; xn = 4*m["g"] + m["tp"]; cons.append(("X", xn))
            t = f"{d}, {a}, {xreg(xn)}, {'0' if xn == 0 else d}"
        elif m["ph"] == "QK":
            s = Sreg(m["j"]); d = f"v[{s}:{s+15}]"; sn = m["s8"] + 8*m["hi"]; q = QF + 4*sn; cons.append(("Q", sn))
            t = f"{d}, {a}, a[{q}:{q+3}], {'0' if sn == 0 else d}"
        elif m["ph"] == "PV":
            d = f"v[{OA+16*m['db']}:{OA+16*m['db']+15}]"; p = Sreg(m["j"]) + 4*m["t"]
            t = f"{d}, {a}, v[{p}:{p+3}], {'0' if (m['j'] == 0 and m['t'] == 0) else d}"
        else:
            y = Y(m["c"]); d = f"v[{y}:{y+15}]"; o = QF + 4*m["tp"]; cons.append(("Of", m["tp"]))
            t = f"{d}, {a}, a[{o}:{o+3}], {'0' if m['tp'] == 0 else d}"
        return Op("v_mfma_f32_32x32x16_bf16 " + t, kind="use", cons=cons)
    rd = {}
    for n in range(N): rd.setdefault(read_gap(n), []).append(n)
    a0 = start[("K", 0)]
    stamp_at = [-1, 0, 64, 110, 111, a0+15, a0+16+128, a0+16+256, a0+16+384, start[("WO", 0)]-2, start[("WO", 0)]-1, start[("WO", 3)], N-2, N-1]
    ops = []
    for g in range(-1, N):
        if g >= 0: ops.append(mfma(g))
        ops += pre[g]
        for n in rd.get(g, []): ops += reads_for(n)
        ops += fill[g]
        if cfg.stamps and g in stamp_at:
            k = 66 + 2 * stamp_at.index(g)
            ops.append(Op(f"{'s_memrealtime' if cfg.stamps == 1 else 's_memtime'} s[{k}:{k+1}]")); ops.append(Op("s_waitcnt lgkmcnt(0)", kind="drain"))
    q = []; nbar = 0
    for o in ops:
        if o.kind == "lds":
            if len(q) >= 15:
                A("s_waitcnt lgkmcnt(10)"); q = q[-10:]
            q.append(o.prod)
        elif o.kind == "use":
            last = max((i for i, t in enumerate(q) if t in o.cons), default=-1)
            if last >= 0:
                k = len(q) - 1 - last
                A(f"s_waitcnt lgkmcnt({min(k, 15)})"); q = q[last+1:] if k <= 15 else q[-15:]
        elif o.kind == "drain": q = []
        elif o.kind == "drainN4": q = q[-4:]
        if o.text == "s_barrier": nbar += 1
        A(o.text)
    assert nbar == len(BARS), (nbar, len(BARS))
    stamp_tail(A, cfg, 4)
    A("s_endpgm")
    for j in stubs:
        A(f"L_stub_{j}:"); A(f"s_call_b64 s[{S_RET}:{S_RET+1}], L_rescale"); A(f"s_branch L_back_{j}")
    A("L_rescale:")
    A("s_nop 15")
    A(f"v_mov_b32 v{VT0}, v{VMX}"); A("s_nop 1"); A(f"v_permlane32_swap_b32 v{VT0}, v{VMX}"); A("s_nop 1")
    A(f"v_max_f32 v{VMX}, v{VMX}, v{VT0}"); A(f"v_mul_f32 v{VMX}, s{S_C}, v{VMX}"); A(f"v_max_f32 v{VMX}, v{VMX}, v{VM}")
    A(f"v_sub_f32 v{VT0}, v{VM}, v{VMX}"); A(f"v_exp_f32 v{VT0}, v{VT0}"); A(f"v_mov_b32 v{VM}, v{VMX}")
    A(f"v_mul_f32 v{VL}, v{VL}, v{VT0}")
    for r in range(128): A(f"v_mul_f32 v{OA+r}, v{OA+r}, v{VT0}")
    A("s_nop 1"); A(f"s_setpc_b64 s[{S_RET}:{S_RET+1}]")
    gen_loader(A, cfg)
    return L

def gen_reduce(cfg):
    L = []; A = L.append
    A(f".globl {RNAME}"); A(".p2align 8"); A(f".type {RNAME},@function"); A(f"{RNAME}:")
    A("s_cmp_lt_u32 s2, 224"); A("s_cbranch_scc1 L_red_go"); A("s_endpgm"); A("L_red_go:")
    if cfg.stamps: A("s_memrealtime s[64:65]")
    A("s_load_dwordx2 s[4:5], s[0:1], 40"); A("s_load_dwordx2 s[6:7], s[0:1], 56")
    A("v_lshrrev_b32 v1, 6, v0"); A("v_and_b32 v2, 63, v0"); A("v_readfirstlane_b32 s3, v1")
    A("s_lshl_b32 s17, s2, 2"); A("s_add_u32 s17, s17, s3")
    A("s_mul_i32 s18, s17, 2341"); A("s_lshr_b32 s18, s18, 16")
    A("s_mul_i32 s19, s18, 28"); A("s_sub_u32 s19, s17, s19")
    A("s_lshl_b32 s20, s17, 14")
    A(f"s_mul_i32 s23, s18, {32*896}"); A("s_lshl_b32 s24, s19, 5"); A("s_add_u32 s23, s23, s24")
    A("v_lshlrev_b32 v3, 4, v2")
    A("v_and_b32 v5, 31, v2"); A("v_mul_u32_u24 v5, 896, v5"); A("v_lshrrev_b32 v6, 5, v2"); A("v_lshl_add_u32 v5, v6, 4, v5")
    A("s_waitcnt lgkmcnt(0)")
    mk_srd(A, 8, 4, 8*128*448*2); mk_srd(A, 12, 6, 256 << 20)
    D = 16
    for p in range(16):
        A(f"buffer_load_dwordx4 v[{D+4*p}:{D+4*p+3}], v3, s[12:15], s20 offen offset:{(p%4)*1024}")
        if p % 4 == 3 and p < 15: A("s_add_u32 s20, s20, 4096")
    for p in range(16):
        A(f"s_waitcnt vmcnt({15-p})")
        for i in range(4):
            if p == 0:
                A(f"v_lshlrev_b32 v{8+2*i}, 16, v{D+i}"); A(f"v_and_b32 v{9+2*i}, 0xffff0000, v{D+i}")
            else:
                A(f"v_lshlrev_b32 v6, 16, v{D+4*p+i}"); A(f"v_and_b32 v7, 0xffff0000, v{D+4*p+i}")
                A(f"v_add_f32 v{8+2*i}, v{8+2*i}, v6"); A(f"v_add_f32 v{9+2*i}, v{9+2*i}, v7")
    for i in range(4): A(f"v_cvt_pk_bf16_f32 v{16+i}, v{8+2*i}, v{9+2*i}")
    A("buffer_store_dwordx4 v[16:19], v5, s[8:11], s23 offen")
    if cfg.stamps:
        A("s_waitcnt vmcnt(0)"); A("s_memrealtime s[66:67]"); A("s_waitcnt lgkmcnt(0)")
        A("s_lshl_b32 s30, s17, 4"); A(f"s_add_u32 s30, s30, {65<<20}")
        for i in range(4): A(f"v_mov_b32 v{32+i}, s{64+i}")
        A("v_mov_b32 v1, 0"); A("s_mov_b64 exec, 1")
        A("buffer_store_dwordx4 v[32:35], v1, s[12:15], s30 offen")
    A("s_endpgm")
    return L

def kd(name, vgpr, accum, sgpr=102):
    return f""".amdhsa_kernel {name}
  .amdhsa_next_free_vgpr {vgpr}
  .amdhsa_next_free_sgpr {sgpr}
  .amdhsa_accum_offset {accum}
  .amdhsa_group_segment_fixed_size 0
  .amdhsa_kernarg_size 64
  .amdhsa_user_sgpr_count 2
  .amdhsa_user_sgpr_kernarg_segment_ptr 1
  .amdhsa_system_sgpr_workgroup_id_x 1
.end_amdhsa_kernel"""

def gen(cfg):
    out = [HEADER.rstrip()]
    out.append(f"; @launch kernel={KNAME} grid=(256,1,1) block=(512,1,1) lds=163840")
    out.append(f"; @launch kernel={RNAME} grid=(224,1,1) block=(256,1,1) lds=0")
    out.append('.amdgcn_target "amdgcn-amd-amdhsa--gfx950"'); out.append(".text")
    out += gen_main(cfg); out += gen_reduce(cfg)
    out.append('.section .rodata,"a"'); out.append(".p2align 6"); out.append(kd(KNAME, 256, 192))
    out.append(".p2align 6"); out.append(kd(RNAME, 80, 80))
    return "\n".join(out) + "\n"

if __name__ == "__main__":
    cfg = Cfg()
    for a in sys.argv[2:]:
        k, v = a.split("=")
        setattr(cfg, k, int(v) if v.lstrip("-").isdigit() else v)
    open(sys.argv[1], "w").write(gen(cfg))
```

```python
import math, sys, struct

KNAME = "standalone__gqa_block_cached__near_ridge_kernel"
HEADER = open("standalone__gqa_block_cached__near_ridge.s.ref").read().split("; Override launch")[0]

class Cfg:
    kv_fl = ""
    w_fl = ""
    LA = 4
    FA = 3
    shift = 8
    rot = 1
    stamps = 0
    nodma = 0
    prio = 0
    lsleep = 1
    cut = 46
    maxper = 2
    fake16 = 0
    room = 7
    force = 0
    first = 2
    token = 1
    lprio = 3
    csleep = 0
    tsleep = 0
    tokat = 15

S0, S1 = 0, 16
FR, NF = 32, 5
VKB, VVB, VA, VF, VLA, VDA, VM, VL, VMX, VT0, VWO, VST = 52, 53, 54, 55, 56, 57, 58, 59, 60, 61, 62, 63
OA = 64
QF = 0
LM, DM, MLX, TOK = 0, 2048, 4096, 2032
SLOT0, SLOTSZ, NSLOT = 7168, 17408, 9
SRD_X, SRD_K, SRD_V, SRD_WQ, SRD_WO, SRD_WS, SRD_OUT = 8, 12, 16, 20, 24, 28, 96
S_W, S_B, S_H, S_QH, S_J = 3, 32, 33, 34, 35
S_QB, S_KH, S_C, S_YB, S_T, S_T2, S_ROT = 36, 37, 38, 39, 42, 43, 44
S_RET = 40
S_G, S_FB, S_BUD = 62, 63, 41
S_RET = 8
FLAG_BASE = 16 << 20
def srd(n): return f"s[{n}:{n+3}]"
def fl(x): return (" " + x) if x else ""

class Op:
    def __init__(self, text, kind="x", prod=None, cons=None):
        self.text, self.kind, self.prod, self.cons = text, kind, prod, cons

ITEMS = []
for i in range(4):
    ITEMS.append(("X", i))
    ITEMS += [("WQ", t) for t in range(4*i, min(4*i+4, 14))]
ITEMS += [("QX", 0), ("QX", 1)]
ATT = [("K", 0)]
for j in range(16):
    if j < 15: ATT.append(("K", j+1))
    ATT.append(("V", j))
for t in ATT: ITEMS += [t + (0,), t + (1,)]
ITEMS += [("OX", i) for i in range(4)]
ITEMS += [("WO", c, hh) for c in range(7) for hh in range(2)]
P = {t: i for i, t in enumerate(ITEMS)}
CB_Q, CB_O1, CB_O2 = 110, 111, 112
TYPES = {"X": 0, "WQ": 1, "K": 2, "V": 3, "WO": 4, "QX": 5, "OX": 5}
NSTATIC = 2

SCHED = {}
def make_table(j, cfg):
    relbar, chkbar = SCHED["rel"], SCHED["chk"]
    key = {}
    for p, t in enumerate(ITEMS):
        k = float(p)
        if t[0] == "X" and t[1] > 0: k -= 2.5
        if t[0] in ("K", "V") and (ATT.index(t[:2]) & 3) == j: k -= cfg.shift + 0.5 - 0.01 * t[2]
        key[t] = max(k, NSTATIC - 0.5 + 0.001 * p) if p >= NSTATIC else k
    order = sorted(ITEMS, key=lambda t: key[t])
    assert order[:NSTATIC] == ITEMS[:NSTATIC]
    occ = [None] * NSLOT
    ent = []
    for t in order:
        free = [s for s in range(NSLOT) if occ[s] is None]
        if free: s = free[0]; early = 0
        else:
            s = min(range(NSLOT), key=lambda s: relbar[P[occ[s]]]); early = relbar[P[occ[s]]]
        occ[s] = t
        idx = t[1]; half = t[2] if len(t) > 2 else 0
        ent.append([TYPES[t[0]], idx, half, s, early, P[t], chkbar[P[t]]])
    for a in range(1, len(ent)): ent[a][4] = max(ent[a][4], ent[a-1][4])
    late = 10**9
    for a in range(len(ent) - 1, -1, -1):
        assert ent[a][4] <= ent[a][6] - 1 or ent[a][0] == 5 and ent[a][4] <= ent[a][6], ("deadlock", j, ent[a], ITEMS[ent[a][5]])
        late = min(late, ent[a][6]); ent[a][6] = max(late - cfg.force, 0)
    return ent
def pack(e):
    ty, idx, half, s, early, p, late = e
    return ty | (idx << 3) | (half << 7) | (s << 8) | (p << 12), early | (late << 8)

def mk_srd(A, n, lo, size):
    A(f"s_mov_b32 s{n}, s{lo}"); A(f"s_and_b32 s{n+1}, s{lo+1}, 0xffff"); A(f"s_mov_b32 s{n+2}, {size:#x}"); A(f"s_mov_b32 s{n+3}, 0x20000")

def stamp_tail(A, cfg, lab):
    if not cfg.stamps: return
    A("s_waitcnt vmcnt(0)"); A("s_memrealtime s[94:95]" if cfg.stamps == 1 else "s_memtime s[94:95]"); A("s_waitcnt lgkmcnt(0)")
    A(f"s_lshl_b32 s{S_T}, s2, 3"); A(f"s_add_u32 s{S_T}, s{S_T}, s{S_W}"); A(f"s_lshl_b32 s{S_T}, s{S_T}, 7"); A(f"s_add_u32 s{S_T}, s{S_T}, {64<<20}")
    A("s_mov_b64 exec, -1")
    if cfg.stamps == 2: A(f"s_sub_u32 s92, 0x20000, s{S_BUD}"); A("s_mov_b32 s93, 0")
    for i in range(32): A(f"v_mov_b32 v{64+i}, s{64+i}")
    A("v_mov_b32 v1, 0"); A("s_mov_b64 exec, 1")
    for i in range(8): A(f"buffer_store_dwordx4 v[{64+4*i}:{67+4*i}], v1, {srd(SRD_WS)}, s{S_T} offen offset:{16*i}")

def tag_loop(A, lab):
    A(f"L_tag_{lab}:")
    A(f"v_cmp_ne_u32 vcc, 0, v{VMX}"); A(f"s_sub_u32 s{S_BUD}, s{S_BUD}, 1"); A(f"s_cbranch_scc1 L_tagok_{lab}"); A("s_nop 2"); A(f"s_cbranch_vccnz L_tagok_{lab}")
    A("v_mov_b32 v1, 0"); A(f"global_load_dword v{VMX}, v1, s[0:1] sc1"); A("s_waitcnt vmcnt(0)"); A(f"s_branch L_tag_{lab}")
    A(f"L_tagok_{lab}:")

def gen_reduce(A, cfg):
    A("L_reduce:")
    A("v_mbcnt_lo_u32_b32 v2, -1, 0"); A("v_mbcnt_hi_u32_b32 v2, -1, v2")
    tag_loop(A, "r")
    A(f"v_mov_b32 v4, v{VMX}")
    A(f"s_lshr_b32 s4, s{S_H}, 3"); A(f"s_bfe_u32 s5, s{S_H}, 0x10002"); A(f"s_bfe_u32 s6, s{S_H}, 0x10001"); A(f"s_and_b32 s7, s{S_H}, 1")
    A("s_lshl_b32 s45, s5, 1"); A("s_add_u32 s45, s45, s4"); A(f"s_lshl_b32 s46, s{S_G}, 2"); A("s_add_u32 s45, s45, s46"); A("s_lshl_b32 s45, s45, 7"); A(f"s_add_u32 s45, s45, s{S_FB}")
    A(f"s_add_u32 s46, s{S_G}, s{S_ROT}"); A("s_sub_u32 s47, s46, 7"); A("s_cmp_ge_u32 s46, 7"); A("s_cselect_b32 s46, s47, s46")
    A(f"s_lshl_b32 s47, s{S_B}, 1"); A(f"s_add_u32 s47, s47, s{S_QH}"); A("s_lshl_b32 s47, s47, 1"); A("s_add_u32 s47, s47, s4")
    A("s_lshl_b32 s46, s46, 1"); A("s_add_u32 s46, s46, s5"); A("s_lshl_b32 s46, s46, 1"); A("s_add_u32 s46, s46, s6")
    A("s_mul_i32 s48, s47, 28"); A("s_add_u32 s48, s48, s46"); A("s_lshl_b32 s48, s48, 14"); A("s_lshl_b32 s49, s7, 9"); A("s_add_u32 s48, s48, s49")
    A(f"s_mul_i32 s50, s47, {32*896}"); A("s_lshl_b32 s46, s46, 5"); A("s_add_u32 s50, s50, s46"); A("s_lshl_b32 s49, s7, 4"); A("s_add_u32 s50, s50, s49")
    A("v_and_b32 v5, 15, v2"); A("v_lshlrev_b32 v5, 2, v5")
    A("v_and_b32 v6, 31, v2"); A("v_lshrrev_b32 v7, 5, v2"); A("v_lshlrev_b32 v8, 4, v6"); A("v_lshl_add_u32 v8, v7, 13, v8")
    A("v_mul_u32_u24 v9, 896, v6")
    A("s_add_u32 s49, s48, 4096")
    A("s_mov_b32 s51, 0")
    A("s_waitcnt lgkmcnt(0)")
    A("L_rpoll:")
    A(f"buffer_load_dword v10, v5, {srd(SRD_WS)}, s45 offen sc1")
    A("s_add_u32 s51, s51, 1")
    A("s_waitcnt vmcnt(0)")
    A("v_cmp_ne_u32 vcc, v10, v4")
    A("s_cmp_gt_u32 s51, 0x8000"); A("s_cbranch_scc1 L_rgo")
    A("s_cbranch_vccz L_rgo")
    A("s_sleep 1"); A("s_branch L_rpoll")
    A("L_rgo:")
    if cfg.stamps == 1: A("s_memrealtime s[92:93]")
    for p in range(8):
        A(f"buffer_load_dwordx4 v[{16+4*p}:{19+4*p}], v8, {srd(SRD_WS)}, s{48 + p//4} offen offset:{(p%4)*1024} sc1")
    for p in range(8):
        A(f"s_waitcnt vmcnt({7-p})")
        for i in range(4):
            if p == 0:
                A(f"v_lshlrev_b32 v{48+2*i}, 16, v{16+i}"); A(f"v_and_b32 v{49+2*i}, 0xffff0000, v{16+i}")
            else:
                A(f"v_lshlrev_b32 v10, 16, v{16+4*p+i}"); A(f"v_and_b32 v11, 0xffff0000, v{16+4*p+i}")
                A(f"v_add_f32 v{48+2*i}, v{48+2*i}, v10"); A(f"v_add_f32 v{49+2*i}, v{49+2*i}, v11")
    for i in range(8): A(f"v_mov_b32 v{56+i}, v{48+i}")
    A("s_nop 1")
    for i in range(8): A(f"v_permlane32_swap_b32 v{48+i}, v{56+i}")
    A("s_nop 1")
    for i in range(8): A(f"v_add_f32 v{48+i}, v{48+i}, v{56+i}")
    for i in range(4): A(f"v_cvt_pk_bf16_f32 v{16+i}, v{48+2*i}, v{49+2*i}")
    A("s_mov_b32 exec_hi, 0")
    A(f"buffer_store_dwordx4 v[16:19], v9, {srd(SRD_OUT)}, s50 offen")
    A("L_fin:")
    stamp_tail(A, cfg, "r")
    A("s_endpgm")

def gen_loader(A, cfg):
    LW, XB, KVB, WQB, WOB, E, I, SL, KB, E2, KM, VMo = 45, 46, 47, 60, 61, 68, 69, 72, 70, 71, 66, 67
    VOX, VOWQ, VOK, VOV, VOWO, VTAB, VFL = 32, 36, 40, 44, 48, 22, 26
    IDXs, HALF = 76, 77
    NB = SCHED["nbar"]
    A("L_loader:")
    if cfg.lprio: A(f"s_setprio {cfg.lprio}")
    A(f"s_sub_u32 s{LW}, s{S_W}, 4")
    A("s_getpc_b64 s[74:75]"); A("L_pc:"); A("s_add_u32 s74, s74, L_table-L_pc"); A("s_addc_u32 s75, s75, 0")
    A(f"s_lshl_b32 s6, s{S_J}, 9"); A("v_lshlrev_b32 v9, 4, v4"); A("v_add_u32 v9, s6, v9")
    A("v_lshrrev_b32 v5, 3, v2"); A("v_and_b32 v6, 7, v2"); A("v_lshlrev_b32 v6, 4, v6")
    A(f"v_mul_u32_u24 v{VOX}, {8*896}, v5"); A(f"v_add_u32 v{VOX}, v{VOX}, v6")
    A(f"v_lshlrev_b32 v8, 4, v4"); A(f"v_lshl_add_u32 v{VOWQ}, v3, 15, v8")
    A(f"s_lshl_b32 s{XB}, s{S_B}, 1"); A(f"s_add_u32 s{XB}, s{XB}, s{S_QH}"); A(f"s_lshl_b32 s{XB}, s{XB}, 4"); A(f"s_and_b32 s6, s{LW}, 1"); A(f"s_add_u32 s{XB}, s{XB}, s6"); A(f"s_mul_i32 s{XB}, s{XB}, {4*896}")
    A(f"s_lshl_b32 s{WQB}, s{LW}, 16"); A(f"s_lshl_b32 s6, s{S_H}, 9"); A(f"s_add_u32 s{WQB}, s{WQB}, s6")
    A(f"s_mul_i32 s{KM}, s{LW}, {4*1040}"); A(f"s_mul_i32 s{VMo}, s{LW}, {4*1088}")
    A(f"s_lshl_b32 s{KVB}, s{S_B}, 3"); A(f"s_add_u32 s{KVB}, s{KVB}, s4"); A(f"s_lshl_b32 s{KVB}, s{KVB}, 19")
    A(f"s_lshl_b32 s6, s{LW}, 11"); A(f"s_add_u32 s81, s{KVB}, s6")
    A(f"s_lshl_b32 s6, s{LW}, 13"); A(f"s_add_u32 s82, s{KVB}, s6"); A(f"s_lshr_b32 s6, s{LW}, 1"); A("s_lshl_b32 s6, s6, 8"); A("s_add_u32 s82, s82, s6")
    A(f"s_lshl_b32 s{WOB}, s{S_H}, 3"); A(f"s_add_u32 s{WOB}, s{WOB}, s{LW}"); A(f"s_mul_i32 s{WOB}, s{WOB}, {32*896}")
    A("v_and_b32 v8, 15, v2"); A("v_lshlrev_b32 v8, 4, v8")
    A(f"v_lshl_add_u32 v{VOK}, v7, 13, v8"); A(f"v_lshl_add_u32 v{VOV}, v7, 11, v8")
    A(f"v_mul_u32_u24 v{VOWO}, {4*896}, v5"); A(f"v_add_u32 v{VOWO}, v{VOWO}, v6")
    for vo, ds, st in ((VOX, 896, 1040), (VOWQ, 8192, 1088), (VOK, 512, 1040), (VOV, 512, 1088), (VOWO, 896, 1088)):
        for ii in (3, 2, 1, 0): A(f"v_add_u32 v{vo+ii}, {4096 + ii*(ds-st)}, v{vo}")
    if cfg.stamps == 1: A("s_memrealtime s[68:69]")
    A("s_waitcnt lgkmcnt(0)")
    if cfg.stamps == 1: A("s_memrealtime s[70:71]")
    for n, lo, size in ((SRD_X, 48, 8*128*448*2), (SRD_WQ, 54, 448*4096*2), (SRD_K, 50, 32 << 20), (SRD_V, 52, 32 << 20), (SRD_WO, 56, 4096*448*2)):
        A(f"s_sub_u32 s{n}, s{lo}, 4096"); A(f"s_subb_u32 s{n+1}, s{lo+1}, 0"); A(f"s_and_b32 s{n+1}, s{n+1}, 0xffff"); A(f"s_mov_b32 s{n+2}, {size+4096:#x}"); A(f"s_mov_b32 s{n+3}, 0x20000")
    mk_srd(A, SRD_WS, 58, 256 << 20); mk_srd(A, SRD_OUT, 100, 8*128*448*2)
    A(f"s_mov_b32 s84, s{S_ROT}")
    def emit(e):
        ty, idx, half, sl = e[0], e[1], e[2], SLOT0 + e[3]*SLOTSZ
        if ty == 5: return 0
        if ty == 0:
            A(f"s_cmp_ge_u32 s{LW}, 2"); A(f"s_cselect_b32 s6, s{84+2*idx+1}, s{84+2*idx}"); A("s_lshl_b32 s6, s6, 7"); A(f"s_add_u32 m0, s{KM}, {sl}"); A(f"s_add_u32 s6, s6, s{XB}")
            st, vo, sr, f = 1040, VOX, SRD_X, cfg.w_fl
        elif ty == 1:
            A(f"s_lshl_b32 s6, s{84+(idx>>1)}, 19"); A(f"s_add_u32 s6, s6, s{WQB}"); A(f"s_add_u32 m0, s{VMo}, {sl}"); A(f"s_add_u32 s6, s6, {(idx&1) << 18}")
            st, vo, sr, f = 1088, VOWQ, SRD_WQ, cfg.w_fl
        elif ty == 2:
            A(f"s_add_u32 m0, s{KM}, {sl}"); A(f"s_add_u32 s6, s81, {idx*32768 + half*256}")
            st, vo, sr, f = 1040, VOK, SRD_K, cfg.kv_fl
        elif ty == 3:
            A(f"s_add_u32 m0, s{VMo}, {sl}"); A(f"s_add_u32 s6, s{82 if half == 0 else 83}, {idx*32768}")
            st, vo, sr, f = 1088, VOV, SRD_V, cfg.kv_fl
        else:
            A(f"s_lshl_b32 s6, s{84+idx}, 7"); A(f"s_add_u32 s6, s6, s{WOB}"); A(f"s_add_u32 m0, s{VMo}, {sl}"); A(f"s_add_u32 s6, s6, {half*128*896}")
            st, vo, sr, f = 1088, VOWO, SRD_WO, cfg.w_fl
        if cfg.nodma and ty in (2, 3, 4): return 0
        for ii in range(4):
            A(f"buffer_load_dwordx4 v{vo+ii}, {srd(sr)}, s6 offen offset:{ii*st}{fl(f)} lds")
        return 4
    for g in range(1, 8):
        A(f"s_add_u32 s{84+g}, s{83+g}, 1"); A(f"s_cmp_eq_u32 s{84+g}, 7"); A(f"s_cselect_b32 s{84+g}, 0, s{84+g}")
    A("s_xor_b32 s83, s82, 0x100")
    A("s_mov_b32 m0, 0"); A("s_mov_b32 exec_hi, 0"); A("global_load_lds_dwordx4 v9, s[74:75]"); A("s_mov_b32 exec_hi, -1")
    for j in range(1, 4):
        A(f"s_cmp_eq_u32 s{S_J}, {j}"); A(f"s_cbranch_scc1 L_ld{j}")
    chk = SCHED["chk"]
    for j in range(4):
        A(f"L_ld{j}:")
        tab = make_table(j, cfg); q = ["tab"]; pos = 0
        for k in range(NB):
            n = 0
            while pos < len(tab) and tab[pos][4] <= k and (n < (cfg.first if k == 0 else cfg.maxper) or tab[pos][6] <= k + 1):
                c = emit(tab[pos]); q += [tab[pos][5]] * c; pos += 1
                if c: n += 1
            need = [p for p in chk if chk[p] == k + 1] + (["tab"] if k == 0 else [])
            for p in need: assert p == "tab" or ITEMS[p][0] in ("QX", "OX") or p in [e[5] for e in tab[:pos]], (j, k, p)
            last = max((i for i, t in enumerate(q) if t in need), default=-1)
            if cfg.stamps == 1 and k == 0: A("s_memrealtime s[72:73]")
            if last >= 0:
                kk = len(q) - 1 - last; assert kk <= 63
                A(f"s_waitcnt vmcnt({kk})"); del q[:last+1]
            if cfg.stamps == 1 and k in (0, 2): A(f"s_memrealtime s[{76+k}:{77+k}]")
            A("s_barrier")
        assert pos == len(tab)
        if j < 3: A("s_branch L_ldone")
    A("L_ldone:")
    A(f"s_mov_b32 s{S_G}, s{LW}")
    A(f"v_mov_b32 v{VMX}, 0")
    A("s_branch L_reduce")

def gen_main(cfg):
    L = []; A = L.append
    A(f".globl {KNAME}"); A(".p2align 8"); A(f".type {KNAME},@function"); A(f"{KNAME}:")
    A("s_cmp_lt_u32 s2, 256"); A("s_cbranch_scc1 L_main_go"); A("s_endpgm"); A("L_main_go:")
    if cfg.stamps: A("s_memrealtime s[64:65]" if cfg.stamps == 1 else "s_memtime s[64:65]")
    A("s_load_dwordx8 s[48:55], s[0:1], 0")
    A("s_load_dwordx2 s[56:57], s[0:1], 32")
    A("s_load_dwordx2 s[58:59], s[0:1], 56")
    A("s_load_dwordx2 s[100:101], s[0:1], 40")
    A("s_load_dwordx2 s[0:1], s[0:1], 48")
    A("v_lshrrev_b32 v1, 6, v0"); A("v_and_b32 v2, 63, v0")
    A(f"v_readfirstlane_b32 s{S_W}, v1")
    A("s_and_b32 s4, s2, 7"); A("s_lshr_b32 s5, s2, 3")
    A(f"s_lshr_b32 s{S_B}, s5, 2"); A(f"s_and_b32 s{S_J}, s5, 3")
    A(f"s_and_b32 s6, s{S_J}, 1"); A(f"s_lshl_b32 s{S_H}, s4, 1"); A(f"s_add_u32 s{S_H}, s{S_H}, s6")
    A(f"s_lshr_b32 s{S_QH}, s{S_J}, 1")
    A(f"s_lshl_b32 s{S_ROT}, s{S_B}, 1"); A(f"s_add_u32 s{S_ROT}, s{S_ROT}, s{S_QH}")
    A(f"s_lshl_b32 s{S_FB}, s{S_ROT}, 12"); A(f"s_add_u32 s{S_FB}, s{S_FB}, {FLAG_BASE}")
    if cfg.rot:
        for _ in range(2):
            A(f"s_sub_u32 s6, s{S_ROT}, 7"); A(f"s_cmp_ge_u32 s{S_ROT}, 7"); A(f"s_cselect_b32 s{S_ROT}, s6, s{S_ROT}")
    else: A(f"s_mov_b32 s{S_ROT}, 0")
    A("v_lshrrev_b32 v3, 5, v2"); A("v_and_b32 v4, 31, v2"); A("v_lshrrev_b32 v7, 4, v2")
    A(f"s_mov_b32 s{S_BUD}, 0x20000")
    A(f"s_cmp_ge_u32 s{S_W}, 4"); A("s_cbranch_scc1 L_loader")
    A("v_mov_b32 v20, 0"); A("s_waitcnt lgkmcnt(0)")
    mk_srd(A, SRD_WS, 58, 256 << 20); mk_srd(A, SRD_OUT, 100, 8*128*448*2)
    A(f"s_add_u32 s6, s2, s{S_W}"); A("s_cmp_lg_u32 s6, 0"); A("s_cbranch_scc1 L_notag")
    A("s_memrealtime s[6:7]"); A("s_waitcnt lgkmcnt(0)"); A("s_or_b32 s6, s6, 1"); A("v_mov_b32 v9, s6")
    A("global_store_dword v20, v9, s[0:1] sc1")
    A("L_notag:")
    if cfg.prio: A(f"s_setprio {cfg.prio}")
    A(f"s_and_b32 s{S_QB}, s{S_W}, 1"); A(f"s_lshr_b32 s{S_KH}, s{S_W}, 1")
    c = math.log2(math.e) / 16.0
    A(f"s_mov_b32 s{S_C}, {struct.unpack('<I', struct.pack('<f', c))[0]:#x}")
    A(f"s_lshl_b32 s{S_YB}, s{S_B}, 1"); A(f"s_add_u32 s{S_YB}, s{S_YB}, s{S_QH}"); A(f"s_lshl_b32 s{S_YB}, s{S_YB}, 1"); A(f"s_add_u32 s{S_YB}, s{S_YB}, s{S_QB}")
    A(f"s_mul_i32 s{S_YB}, s{S_YB}, 28"); A(f"s_lshl_b32 s6, s{S_KH}, 1"); A(f"s_add_u32 s{S_YB}, s{S_YB}, s6"); A(f"s_lshl_b32 s{S_YB}, s{S_YB}, 4")
    A(f"s_add_u32 s{S_YB}, s{S_YB}, s{S_H}"); A(f"s_lshl_b32 s{S_YB}, s{S_YB}, 10")
    A(f"v_lshlrev_b32 v{VST}, 4, v2")
    A("v_bfe_u32 v12, v2, 2, 2"); A("v_and_b32 v13, 3, v2"); A("v_and_b32 v14, 1, v7")
    A(f"v_mov_b32 v{VLA}, 0")
    A("v_and_b32 v15, 1, v13"); A("v_lshlrev_b32 v15, 4, v15"); A("v_lshrrev_b32 v16, 1, v13"); A("v_lshl_add_u32 v15, v16, 3, v15"); A("v_lshl_add_u32 v15, v14, 5, v15")
    A("v_mul_u32_u24 v16, 1088, v12")
    VWQ, VXB = 20, 21
    A(f"v_mul_u32_u24 v{VWQ}, {4*1088}, v3"); A(f"v_add3_u32 v{VWQ}, v{VWQ}, v16, v15"); A(f"s_lshl_b32 s6, s{S_KH}, 8"); A(f"v_add_u32 v{VWQ}, s6, v{VWQ}")
    A(f"v_lshl_add_u32 v{VVB}, v3, 8, v16"); A(f"v_lshl_add_u32 v{VVB}, v14, 5, v{VVB}"); A(f"v_lshl_add_u32 v{VVB}, v13, 3, v{VVB}")
    A(f"s_mul_i32 s6, s{S_KH}, {8*1088}"); A(f"v_add_u32 v{VVB}, s6, v{VVB}")
    A(f"v_and_b32 v{VKB}, 15, v2"); A(f"v_mul_u32_u24 v{VKB}, 1040, v{VKB}"); A(f"v_lshl_add_u32 v{VKB}, v14, 8, v{VKB}"); A(f"v_lshl_add_u32 v{VKB}, v3, 4, v{VKB}")
    A(f"s_lshl_b32 s6, s{S_KH}, 9"); A(f"v_add_u32 v{VKB}, s6, v{VKB}")
    A(f"v_lshl_add_u32 v{VWO}, v3, 7, v16"); A(f"v_add_u32 v{VWO}, v{VWO}, v15"); A(f"s_lshl_b32 s6, s{S_KH}, 6"); A(f"v_add_u32 v{VWO}, s6, v{VWO}")
    A(f"v_and_b32 v{VXB}, 7, v2"); A(f"v_mul_u32_u24 v{VXB}, 1040, v{VXB}"); A("v_bfe_u32 v17, v2, 3, 2"); A(f"v_lshl_add_u32 v{VXB}, v17, 7, v{VXB}"); A(f"v_lshl_add_u32 v{VXB}, v3, 4, v{VXB}")
    A(f"s_lshl_b32 s6, s{S_QB}, 9"); A(f"v_add_u32 v{VXB}, s6, v{VXB}")

    def xreg(n):
        k = n % 16
        return f"v[{128+4*k}:{131+4*k}]"
    M = []
    for tt in range(14):
        for t in range(2):
            for d in range(4): M.append(dict(ph="Q", tt=tt, t=t, d=d, item=("WQ", tt)))
    for t_ in ATT:
        for half in range(2):
            if t_[0] == "K":
                for s8 in range(8): M.append(dict(ph="QK", j=t_[1], s8=s8, half=half, item=t_ + (half,)))
            else:
                for t in range(2):
                    for d in range(4): M.append(dict(ph="PV", j=t_[1], t=t, d=d, half=half, item=t_ + (half,)))
    for c_ in range(7):
        for tp in range(16): M.append(dict(ph="O", c=c_, tp=tp, item=("WO", c_, tp >> 3)))
    N = len(M); assert N == 736
    start = {}
    for n, m in enumerate(M): start.setdefault(m["item"], n)
    LA, FA = cfg.LA, cfg.FA
    fill = {n: [] for n in range(-1, N)}
    pre = {n: [] for n in range(-1, N)}
    hard = {0, start[("K", 0, 0)], start[("WO", 0, 0)]}
    slow = []
    uid = [0]
    def flag_read(p, dst=VF, base=LM):
        return Op(f"ds_read_b32 v{dst}, v{VLA} offset:{base + p*4}", kind="lds", prod=("fl", p, base))
    def flag_check(p, dst=VF, base=LM):
        return [Op(f"; need {p}", kind="use", cons=[("fl", p, base)], prod=[p])]
    def release(p): return Op(f"; free {p}", kind="rel", prod=p)
    def cbar(k): return [Op("s_waitcnt lgkmcnt(0)", kind="drain"), Op("s_barrier")]
    basereg = {"WQ": VWQ, "K": VKB, "V": VVB, "WO": VWO}
    def lo_gap(n):
        hs = max(h for h in hard if h <= n)
        return hs - 1
    def read_gap(n): return max(n - LA, lo_gap(n))
    LASTBAR = len(ITEMS) - 1 - NSLOT + 4
    post = {n: [] for n in range(-1, N)}
    for t in ITEMS:
        if t not in start: continue
        s = start[t]; g = read_gap(s); gf = max(g - FA, lo_gap(s))
        (post if gf == g else fill)[gf].append(flag_read(P[t]))
        post[g] += ([] if s in hard else [Op("s_barrier")]) + flag_check(P[t]) + [Op(f"v_add_u32 v{VA}, v{VF}, v{basereg[t[0]]}")]
        fill[s + 7].append(release(P[t]))
    for i in range(4):
        s = start[("WQ", 4*i)]
        ops = [flag_read(P[("X", i)], VT0)] + flag_check(P[("X", i)], VT0) + [Op(f"v_add_u32 v{VT0}, v{VT0}, v{VXB}")]
        rds = []
        for k in range(8 if i < 3 else 4):
            rds.append(Op(f"ds_read_b128 {xreg(8*i+k)}, v{VT0} offset:{(k//4)*8320 + (k%4)*32}", kind="lds", prod=("X", 8*i+k)))
        if i == 0:
            pre[-1] += [Op("s_barrier")] + ops + rds
            fill[5].append(release(P[("X", i)]))
        else:
            fill[s - 16].append(ops[0]); fill[s - 13] += ops[1:]
            for k, r in enumerate(rds): fill[s - 13 + k // 2].append(r)
            fill[s - 2].append(release(P[("X", i)]))
    def Sreg(j): return S0 if j % 2 == 0 else S1
    def spread(ops, a, b):
        k = b - a
        for i, o in enumerate(ops): fill[a + (i * k) // len(ops)].append(o)
    def softmax_ops(j):
        s = Sreg(j); seq = []
        for r in range(16 + 3):
            if r < 16: seq.append(Op(f"v_fma_f32 v{s+r}, v{s+r}, s{S_C}, -v{VM}"))
            if 0 <= r - 1 < 16: seq.append(Op(f"v_exp_f32 v{s+r-1}, v{s+r-1}"))
            if 0 <= r - 3 < 16:
                q = r - 3
                seq.append(Op(f"v_add_f32 v{VL}, v{VL}, v{s+q}"))
                if q % 2 == 1: seq.append(Op(f"v_cvt_pk_bf16_f32 v{s + q//2}, v{s+q-1}, v{s+q}", kind="cvt%d" % (q // 2)))
        return seq
    def max_ops(j):
        s = Sreg(j)
        seq = [Op(f"v_max3_f32 v{VMX}, v{s}, v{s+1}, v{s+2}"), Op(f"v_max3_f32 v{VT0}, v{s+3}, v{s+4}, v{s+5}")]
        seq += [Op(f"v_max3_f32 v{VMX}, v{VMX}, v{s+6}, v{s+7}"), Op(f"v_max3_f32 v{VT0}, v{VT0}, v{s+8}, v{s+9}")]
        seq += [Op(f"v_max3_f32 v{VMX}, v{VMX}, v{s+10}, v{s+11}"), Op(f"v_max3_f32 v{VT0}, v{VT0}, v{s+12}, v{s+13}")]
        seq += [Op(f"v_max3_f32 v{VMX}, v{VMX}, v{s+14}, v{s+15}"), Op(f"v_max_f32 v{VMX}, v{VMX}, v{VT0}")]
        return seq
    e = start[("K", 0, 0)] - 1
    pq = P[("QX", 0)]
    fill[e - 4] += [Op(f"s_lshl_b32 s6, s{S_QB}, 2"), Op(f"v_add_u32 v{VMX}, s6, v{VLA}")]
    fill[e - 3].append(Op(f"ds_read_b32 v{VT0}, v{VMX} offset:{LM + pq*4}", kind="lds", prod=("flq",)))
    qx = [Op("; need q", kind="use", cons=[("flq",)], prod=[pq, pq+1]), Op("s_nop 2"),
          Op(f"v_add_u32 v{VT0}, v{VT0}, v{VST}"), Op(f"s_lshl_b32 s7, s{S_KH}, 13"), Op(f"v_add_u32 v{VMX}, s7, v{VT0}"), Op("s_nop 5")]
    for n in range(32):
        qx.append(Op(f"v_cvt_pk_bf16_f32 v{OA+n}, v{OA+2*n}, v{OA+2*n+1}"))
        if n % 4 == 3: qx.append(Op(f"ds_write_b128 v{VMX}, v[{OA+n-3}:{OA+n}] offset:{(n//4)*1024}", kind="lds", prod=("w",)))
    qx += cbar(CB_Q)
    for s in range(16):
        qx.append(Op(f"ds_read_b128 a[{QF+4*s}:{QF+4*s+3}], v{VT0} offset:{s*1024}", kind="lds", prod=("Q", s)))
    pre[e] = fill[e] + qx; fill[e] = []
    fill[e + 16] += [release(pq), release(pq + 1)]
    e0 = start[("K", 0, 0)] + 15
    im = [Op("s_nop 15")] + max_ops(0) + [Op(f"v_mov_b32 v{VT0}, v{VMX}"), Op("s_nop 1"), Op(f"v_permlane32_swap_b32 v{VT0}, v{VMX}"), Op("s_nop 1"),
          Op(f"v_max_f32 v{VMX}, v{VMX}, v{VT0}"), Op(f"v_mul_f32 v{VM}, s{S_C}, v{VMX}"), Op(f"v_mov_b32 v{VL}, 0")]
    fill[e0] += im
    stubs = []
    for j in range(16):
        pvs = start[("V", j, 0)]
        sm = softmax_ops(j)
        if j < 15:
            qs = start[("K", j+1, 0)]
            i3 = max(i for i, o in enumerate(sm) if o.kind == "cvt3") + 1
            assert cfg.cut >= i3 + 2
            spread(sm[:cfg.cut], qs, qs + 16)
            spread(sm[cfg.cut:], pvs, pvs + 3)
            mo = max_ops(j+1) + [Op(f"v_fma_f32 v{VT0}, v{VMX}, s{S_C}, -v{VM}"), Op(f"v_cmp_lt_f32 vcc, 0x41000000, v{VT0}")]
            spread(mo, pvs + 6, pvs + 13)
            fill[pvs + 15].append(Op(f"s_cbranch_vccnz L_stub_{j}")); fill[pvs + 15].append(Op(f"L_back_{j}:"))
            stubs.append(j)
        else:
            fill[pvs - 1] += sm + [Op("s_nop 1")]
    e = start[("WO", 0, 0)] - 1
    po = P[("OX", 0)]
    T = S0
    fill[e - 5] += [Op(f"s_lshl_b32 s6, s{S_W}, 2"), Op(f"v_add_u32 v{S0+8}, s6, v{VLA}"), Op(f"v_xor_b32 v{S0+9}, 8, v{S0+8}")]
    fill[e - 4] += [Op(f"ds_read_b32 v{S0+10}, v{S0+8} offset:{LM + po*4}", kind="lds", prod=("flo1",)), Op(f"ds_read_b32 v{S0+11}, v{S0+9} offset:{LM + po*4}", kind="lds", prod=("flo2",))]
    WA, RA, MA = S0+10, S0+11, S0+12
    ox = [Op("; need o", kind="use", cons=[("flo1",), ("flo2",)], prod=[po+i for i in range(4)]),
          Op(f"v_mov_b32 v{VT0}, v{VL}"), Op(f"v_add_u32 v{WA}, v{WA}, v{VST}"), Op(f"v_add_u32 v{RA}, v{RA}, v{VST}"), Op(f"v_permlane32_swap_b32 v{VT0}, v{VL}"),
          Op(f"s_lshl_b32 s6, s{S_W}, 9"), Op(f"s_add_u32 s6, s6, {MLX}"), Op(f"v_lshrrev_b32 v{MA}, 1, v{VST}"), Op(f"v_add_u32 v{MA}, s6, v{MA}"),
          Op(f"v_add_f32 v{VL}, v{VL}, v{VT0}"), Op("s_nop 2"),
          Op(f"ds_write_b64 v{MA}, v[{VM}:{VM+1}]", kind="lds", prod=("w",)), Op(f"v_xor_b32 v{MA}, 0x400, v{MA}")]
    assert VL == VM + 1
    for i in range(16):
        r = OA + 64 + 4*i
        ox.append(Op(f"ds_write_b128 v{WA}, v[{r}:{r+3}] offset:{i*1024}", kind="lds", prod=("w",)))
    ox += cbar(CB_O1)
    ox.append(Op(f"ds_read_b64 v[{T}:{T+1}], v{MA}", kind="lds", prod=("ml",)))
    for i in range(12):
        r = OA + 64 + 4*i
        ox.append(Op(f"ds_read_b128 v[{r}:{r+3}], v{RA} offset:{i*1024}", kind="lds", prod=("o", i)))
    ox += [Op(f"v_max_f32 v{T+2}, v{T}, v{VM}", kind="use", cons=[("ml",)]), Op(f"v_sub_f32 v{T+4}, v{VM}, v{T+2}"), Op(f"v_sub_f32 v{T+6}, v{T}, v{T+2}"),
           Op(f"v_exp_f32 v{T+4}, v{T+4}"), Op(f"v_exp_f32 v{T+6}, v{T+6}"), Op("s_nop 0"),
           Op(f"v_mul_f32 v{T+3}, v{VL}, v{T+4}"), Op(f"v_fmac_f32 v{T+3}, v{T+1}, v{T+6}"), Op(f"v_rcp_f32 v{T+3}, v{T+3}"), Op("s_nop 0"),
           Op(f"v_mul_f32 v{T+4}, v{T+4}, v{T+3}"), Op(f"v_mul_f32 v{T+6}, v{T+6}, v{T+3}")]
    for i in range(16):
        for k in (0, 2):
            r0 = OA + 4*i + k
            ox.append(Op(f"v_pk_mul_f32 v[{r0}:{r0+1}], v[{r0}:{r0+1}], v[{T+4}:{T+5}] op_sel_hi:[1,0]"))
        for k in (0, 2):
            r0 = OA + 4*i + k
            ox.append(Op(f"v_pk_fma_f32 v[{r0}:{r0+1}], v[{r0+64}:{r0+65}], v[{T+6}:{T+7}], v[{r0}:{r0+1}] op_sel_hi:[1,0,1]", kind="use", cons=[("o", i)]))
        if i < 4:
            r = OA + 64 + 4*(12+i)
            ox.append(Op(f"ds_read_b128 v[{r}:{r+3}], v{RA} offset:{(12+i)*1024}", kind="lds", prod=("o", 12+i)))
        ox.append(Op(f"v_cvt_pk_bf16_f32 v{OA+2*i}, v{OA+4*i}, v{OA+4*i+1}")); ox.append(Op(f"v_cvt_pk_bf16_f32 v{OA+2*i+1}, v{OA+4*i+2}, v{OA+4*i+3}"))
        if i % 2 == 1: ox.append(Op(f"ds_write_b128 v{RA}, v[{OA+2*i-2}:{OA+2*i+1}] offset:{(i//2)*1024}", kind="lds", prod=("w",)))
    ox += cbar(CB_O2)
    ox += [Op(f"s_cmp_eq_u32 s{S_KH}, 0"), Op("s_cselect_b64 s[6:7], -1, 0"), Op(f"v_cndmask_b32 v{T}, v{WA}, v{RA}, s[6:7]"), Op(f"v_cndmask_b32 v{T+1}, v{RA}, v{WA}, s[6:7]")]
    for s in range(16):
        ox.append(Op(f"ds_read_b128 a[{QF+4*s}:{QF+4*s+3}], v{T + s//8} offset:{(s%8)*1024}", kind="lds", prod=("Of", s)))
    ox += [Op(f"s_mov_b32 s{S_G}, s{S_ROT}"), Op(f"v_mov_b32 v{VT0}, 0"), Op(f"global_load_dword v{VMX}, v{VT0}, s[0:1] sc1")]
    pre[e] = fill[e] + [Op("s_nop 3")] + ox; fill[e] = []
    fill[e + 16] += [release(po + i) for i in range(4)]
    def Y(c_): return OA + 64 + 16 * (c_ & 1)
    def ystore(c_):
        seq = [Op(f"s_lshl_b32 s{S_T2}, s{S_G}, 16"), Op(f"s_add_u32 s{S_T2}, s{S_T2}, s{S_YB}")]
        for t in range(2):
            d = S1 + 4 * t + 8 * (c_ & 1); y = Y(c_) + 8 * t
            for i in range(4): seq.append(Op(f"v_cvt_pk_bf16_f32 v{d+i}, v{y+2*i}, v{y+2*i+1}"))
            seq.append(Op(f"buffer_store_dwordx4 v[{d}:{d+3}], v{VST}, {srd(SRD_WS)}, s{S_T2} offen sc1"))
            if t == 0: seq.append(Op(f"s_add_u32 s{S_T2}, s{S_T2}, 16384"))
        seq += [Op(f"s_add_u32 s{S_G}, s{S_G}, 1"), Op(f"s_cmp_eq_u32 s{S_G}, 7"), Op(f"s_cselect_b32 s{S_G}, 0, s{S_G}")]
        return seq
    for c_ in range(7):
        if c_ < 6:
            ys = ystore(c_); st = start[("WO", c_+1, 0)]
            spread(ys[:-3], st + 5, st + 12); fill[st + 13] += ys[-3:]
        else: fill[N-1] += [Op("s_nop 15")] + ystore(c_)

    def reads_for(n):
        m = M[n]; ops = []; fr = FR + 4 * (n % NF)
        if m["ph"] == "QK":
            return [Op(f"ds_read_b128 v[{fr}:{fr+3}], v{VA} offset:{m['s8']*32}", kind="lds", prod=("F", n))]
        for hh in range(2):
            if m["ph"] == "Q": off = m["t"]*8*1088 + hh*512 + m["d"]*64
            elif m["ph"] == "PV": off = m["t"]*4*1088 + hh*512 + m["d"]*64
            else:
                tp = m["tp"] & 7; off = (tp >> 1)*4352 + (tp & 1)*512 + hh*256
            ops.append(Op(f"ds_read_b64_tr_b16 v[{fr+2*hh}:{fr+2*hh+1}], v{VA} offset:{off}", kind="lds", prod=("F", n)))
        return ops
    def mfma(n):
        m = M[n]; fr = FR + 4 * (n % NF); a = f"v[{fr}:{fr+3}]"; cons = [("F", n)]
        if m["ph"] == "Q":
            d = f"v[{OA+16*m['d']}:{OA+16*m['d']+15}]"; xn = 2*m["tt"] + m["t"]; cons.append(("X", xn))
            t = f"{d}, {a}, {xreg(xn)}, {'0' if xn == 0 else d}"
        elif m["ph"] == "QK":
            s = Sreg(m["j"]); d = f"v[{s}:{s+15}]"; sn = m["s8"] + 8*m["half"]; q = QF + 4*sn; cons.append(("Q", sn))
            t = f"{d}, {a}, a[{q}:{q+3}], {'0' if sn == 0 else d}"
        elif m["ph"] == "PV":
            db = m["d"] + 4*m["half"]
            d = f"v[{OA+16*db}:{OA+16*db+15}]"; p = Sreg(m["j"]) + 4*m["t"]
            t = f"{d}, {a}, v[{p}:{p+3}], {'0' if (m['j'] == 0 and m['t'] == 0) else d}"
        else:
            y = Y(m["c"]); d = f"v[{y}:{y+15}]"; o = QF + 4*m["tp"]; cons.append(("Of", m["tp"]))
            t = f"{d}, {a}, a[{o}:{o+3}], {'0' if m['tp'] == 0 else d}"
        return Op("v_mfma_f32_32x32x16_bf16 " + t, kind="use", cons=cons)
    rd = {}
    for n in range(N): rd.setdefault(read_gap(n), []).append(n)
    a0 = start[("K", 0, 0)]; o0 = start[("WO", 0, 0)]
    stamp_at = [-1, 0, 64, 110, 111, a0+15, a0+16+128, a0+16+256, a0+16+384, o0-2, o0-1, N-2, N-1]
    ops = []
    for g in range(-1, N):
        if g >= 0: ops.append(mfma(g))
        ops += pre[g] + post[g]
        for n in rd.get(g, []): ops += reads_for(n)
        ops += fill[g]
        if cfg.stamps and g in stamp_at:
            k = 66 + 2 * stamp_at.index(g)
            ops.append(Op(f"{'s_memrealtime' if cfg.stamps == 1 else 's_memtime'} s[{k}:{k+1}]")); ops.append(Op("s_waitcnt lgkmcnt(0)", kind="drain"))
    import re
    if cfg.fake16:
        new = []; pend = None; cnt = 0
        idxs = [i for i, o in enumerate(ops) if o.text.startswith("v_mfma")]
        ins = {}
        for a, i in enumerate(idxs):
            o = ops[i]
            m_ = re.match(r"v_mfma_f32_32x32x16_bf16 v\[(\d+):\d+\], (\S+), ([av])\[(\d+):\d+\], (\S+)", o.text)
            d, A_, bt, b, c_ = int(m_.group(1)), m_.group(2), m_.group(3), int(m_.group(4)), m_.group(5)
            k = (a % 2) * 8
            b2 = b ^ 4
            def mk(dd, bb): return f"v_mfma_f32_16x16x32_bf16 v[{dd}:{dd+3}], {A_}, {bt}[{bb}:{bb+3}], " + ("0" if (c_ == "0" or (d < 32 and M[a].get("s8") == 1 and M[a].get("half") == 0)) else f"v[{dd}:{dd+3}]")
            o.text = mk(d + k, b)
            nxt = idxs[a+1] if a + 1 < len(idxs) else i + 1
            gap = nxt - i - 1
            ins[i + min(gap // 2, 3)] = Op(mk(d + k + 4, b2))
        for i, o in enumerate(ops):
            new.append(o)
            if i in ins: new.append(ins[i])
        ops = new
    nb = 0; relbar = {}; chkbar = {}
    for o in ops:
        if o.text.startswith("; need"):
            for p_ in o.prod: chkbar.setdefault(p_, nb)
        if o.kind == "rel": relbar[o.prod] = nb + 1
        if o.text == "s_barrier": nb += 1
    SCHED.update(rel=relbar, chk=chkbar, nbar=nb)
    for j in range(4):
        for e in make_table(j, cfg): assert e[4] <= nb, e
    q = []
    for o in ops:
        if o.kind == "lds":
            if len(q) >= 15:
                A("s_waitcnt lgkmcnt(10)"); q = q[-10:]
            q.append(o.prod)
        elif o.kind == "use":
            last = max((i for i, t in enumerate(q) if t in o.cons), default=-1)
            if last >= 0:
                k = len(q) - 1 - last
                A(f"s_waitcnt lgkmcnt({k})"); q = q[last+1:]
        elif o.kind == "drain": q = []
        A(o.text)
    A(f"s_lshl_b32 s6, s{S_W}, 7"); A(f"s_lshl_b32 s7, s{S_H}, 2"); A("s_add_u32 s6, s6, s7"); A(f"s_add_u32 s6, s6, s{S_FB}")
    A("s_waitcnt vmcnt(14)")
    tag_loop(A, "c")
    A("v_mov_b32 v1, 0"); A("s_mov_b64 exec, 1")
    for c_ in range(7):
        A(f"s_waitcnt vmcnt({2*(6-c_) + c_})")
        A(f"buffer_store_dword v{VMX}, v1, {srd(SRD_WS)}, s6 offen offset:{c_*512} sc1")
    A("s_mov_b64 exec, -1")
    A(f"s_add_u32 s{S_G}, s{S_W}, 4"); A(f"s_cmp_eq_u32 s{S_W}, 3"); A("s_cbranch_scc1 L_fin")
    gen_reduce(A, cfg)
    for j in stubs:
        A(f"L_stub_{j}:"); A(f"s_call_b64 s[{S_RET}:{S_RET+1}], L_rescale"); A(f"s_branch L_back_{j}")
    for sl in slow:
        u, p, dst, base = sl[:4]; ar = sl[4] if len(sl) > 4 else VLA
        A(f"L_slow_{u}:")
        if cfg.csleep: A(f"s_sleep {cfg.csleep}")
        A(f"ds_read_b32 v{dst}, v{ar} offset:{base + p*16}"); A(f"s_sub_u32 s{S_BUD}, s{S_BUD}, 1"); A("s_cbranch_scc1 L_abort"); A("s_waitcnt lgkmcnt(0)")
        A(f"v_cmp_eq_u32 s[4:5], 0, v{dst}"); A("s_cmp_lg_u64 s[4:5], 0"); A(f"s_cbranch_scc1 L_slow_{u}"); A(f"s_branch L_sback_{u}")
    A("L_abort:"); A("s_endpgm")
    A("L_rescale:")
    A("s_nop 15")
    A(f"v_mov_b32 v{VT0}, v{VMX}"); A("s_nop 1"); A(f"v_permlane32_swap_b32 v{VT0}, v{VMX}"); A("s_nop 1")
    A(f"v_max_f32 v{VMX}, v{VMX}, v{VT0}"); A(f"v_mul_f32 v{VMX}, s{S_C}, v{VMX}"); A(f"v_max_f32 v{VMX}, v{VMX}, v{VM}")
    A(f"v_sub_f32 v{VT0}, v{VM}, v{VMX}"); A(f"v_exp_f32 v{VT0}, v{VT0}"); A(f"v_mov_b32 v{VM}, v{VMX}")
    A(f"v_mul_f32 v{VL}, v{VL}, v{VT0}")
    for r in range(128): A(f"v_mul_f32 v{OA+r}, v{OA+r}, v{VT0}")
    A("s_nop 1"); A(f"s_setpc_b64 s[{S_RET}:{S_RET+1}]")
    gen_loader(A, cfg)
    A(".p2align 8"); A(".type L_table,@object"); A("L_table:")
    for j in range(4):
        t = [0] * 128
        for e in make_table(j, cfg): t[e[5]] = SLOT0 + e[3]*SLOTSZ
        for i in range(0, 128, 8): A(".long " + ", ".join(f"{x:#x}" for x in t[i:i+8]))
    return L

def gen(cfg):
    out = [HEADER.rstrip()]
    out.append("; @launch grid=(256,1,1) block=(512,1,1) lds=163840")
    out.append('.amdgcn_target "amdgcn-amd-amdhsa--gfx950"'); out.append(".text")
    out += gen_main(cfg)
    out.append('.section .rodata,"a"'); out.append(".p2align 6")
    out.append(f""".amdhsa_kernel {KNAME}
  .amdhsa_next_free_vgpr 256
  .amdhsa_next_free_sgpr 102
  .amdhsa_accum_offset 192
  .amdhsa_group_segment_fixed_size 0
  .amdhsa_kernarg_size 64
  .amdhsa_user_sgpr_count 2
  .amdhsa_user_sgpr_kernarg_segment_ptr 1
  .amdhsa_system_sgpr_workgroup_id_x 1
.end_amdhsa_kernel""")
    return "\n".join(out) + "\n"

if __name__ == "__main__":
    cfg = Cfg()
    for a in sys.argv[2:]:
        k, v = a.split("=")
        setattr(cfg, k, int(v) if v.lstrip("-").isdigit() else v)
    open(sys.argv[1], "w").write(gen(cfg))
```

```python
import math, sys, struct

KNAME = "standalone__gqa_block_cached__near_ridge_kernel"
HEADER = open("standalone__gqa_block_cached__near_ridge.s.ref").read().split("; Override launch")[0]

class Cfg:
    kv_fl = ""
    w_fl = ""
    LA = 4
    FA = 3
    shift = 8
    rot = 1
    stamps = 0
    nodma = 0
    prio = 0
    lsleep = 1
    cut = 46
    maxper = 2
    ampa = -1
    ampb = -1
    ampwg = 77
    fake16 = 0
    room = 7
    force = 0
    first = 2
    token = 1
    lprio = 3
    csleep = 0
    tsleep = 0
    tokat = 15

S0, S1 = 0, 16
FR, NF = 32, 5
VKB, VVB, VA, VF, VLA, VDA, VM, VL, VMX, VT0, VWO, VST = 52, 53, 54, 55, 56, 57, 58, 59, 60, 61, 62, 63
OA = 64
QF = 0
LM, DM, MLX, TOK = 0, 2048, 4096, 2032
SLOT0, SLOTSZ, NSLOT = 7168, 17408, 9
SRD_X, SRD_K, SRD_V, SRD_WQ, SRD_WO, SRD_WS, SRD_OUT = 8, 12, 16, 20, 24, 28, 96
S_W, S_B, S_H, S_QH, S_J = 3, 32, 33, 34, 35
S_QB, S_KH, S_C, S_YB, S_T, S_T2, S_ROT = 36, 37, 38, 39, 42, 43, 44
S_RET = 40
S_G, S_FB, S_BUD = 62, 63, 41
S_RET = 8
FLAG_BASE = 16 << 20
def srd(n): return f"s[{n}:{n+3}]"
def fl(x): return (" " + x) if x else ""

class Op:
    def __init__(self, text, kind="x", prod=None, cons=None):
        self.text, self.kind, self.prod, self.cons = text, kind, prod, cons

ITEMS = []
for i in range(4):
    ITEMS.append(("X", i))
    ITEMS += [("WQ", t) for t in range(4*i, min(4*i+4, 14))]
ITEMS += [("QX", 0), ("QX", 1)]
ATT = [("K", 0)]
for j in range(16):
    if j < 15: ATT.append(("K", j+1))
    ATT.append(("V", j))
for t in ATT: ITEMS += [t + (0,), t + (1,)]
ITEMS += [("OX", i) for i in range(4)]
ITEMS += [("WO", c, hh) for c in range(7) for hh in range(2)]
P = {t: i for i, t in enumerate(ITEMS)}
CB_Q, CB_O1, CB_O2 = 110, 111, 112
TYPES = {"X": 0, "WQ": 1, "K": 2, "V": 3, "WO": 4, "QX": 5, "OX": 5}
NSTATIC = 2

SCHED = {}
def make_table(j, cfg):
    relbar, chkbar = SCHED["rel"], SCHED["chk"]
    key = {}
    for p, t in enumerate(ITEMS):
        k = float(p)
        if t[0] == "X" and t[1] > 0: k -= 2.5
        if t[0] in ("K", "V") and (ATT.index(t[:2]) & 3) == j: k -= cfg.shift + 0.5 - 0.01 * t[2]
        key[t] = max(k, NSTATIC - 0.5 + 0.001 * p) if p >= NSTATIC else k
    order = sorted(ITEMS, key=lambda t: key[t])
    assert order[:NSTATIC] == ITEMS[:NSTATIC]
    occ = [None] * NSLOT
    ent = []
    for t in order:
        free = [s for s in range(NSLOT) if occ[s] is None]
        if free: s = free[0]; early = 0
        else:
            s = min(range(NSLOT), key=lambda s: relbar[P[occ[s]]]); early = relbar[P[occ[s]]]
        occ[s] = t
        idx = t[1]; half = t[2] if len(t) > 2 else 0
        ent.append([TYPES[t[0]], idx, half, s, early, P[t], chkbar[P[t]]])
    for a in range(1, len(ent)): ent[a][4] = max(ent[a][4], ent[a-1][4])
    late = 10**9
    for a in range(len(ent) - 1, -1, -1):
        assert ent[a][4] <= ent[a][6] - 1 or ent[a][0] == 5 and ent[a][4] <= ent[a][6], ("deadlock", j, ent[a], ITEMS[ent[a][5]])
        late = min(late, ent[a][6]); ent[a][6] = max(late - cfg.force, 0)
    return ent
def pack(e):
    ty, idx, half, s, early, p, late = e
    return ty | (idx << 3) | (half << 7) | (s << 8) | (p << 12), early | (late << 8)

def mk_srd(A, n, lo, size):
    A(f"s_mov_b32 s{n}, s{lo}"); A(f"s_and_b32 s{n+1}, s{lo+1}, 0xffff"); A(f"s_mov_b32 s{n+2}, {size:#x}"); A(f"s_mov_b32 s{n+3}, 0x20000")

def stamp_tail(A, cfg, lab):
    if not cfg.stamps: return
    A("s_waitcnt vmcnt(0)"); A("s_memrealtime s[94:95]" if cfg.stamps == 1 else "s_memtime s[94:95]"); A("s_waitcnt lgkmcnt(0)")
    if cfg.ampa >= 0:
        A(f"s_cmp_lg_u32 s2, {cfg.ampwg}"); A("s_cbranch_scc1 L_noamp"); A(f"s_cmp_lg_u32 s{S_W}, 0"); A("s_cbranch_scc1 L_noamp")
        A(f"s_sub_u32 s6, s{64+2*cfg.ampb}, s{64+2*cfg.ampa}"); A("s_lshl_b32 s6, s6, 2"); A("s_min_u32 s6, s6, 30000"); A("s_add_u32 s6, s6, s94")
        A("L_amp:"); A("s_memrealtime s[4:5]"); A("s_waitcnt lgkmcnt(0)"); A("s_sub_u32 s7, s4, s6"); A("s_cmp_lt_i32 s7, 0"); A("s_cbranch_scc1 L_amp")
        A("L_noamp:")
    A(f"s_lshl_b32 s{S_T}, s2, 3"); A(f"s_add_u32 s{S_T}, s{S_T}, s{S_W}"); A(f"s_lshl_b32 s{S_T}, s{S_T}, 7"); A(f"s_add_u32 s{S_T}, s{S_T}, {64<<20}")
    A("s_mov_b64 exec, -1")
    if cfg.stamps == 2: A(f"s_sub_u32 s92, 0x20000, s{S_BUD}"); A("s_mov_b32 s93, 0")
    for i in range(32): A(f"v_mov_b32 v{64+i}, s{64+i}")
    A("v_mov_b32 v1, 0"); A("s_mov_b64 exec, 1")
    for i in range(8): A(f"buffer_store_dwordx4 v[{64+4*i}:{67+4*i}], v1, {srd(SRD_WS)}, s{S_T} offen offset:{16*i}")

def tag_loop(A, lab):
    A(f"L_tag_{lab}:")
    A(f"v_cmp_ne_u32 vcc, 0, v{VMX}"); A(f"s_sub_u32 s{S_BUD}, s{S_BUD}, 1"); A(f"s_cbranch_scc1 L_tagok_{lab}"); A("s_nop 2"); A(f"s_cbranch_vccnz L_tagok_{lab}")
    A("v_mov_b32 v1, 0"); A(f"global_load_dword v{VMX}, v1, s[0:1] sc1"); A("s_waitcnt vmcnt(0)"); A(f"s_branch L_tag_{lab}")
    A(f"L_tagok_{lab}:")

def gen_reduce(A, cfg):
    A("L_reduce:")
    A("v_mbcnt_lo_u32_b32 v2, -1, 0"); A("v_mbcnt_hi_u32_b32 v2, -1, v2")
    tag_loop(A, "r")
    A(f"v_mov_b32 v4, v{VMX}")
    A(f"s_lshr_b32 s4, s{S_H}, 3"); A(f"s_bfe_u32 s5, s{S_H}, 0x10002"); A(f"s_bfe_u32 s6, s{S_H}, 0x10001"); A(f"s_and_b32 s7, s{S_H}, 1")
    A("s_lshl_b32 s45, s5, 1"); A("s_add_u32 s45, s45, s4"); A(f"s_lshl_b32 s46, s{S_G}, 2"); A("s_add_u32 s45, s45, s46"); A("s_lshl_b32 s45, s45, 7"); A(f"s_add_u32 s45, s45, s{S_FB}")
    A(f"s_add_u32 s46, s{S_G}, s{S_ROT}"); A("s_sub_u32 s47, s46, 7"); A("s_cmp_ge_u32 s46, 7"); A("s_cselect_b32 s46, s47, s46")
    A(f"s_lshl_b32 s47, s{S_B}, 1"); A(f"s_add_u32 s47, s47, s{S_QH}"); A("s_lshl_b32 s47, s47, 1"); A("s_add_u32 s47, s47, s4")
    A("s_lshl_b32 s46, s46, 1"); A("s_add_u32 s46, s46, s5"); A("s_lshl_b32 s46, s46, 1"); A("s_add_u32 s46, s46, s6")
    A("s_mul_i32 s48, s47, 28"); A("s_add_u32 s48, s48, s46"); A("s_lshl_b32 s48, s48, 14"); A("s_lshl_b32 s49, s7, 9"); A("s_add_u32 s48, s48, s49")
    A(f"s_mul_i32 s50, s47, {32*896}"); A("s_lshl_b32 s46, s46, 5"); A("s_add_u32 s50, s50, s46"); A("s_lshl_b32 s49, s7, 4"); A("s_add_u32 s50, s50, s49")
    A("v_and_b32 v5, 15, v2"); A("v_lshlrev_b32 v5, 2, v5")
    A("v_and_b32 v6, 31, v2"); A("v_lshrrev_b32 v7, 5, v2"); A("v_lshlrev_b32 v8, 4, v6"); A("v_lshl_add_u32 v8, v7, 13, v8")
    A("v_mul_u32_u24 v9, 896, v6")
    A("s_add_u32 s49, s48, 4096")
    A("s_mov_b32 s51, 0")
    A("s_waitcnt lgkmcnt(0)")
    A("L_rpoll:")
    A(f"buffer_load_dword v10, v5, {srd(SRD_WS)}, s45 offen sc1")
    A("s_add_u32 s51, s51, 1")
    A("s_waitcnt vmcnt(0)")
    A("v_cmp_ne_u32 vcc, v10, v4")
    A("s_cmp_gt_u32 s51, 0x8000"); A("s_cbranch_scc1 L_rgo")
    A("s_cbranch_vccz L_rgo")
    A("s_sleep 1"); A("s_branch L_rpoll")
    A("L_rgo:")
    if cfg.stamps == 1: A("s_memrealtime s[92:93]")
    for p in range(8):
        A(f"buffer_load_dwordx4 v[{16+4*p}:{19+4*p}], v8, {srd(SRD_WS)}, s{48 + p//4} offen offset:{(p%4)*1024} sc1")
    for p in range(8):
        A(f"s_waitcnt vmcnt({7-p})")
        for i in range(4):
            if p == 0:
                A(f"v_lshlrev_b32 v{48+2*i}, 16, v{16+i}"); A(f"v_and_b32 v{49+2*i}, 0xffff0000, v{16+i}")
            else:
                A(f"v_lshlrev_b32 v10, 16, v{16+4*p+i}"); A(f"v_and_b32 v11, 0xffff0000, v{16+4*p+i}")
                A(f"v_add_f32 v{48+2*i}, v{48+2*i}, v10"); A(f"v_add_f32 v{49+2*i}, v{49+2*i}, v11")
    for i in range(8): A(f"v_mov_b32 v{56+i}, v{48+i}")
    A("s_nop 1")
    for i in range(8): A(f"v_permlane32_swap_b32 v{48+i}, v{56+i}")
    A("s_nop 1")
    for i in range(8): A(f"v_add_f32 v{48+i}, v{48+i}, v{56+i}")
    for i in range(4): A(f"v_cvt_pk_bf16_f32 v{16+i}, v{48+2*i}, v{49+2*i}")
    A("s_mov_b32 exec_hi, 0")
    A(f"buffer_store_dwordx4 v[16:19], v9, {srd(SRD_OUT)}, s50 offen")
    A("L_fin:")
    stamp_tail(A, cfg, "r")
    A("s_endpgm")

def gen_loader(A, cfg):
    LW, XB, KVB, WQB, WOB, E, I, SL, KB, E2, KM, VMo = 45, 46, 47, 60, 61, 68, 69, 72, 70, 71, 66, 67
    VOX, VOWQ, VOK, VOV, VOWO, VTAB, VFL = 32, 36, 40, 44, 48, 22, 26
    IDXs, HALF = 76, 77
    NB = SCHED["nbar"]
    A("L_loader:")
    if cfg.lprio: A(f"s_setprio {cfg.lprio}")
    A(f"s_sub_u32 s{LW}, s{S_W}, 4")
    A("s_getpc_b64 s[74:75]"); A("L_pc:"); A("s_add_u32 s74, s74, L_table-L_pc"); A("s_addc_u32 s75, s75, 0")
    A(f"s_lshl_b32 s6, s{S_J}, 9"); A("v_lshlrev_b32 v9, 4, v4"); A("v_add_u32 v9, s6, v9")
    A("v_lshrrev_b32 v5, 3, v2"); A("v_and_b32 v6, 7, v2"); A("v_lshlrev_b32 v6, 4, v6")
    A(f"v_mul_u32_u24 v{VOX}, {8*896}, v5"); A(f"v_add_u32 v{VOX}, v{VOX}, v6")
    A(f"v_lshlrev_b32 v8, 4, v4"); A(f"v_lshl_add_u32 v{VOWQ}, v3, 15, v8")
    A(f"s_lshl_b32 s{XB}, s{S_B}, 1"); A(f"s_add_u32 s{XB}, s{XB}, s{S_QH}"); A(f"s_lshl_b32 s{XB}, s{XB}, 4"); A(f"s_and_b32 s6, s{LW}, 1"); A(f"s_add_u32 s{XB}, s{XB}, s6"); A(f"s_mul_i32 s{XB}, s{XB}, {4*896}")
    A(f"s_lshl_b32 s{WQB}, s{LW}, 16"); A(f"s_lshl_b32 s6, s{S_H}, 9"); A(f"s_add_u32 s{WQB}, s{WQB}, s6")
    A(f"s_mul_i32 s{KM}, s{LW}, {4*1040}"); A(f"s_mul_i32 s{VMo}, s{LW}, {4*1088}")
    A(f"s_lshl_b32 s{KVB}, s{S_B}, 3"); A(f"s_add_u32 s{KVB}, s{KVB}, s4"); A(f"s_lshl_b32 s{KVB}, s{KVB}, 19")
    A(f"s_lshl_b32 s6, s{LW}, 11"); A(f"s_add_u32 s81, s{KVB}, s6")
    A(f"s_lshl_b32 s6, s{LW}, 13"); A(f"s_add_u32 s82, s{KVB}, s6"); A(f"s_lshr_b32 s6, s{LW}, 1"); A("s_lshl_b32 s6, s6, 8"); A("s_add_u32 s82, s82, s6")
    A(f"s_lshl_b32 s{WOB}, s{S_H}, 3"); A(f"s_add_u32 s{WOB}, s{WOB}, s{LW}"); A(f"s_mul_i32 s{WOB}, s{WOB}, {32*896}")
    A("v_and_b32 v8, 15, v2"); A("v_lshlrev_b32 v8, 4, v8")
    A(f"v_lshl_add_u32 v{VOK}, v7, 13, v8"); A(f"v_lshl_add_u32 v{VOV}, v7, 11, v8")
    A(f"v_mul_u32_u24 v{VOWO}, {4*896}, v5"); A(f"v_add_u32 v{VOWO}, v{VOWO}, v6")
    for vo, ds, st in ((VOX, 896, 1040), (VOWQ, 8192, 1088), (VOK, 512, 1040), (VOV, 512, 1088), (VOWO, 896, 1088)):
        for ii in (3, 2, 1, 0): A(f"v_add_u32 v{vo+ii}, {4096 + ii*(ds-st)}, v{vo}")
    if cfg.stamps == 1: A("s_memrealtime s[68:69]")
    A("s_waitcnt lgkmcnt(0)")
    if cfg.stamps == 1: A("s_memrealtime s[70:71]")
    for n, lo, size in ((SRD_X, 48, 8*128*448*2), (SRD_WQ, 54, 448*4096*2), (SRD_K, 50, 32 << 20), (SRD_V, 52, 32 << 20), (SRD_WO, 56, 4096*448*2)):
        A(f"s_sub_u32 s{n}, s{lo}, 4096"); A(f"s_subb_u32 s{n+1}, s{lo+1}, 0"); A(f"s_and_b32 s{n+1}, s{n+1}, 0xffff"); A(f"s_mov_b32 s{n+2}, {size+4096:#x}"); A(f"s_mov_b32 s{n+3}, 0x20000")
    mk_srd(A, SRD_WS, 58, 256 << 20); mk_srd(A, SRD_OUT, 100, 8*128*448*2)
    A(f"s_mov_b32 s84, s{S_ROT}")
    def emit(e):
        ty, idx, half, sl = e[0], e[1], e[2], SLOT0 + e[3]*SLOTSZ
        if ty == 5: return 0
        if ty == 0:
            A(f"s_cmp_ge_u32 s{LW}, 2"); A(f"s_cselect_b32 s6, s{84+2*idx+1}, s{84+2*idx}"); A("s_lshl_b32 s6, s6, 7"); A(f"s_add_u32 m0, s{KM}, {sl}"); A(f"s_add_u32 s6, s6, s{XB}")
            st, vo, sr, f = 1040, VOX, SRD_X, cfg.w_fl
        elif ty == 1:
            A(f"s_lshl_b32 s6, s{84+(idx>>1)}, 19"); A(f"s_add_u32 s6, s6, s{WQB}"); A(f"s_add_u32 m0, s{VMo}, {sl}"); A(f"s_add_u32 s6, s6, {(idx&1) << 18}")
            st, vo, sr, f = 1088, VOWQ, SRD_WQ, cfg.w_fl
        elif ty == 2:
            A(f"s_add_u32 m0, s{KM}, {sl}"); A(f"s_add_u32 s6, s81, {idx*32768 + half*256}")
            st, vo, sr, f = 1040, VOK, SRD_K, cfg.kv_fl
        elif ty == 3:
            A(f"s_add_u32 m0, s{VMo}, {sl}"); A(f"s_add_u32 s6, s{82 if half == 0 else 83}, {idx*32768}")
            st, vo, sr, f = 1088, VOV, SRD_V, cfg.kv_fl
        else:
            A(f"s_lshl_b32 s6, s{84+idx}, 7"); A(f"s_add_u32 s6, s6, s{WOB}"); A(f"s_add_u32 m0, s{VMo}, {sl}"); A(f"s_add_u32 s6, s6, {half*128*896}")
            st, vo, sr, f = 1088, VOWO, SRD_WO, cfg.w_fl
        if cfg.nodma and ty in (2, 3, 4): return 0
        for ii in range(4):
            A(f"buffer_load_dwordx4 v{vo+ii}, {srd(sr)}, s6 offen offset:{ii*st}{fl(f)} lds")
        return 4
    for g in range(1, 8):
        A(f"s_add_u32 s{84+g}, s{83+g}, 1"); A(f"s_cmp_eq_u32 s{84+g}, 7"); A(f"s_cselect_b32 s{84+g}, 0, s{84+g}")
    A("s_xor_b32 s83, s82, 0x100")
    A("s_mov_b32 m0, 0"); A("s_mov_b32 exec_hi, 0"); A("global_load_lds_dwordx4 v9, s[74:75]"); A("s_mov_b32 exec_hi, -1")
    for j in range(1, 4):
        A(f"s_cmp_eq_u32 s{S_J}, {j}"); A(f"s_cbranch_scc1 L_ld{j}")
    chk = SCHED["chk"]
    for j in range(4):
        A(f"L_ld{j}:")
        tab = make_table(j, cfg); q = ["tab"]; pos = 0
        for k in range(NB):
            n = 0
            while pos < len(tab) and tab[pos][4] <= k and (n < (cfg.first if k == 0 else cfg.maxper) or tab[pos][6] <= k + 1):
                c = emit(tab[pos]); q += [tab[pos][5]] * c; pos += 1
                if c: n += 1
            need = [p for p in chk if chk[p] == k + 1] + (["tab"] if k == 0 else [])
            for p in need: assert p == "tab" or ITEMS[p][0] in ("QX", "OX") or p in [e[5] for e in tab[:pos]], (j, k, p)
            last = max((i for i, t in enumerate(q) if t in need), default=-1)
            if cfg.stamps == 1 and k == 0: A("s_memrealtime s[72:73]")
            if last >= 0:
                kk = len(q) - 1 - last; assert kk <= 63
                A(f"s_waitcnt vmcnt({kk})"); del q[:last+1]
            if cfg.stamps == 1 and k in (0, 2): A(f"s_memrealtime s[{76+k}:{77+k}]")
            A("s_barrier")
        assert pos == len(tab)
        if j < 3: A("s_branch L_ldone")
    A("L_ldone:")
    A(f"s_mov_b32 s{S_G}, s{LW}")
    A(f"v_mov_b32 v{VMX}, 0")
    A("s_branch L_reduce")

def gen_main(cfg):
    L = []; A = L.append
    A(f".globl {KNAME}"); A(".p2align 8"); A(f".type {KNAME},@function"); A(f"{KNAME}:")
    A("s_cmp_lt_u32 s2, 256"); A("s_cbranch_scc1 L_main_go"); A("s_endpgm"); A("L_main_go:")
    if cfg.stamps: A("s_memrealtime s[64:65]" if cfg.stamps == 1 else "s_memtime s[64:65]")
    A("s_load_dwordx8 s[48:55], s[0:1], 0")
    A("s_load_dwordx2 s[56:57], s[0:1], 32")
    A("s_load_dwordx2 s[58:59], s[0:1], 56")
    A("s_load_dwordx2 s[100:101], s[0:1], 40")
    A("s_load_dwordx2 s[0:1], s[0:1], 48")
    A("v_lshrrev_b32 v1, 6, v0"); A("v_and_b32 v2, 63, v0")
    A(f"v_readfirstlane_b32 s{S_W}, v1")
    A("s_and_b32 s4, s2, 7"); A("s_lshr_b32 s5, s2, 3")
    A(f"s_lshr_b32 s{S_B}, s5, 2"); A(f"s_and_b32 s{S_J}, s5, 3")
    A(f"s_and_b32 s6, s{S_J}, 1"); A(f"s_lshl_b32 s{S_H}, s4, 1"); A(f"s_add_u32 s{S_H}, s{S_H}, s6")
    A(f"s_lshr_b32 s{S_QH}, s{S_J}, 1")
    A(f"s_lshl_b32 s{S_ROT}, s{S_B}, 1"); A(f"s_add_u32 s{S_ROT}, s{S_ROT}, s{S_QH}")
    A(f"s_lshl_b32 s{S_FB}, s{S_ROT}, 12"); A(f"s_add_u32 s{S_FB}, s{S_FB}, {FLAG_BASE}")
    if cfg.rot:
        for _ in range(2):
            A(f"s_sub_u32 s6, s{S_ROT}, 7"); A(f"s_cmp_ge_u32 s{S_ROT}, 7"); A(f"s_cselect_b32 s{S_ROT}, s6, s{S_ROT}")
    else: A(f"s_mov_b32 s{S_ROT}, 0")
    A("v_lshrrev_b32 v3, 5, v2"); A("v_and_b32 v4, 31, v2"); A("v_lshrrev_b32 v7, 4, v2")
    A(f"s_mov_b32 s{S_BUD}, 0x20000")
    A(f"s_cmp_ge_u32 s{S_W}, 4"); A("s_cbranch_scc1 L_loader")
    A("v_mov_b32 v20, 0"); A("s_waitcnt lgkmcnt(0)")
    mk_srd(A, SRD_WS, 58, 256 << 20); mk_srd(A, SRD_OUT, 100, 8*128*448*2)
    A(f"s_add_u32 s6, s2, s{S_W}"); A("s_cmp_lg_u32 s6, 0"); A("s_cbranch_scc1 L_notag")
    A("s_memrealtime s[6:7]"); A("s_waitcnt lgkmcnt(0)"); A("s_or_b32 s6, s6, 1"); A("v_mov_b32 v9, s6")
    A("global_store_dword v20, v9, s[0:1] sc1")
    A("L_notag:")
    if cfg.prio: A(f"s_setprio {cfg.prio}")
    A(f"s_and_b32 s{S_QB}, s{S_W}, 1"); A(f"s_lshr_b32 s{S_KH}, s{S_W}, 1")
    c = math.log2(math.e) / 16.0
    A(f"s_mov_b32 s{S_C}, {struct.unpack('<I', struct.pack('<f', c))[0]:#x}")
    A(f"s_lshl_b32 s{S_YB}, s{S_B}, 1"); A(f"s_add_u32 s{S_YB}, s{S_YB}, s{S_QH}"); A(f"s_lshl_b32 s{S_YB}, s{S_YB}, 1"); A(f"s_add_u32 s{S_YB}, s{S_YB}, s{S_QB}")
    A(f"s_mul_i32 s{S_YB}, s{S_YB}, 28"); A(f"s_lshl_b32 s6, s{S_KH}, 1"); A(f"s_add_u32 s{S_YB}, s{S_YB}, s6"); A(f"s_lshl_b32 s{S_YB}, s{S_YB}, 4")
    A(f"s_add_u32 s{S_YB}, s{S_YB}, s{S_H}"); A(f"s_lshl_b32 s{S_YB}, s{S_YB}, 10")
    A(f"v_lshlrev_b32 v{VST}, 4, v2")
    A("v_bfe_u32 v12, v2, 2, 2"); A("v_and_b32 v13, 3, v2"); A("v_and_b32 v14, 1, v7")
    A(f"v_mov_b32 v{VLA}, 0")
    A("v_and_b32 v15, 1, v13"); A("v_lshlrev_b32 v15, 4, v15"); A("v_lshrrev_b32 v16, 1, v13"); A("v_lshl_add_u32 v15, v16, 3, v15"); A("v_lshl_add_u32 v15, v14, 5, v15")
    A("v_mul_u32_u24 v16, 1088, v12")
    VWQ, VXB = 20, 21
    A(f"v_mul_u32_u24 v{VWQ}, {4*1088}, v3"); A(f"v_add3_u32 v{VWQ}, v{VWQ}, v16, v15"); A(f"s_lshl_b32 s6, s{S_KH}, 8"); A(f"v_add_u32 v{VWQ}, s6, v{VWQ}")
    A(f"v_lshl_add_u32 v{VVB}, v3, 8, v16"); A(f"v_lshl_add_u32 v{VVB}, v14, 5, v{VVB}"); A(f"v_lshl_add_u32 v{VVB}, v13, 3, v{VVB}")
    A(f"s_mul_i32 s6, s{S_KH}, {8*1088}"); A(f"v_add_u32 v{VVB}, s6, v{VVB}")
    A(f"v_and_b32 v{VKB}, 15, v2"); A(f"v_mul_u32_u24 v{VKB}, 1040, v{VKB}"); A(f"v_lshl_add_u32 v{VKB}, v14, 8, v{VKB}"); A(f"v_lshl_add_u32 v{VKB}, v3, 4, v{VKB}")
    A(f"s_lshl_b32 s6, s{S_KH}, 9"); A(f"v_add_u32 v{VKB}, s6, v{VKB}")
    A(f"v_lshl_add_u32 v{VWO}, v3, 7, v16"); A(f"v_add_u32 v{VWO}, v{VWO}, v15"); A(f"s_lshl_b32 s6, s{S_KH}, 6"); A(f"v_add_u32 v{VWO}, s6, v{VWO}")
    A(f"v_and_b32 v{VXB}, 7, v2"); A(f"v_mul_u32_u24 v{VXB}, 1040, v{VXB}"); A("v_bfe_u32 v17, v2, 3, 2"); A(f"v_lshl_add_u32 v{VXB}, v17, 7, v{VXB}"); A(f"v_lshl_add_u32 v{VXB}, v3, 4, v{VXB}")
    A(f"s_lshl_b32 s6, s{S_QB}, 9"); A(f"v_add_u32 v{VXB}, s6, v{VXB}")

    def xreg(n):
        k = n % 16
        return f"v[{128+4*k}:{131+4*k}]"
    M = []
    for tt in range(14):
        for t in range(2):
            for d in range(4): M.append(dict(ph="Q", tt=tt, t=t, d=d, item=("WQ", tt)))
    for t_ in ATT:
        for half in range(2):
            if t_[0] == "K":
                for s8 in range(8): M.append(dict(ph="QK", j=t_[1], s8=s8, half=half, item=t_ + (half,)))
            else:
                for t in range(2):
                    for d in range(4): M.append(dict(ph="PV", j=t_[1], t=t, d=d, half=half, item=t_ + (half,)))
    for c_ in range(7):
        for tp in range(16): M.append(dict(ph="O", c=c_, tp=tp, item=("WO", c_, tp >> 3)))
    N = len(M); assert N == 736
    start = {}
    for n, m in enumerate(M): start.setdefault(m["item"], n)
    LA, FA = cfg.LA, cfg.FA
    fill = {n: [] for n in range(-1, N)}
    pre = {n: [] for n in range(-1, N)}
    hard = {0, start[("K", 0, 0)], start[("WO", 0, 0)]}
    slow = []
    uid = [0]
    def flag_read(p, dst=VF, base=LM):
        return Op(f"ds_read_b32 v{dst}, v{VLA} offset:{base + p*4}", kind="lds", prod=("fl", p, base))
    def flag_check(p, dst=VF, base=LM):
        return [Op(f"; need {p}", kind="use", cons=[("fl", p, base)], prod=[p])]
    def release(p): return Op(f"; free {p}", kind="rel", prod=p)
    def cbar(k): return [Op("s_waitcnt lgkmcnt(0)", kind="drain"), Op("s_barrier")]
    basereg = {"WQ": VWQ, "K": VKB, "V": VVB, "WO": VWO}
    def lo_gap(n):
        hs = max(h for h in hard if h <= n)
        return hs - 1
    def read_gap(n): return max(n - LA, lo_gap(n))
    LASTBAR = len(ITEMS) - 1 - NSLOT + 4
    post = {n: [] for n in range(-1, N)}
    for t in ITEMS:
        if t not in start: continue
        s = start[t]; g = read_gap(s); gf = max(g - FA, lo_gap(s))
        (post if gf == g else fill)[gf].append(flag_read(P[t]))
        post[g] += ([] if s in hard else [Op("s_barrier")]) + flag_check(P[t]) + [Op(f"v_add_u32 v{VA}, v{VF}, v{basereg[t[0]]}")]
        fill[s + 7].append(release(P[t]))
    for i in range(4):
        s = start[("WQ", 4*i)]
        ops = [flag_read(P[("X", i)], VT0)] + flag_check(P[("X", i)], VT0) + [Op(f"v_add_u32 v{VT0}, v{VT0}, v{VXB}")]
        rds = []
        for k in range(8 if i < 3 else 4):
            rds.append(Op(f"ds_read_b128 {xreg(8*i+k)}, v{VT0} offset:{(k//4)*8320 + (k%4)*32}", kind="lds", prod=("X", 8*i+k)))
        if i == 0:
            pre[-1] += [Op("s_barrier")] + ops + rds
            fill[5].append(release(P[("X", i)]))
        else:
            fill[s - 16].append(ops[0]); fill[s - 13] += ops[1:]
            for k, r in enumerate(rds): fill[s - 13 + k // 2].append(r)
            fill[s - 2].append(release(P[("X", i)]))
    def Sreg(j): return S0 if j % 2 == 0 else S1
    def spread(ops, a, b):
        k = b - a
        for i, o in enumerate(ops): fill[a + (i * k) // len(ops)].append(o)
    def softmax_ops(j):
        s = Sreg(j); seq = []
        for r in range(16 + 3):
            if r < 16: seq.append(Op(f"v_fma_f32 v{s+r}, v{s+r}, s{S_C}, -v{VM}"))
            if 0 <= r - 1 < 16: seq.append(Op(f"v_exp_f32 v{s+r-1}, v{s+r-1}"))
            if 0 <= r - 3 < 16:
                q = r - 3
                seq.append(Op(f"v_add_f32 v{VL}, v{VL}, v{s+q}"))
                if q % 2 == 1: seq.append(Op(f"v_cvt_pk_bf16_f32 v{s + q//2}, v{s+q-1}, v{s+q}", kind="cvt%d" % (q // 2)))
        return seq
    def max_ops(j):
        s = Sreg(j)
        seq = [Op(f"v_max3_f32 v{VMX}, v{s}, v{s+1}, v{s+2}"), Op(f"v_max3_f32 v{VT0}, v{s+3}, v{s+4}, v{s+5}")]
        seq += [Op(f"v_max3_f32 v{VMX}, v{VMX}, v{s+6}, v{s+7}"), Op(f"v_max3_f32 v{VT0}, v{VT0}, v{s+8}, v{s+9}")]
        seq += [Op(f"v_max3_f32 v{VMX}, v{VMX}, v{s+10}, v{s+11}"), Op(f"v_max3_f32 v{VT0}, v{VT0}, v{s+12}, v{s+13}")]
        seq += [Op(f"v_max3_f32 v{VMX}, v{VMX}, v{s+14}, v{s+15}"), Op(f"v_max_f32 v{VMX}, v{VMX}, v{VT0}")]
        return seq
    e = start[("K", 0, 0)] - 1
    pq = P[("QX", 0)]
    fill[e - 4] += [Op(f"s_lshl_b32 s6, s{S_QB}, 2"), Op(f"v_add_u32 v{VMX}, s6, v{VLA}")]
    fill[e - 3].append(Op(f"ds_read_b32 v{VT0}, v{VMX} offset:{LM + pq*4}", kind="lds", prod=("flq",)))
    qx = [Op("; need q", kind="use", cons=[("flq",)], prod=[pq, pq+1]), Op("s_nop 2"),
          Op(f"v_add_u32 v{VT0}, v{VT0}, v{VST}"), Op(f"s_lshl_b32 s7, s{S_KH}, 13"), Op(f"v_add_u32 v{VMX}, s7, v{VT0}"), Op("s_nop 5")]
    for n in range(32):
        qx.append(Op(f"v_cvt_pk_bf16_f32 v{OA+n}, v{OA+2*n}, v{OA+2*n+1}"))
        if n % 4 == 3: qx.append(Op(f"ds_write_b128 v{VMX}, v[{OA+n-3}:{OA+n}] offset:{(n//4)*1024}", kind="lds", prod=("w",)))
    qx += cbar(CB_Q)
    for s in range(16):
        qx.append(Op(f"ds_read_b128 a[{QF+4*s}:{QF+4*s+3}], v{VT0} offset:{s*1024}", kind="lds", prod=("Q", s)))
    pre[e] = fill[e] + qx; fill[e] = []
    fill[e + 16] += [release(pq), release(pq + 1)]
    e0 = start[("K", 0, 0)] + 15
    im = [Op("s_nop 15")] + max_ops(0) + [Op(f"v_mov_b32 v{VT0}, v{VMX}"), Op("s_nop 1"), Op(f"v_permlane32_swap_b32 v{VT0}, v{VMX}"), Op("s_nop 1"),
          Op(f"v_max_f32 v{VMX}, v{VMX}, v{VT0}"), Op(f"v_mul_f32 v{VM}, s{S_C}, v{VMX}"), Op(f"v_mov_b32 v{VL}, 0")]
    fill[e0] += im
    stubs = []
    for j in range(16):
        pvs = start[("V", j, 0)]
        sm = softmax_ops(j)
        if j < 15:
            qs = start[("K", j+1, 0)]
            i3 = max(i for i, o in enumerate(sm) if o.kind == "cvt3") + 1
            assert cfg.cut >= i3 + 2
            spread(sm[:cfg.cut], qs, qs + 16)
            spread(sm[cfg.cut:], pvs, pvs + 3)
            mo = max_ops(j+1) + [Op(f"v_fma_f32 v{VT0}, v{VMX}, s{S_C}, -v{VM}"), Op(f"v_cmp_lt_f32 vcc, 0x41000000, v{VT0}")]
            spread(mo, pvs + 6, pvs + 13)
            fill[pvs + 15].append(Op(f"s_cbranch_vccnz L_stub_{j}")); fill[pvs + 15].append(Op(f"L_back_{j}:"))
            stubs.append(j)
        else:
            fill[pvs - 1] += sm + [Op("s_nop 1")]
    e = start[("WO", 0, 0)] - 1
    po = P[("OX", 0)]
    T = S0
    fill[e - 5] += [Op(f"s_lshl_b32 s6, s{S_W}, 2"), Op(f"v_add_u32 v{S0+8}, s6, v{VLA}"), Op(f"v_xor_b32 v{S0+9}, 8, v{S0+8}")]
    fill[e - 4] += [Op(f"ds_read_b32 v{S0+10}, v{S0+8} offset:{LM + po*4}", kind="lds", prod=("flo1",)), Op(f"ds_read_b32 v{S0+11}, v{S0+9} offset:{LM + po*4}", kind="lds", prod=("flo2",))]
    WA, RA, MA = S0+10, S0+11, S0+12
    ox = [Op("; need o", kind="use", cons=[("flo1",), ("flo2",)], prod=[po+i for i in range(4)]),
          Op(f"v_mov_b32 v{VT0}, v{VL}"), Op(f"v_add_u32 v{WA}, v{WA}, v{VST}"), Op(f"v_add_u32 v{RA}, v{RA}, v{VST}"), Op(f"v_permlane32_swap_b32 v{VT0}, v{VL}"),
          Op(f"s_lshl_b32 s6, s{S_W}, 9"), Op(f"s_add_u32 s6, s6, {MLX}"), Op(f"v_lshrrev_b32 v{MA}, 1, v{VST}"), Op(f"v_add_u32 v{MA}, s6, v{MA}"),
          Op(f"v_add_f32 v{VL}, v{VL}, v{VT0}"), Op("s_nop 2"),
          Op(f"ds_write_b64 v{MA}, v[{VM}:{VM+1}]", kind="lds", prod=("w",)), Op(f"v_xor_b32 v{MA}, 0x400, v{MA}")]
    assert VL == VM + 1
    for i in range(16):
        r = OA + 64 + 4*i
        ox.append(Op(f"ds_write_b128 v{WA}, v[{r}:{r+3}] offset:{i*1024}", kind="lds", prod=("w",)))
    ox += cbar(CB_O1)
    ox.append(Op(f"ds_read_b64 v[{T}:{T+1}], v{MA}", kind="lds", prod=("ml",)))
    for i in range(12):
        r = OA + 64 + 4*i
        ox.append(Op(f"ds_read_b128 v[{r}:{r+3}], v{RA} offset:{i*1024}", kind="lds", prod=("o", i)))
    ox += [Op(f"v_max_f32 v{T+2}, v{T}, v{VM}", kind="use", cons=[("ml",)]), Op(f"v_sub_f32 v{T+4}, v{VM}, v{T+2}"), Op(f"v_sub_f32 v{T+6}, v{T}, v{T+2}"),
           Op(f"v_exp_f32 v{T+4}, v{T+4}"), Op(f"v_exp_f32 v{T+6}, v{T+6}"), Op("s_nop 0"),
           Op(f"v_mul_f32 v{T+3}, v{VL}, v{T+4}"), Op(f"v_fmac_f32 v{T+3}, v{T+1}, v{T+6}"), Op(f"v_rcp_f32 v{T+3}, v{T+3}"), Op("s_nop 0"),
           Op(f"v_mul_f32 v{T+4}, v{T+4}, v{T+3}"), Op(f"v_mul_f32 v{T+6}, v{T+6}, v{T+3}")]
    for i in range(16):
        for k in (0, 2):
            r0 = OA + 4*i + k
            ox.append(Op(f"v_pk_mul_f32 v[{r0}:{r0+1}], v[{r0}:{r0+1}], v[{T+4}:{T+5}] op_sel_hi:[1,0]"))
        for k in (0, 2):
            r0 = OA + 4*i + k
            ox.append(Op(f"v_pk_fma_f32 v[{r0}:{r0+1}], v[{r0+64}:{r0+65}], v[{T+6}:{T+7}], v[{r0}:{r0+1}] op_sel_hi:[1,0,1]", kind="use", cons=[("o", i)]))
        if i < 4:
            r = OA + 64 + 4*(12+i)
            ox.append(Op(f"ds_read_b128 v[{r}:{r+3}], v{RA} offset:{(12+i)*1024}", kind="lds", prod=("o", 12+i)))
        ox.append(Op(f"v_cvt_pk_bf16_f32 v{OA+2*i}, v{OA+4*i}, v{OA+4*i+1}")); ox.append(Op(f"v_cvt_pk_bf16_f32 v{OA+2*i+1}, v{OA+4*i+2}, v{OA+4*i+3}"))
        if i % 2 == 1: ox.append(Op(f"ds_write_b128 v{RA}, v[{OA+2*i-2}:{OA+2*i+1}] offset:{(i//2)*1024}", kind="lds", prod=("w",)))
    ox += cbar(CB_O2)
    ox += [Op(f"s_cmp_eq_u32 s{S_KH}, 0"), Op("s_cselect_b64 s[6:7], -1, 0"), Op(f"v_cndmask_b32 v{T}, v{WA}, v{RA}, s[6:7]"), Op(f"v_cndmask_b32 v{T+1}, v{RA}, v{WA}, s[6:7]")]
    for s in range(16):
        ox.append(Op(f"ds_read_b128 a[{QF+4*s}:{QF+4*s+3}], v{T + s//8} offset:{(s%8)*1024}", kind="lds", prod=("Of", s)))
    ox += [Op(f"s_mov_b32 s{S_G}, s{S_ROT}"), Op(f"v_mov_b32 v{VT0}, 0"), Op(f"global_load_dword v{VMX}, v{VT0}, s[0:1] sc1")]
    pre[e] = fill[e] + [Op("s_nop 3")] + ox; fill[e] = []
    fill[e + 16] += [release(po + i) for i in range(4)]
    def Y(c_): return OA + 64 + 16 * (c_ & 1)
    def ystore(c_):
        seq = [Op(f"s_lshl_b32 s{S_T2}, s{S_G}, 16"), Op(f"s_add_u32 s{S_T2}, s{S_T2}, s{S_YB}")]
        for t in range(2):
            d = S1 + 4 * t + 8 * (c_ & 1); y = Y(c_) + 8 * t
            for i in range(4): seq.append(Op(f"v_cvt_pk_bf16_f32 v{d+i}, v{y+2*i}, v{y+2*i+1}"))
            seq.append(Op(f"buffer_store_dwordx4 v[{d}:{d+3}], v{VST}, {srd(SRD_WS)}, s{S_T2} offen sc1"))
            if t == 0: seq.append(Op(f"s_add_u32 s{S_T2}, s{S_T2}, 16384"))
        seq += [Op(f"s_add_u32 s{S_G}, s{S_G}, 1"), Op(f"s_cmp_eq_u32 s{S_G}, 7"), Op(f"s_cselect_b32 s{S_G}, 0, s{S_G}")]
        return seq
    for c_ in range(7):
        if c_ < 6:
            ys = ystore(c_); st = start[("WO", c_+1, 0)]
            spread(ys[:-3], st + 5, st + 12); fill[st + 13] += ys[-3:]
        else: fill[N-1] += [Op("s_nop 15")] + ystore(c_)

    def reads_for(n):
        m = M[n]; ops = []; fr = FR + 4 * (n % NF)
        if m["ph"] == "QK":
            return [Op(f"ds_read_b128 v[{fr}:{fr+3}], v{VA} offset:{m['s8']*32}", kind="lds", prod=("F", n))]
        for hh in range(2):
            if m["ph"] == "Q": off = m["t"]*8*1088 + hh*512 + m["d"]*64
            elif m["ph"] == "PV": off = m["t"]*4*1088 + hh*512 + m["d"]*64
            else:
                tp = m["tp"] & 7; off = (tp >> 1)*4352 + (tp & 1)*512 + hh*256
            ops.append(Op(f"ds_read_b64_tr_b16 v[{fr+2*hh}:{fr+2*hh+1}], v{VA} offset:{off}", kind="lds", prod=("F", n)))
        return ops
    def mfma(n):
        m = M[n]; fr = FR + 4 * (n % NF); a = f"v[{fr}:{fr+3}]"; cons = [("F", n)]
        if m["ph"] == "Q":
            d = f"v[{OA+16*m['d']}:{OA+16*m['d']+15}]"; xn = 2*m["tt"] + m["t"]; cons.append(("X", xn))
            t = f"{d}, {a}, {xreg(xn)}, {'0' if xn == 0 else d}"
        elif m["ph"] == "QK":
            s = Sreg(m["j"]); d = f"v[{s}:{s+15}]"; sn = m["s8"] + 8*m["half"]; q = QF + 4*sn; cons.append(("Q", sn))
            t = f"{d}, {a}, a[{q}:{q+3}], {'0' if sn == 0 else d}"
        elif m["ph"] == "PV":
            db = m["d"] + 4*m["half"]
            d = f"v[{OA+16*db}:{OA+16*db+15}]"; p = Sreg(m["j"]) + 4*m["t"]
            t = f"{d}, {a}, v[{p}:{p+3}], {'0' if (m['j'] == 0 and m['t'] == 0) else d}"
        else:
            y = Y(m["c"]); d = f"v[{y}:{y+15}]"; o = QF + 4*m["tp"]; cons.append(("Of", m["tp"]))
            t = f"{d}, {a}, a[{o}:{o+3}], {'0' if m['tp'] == 0 else d}"
        return Op("v_mfma_f32_32x32x16_bf16 " + t, kind="use", cons=cons)
    rd = {}
    for n in range(N): rd.setdefault(read_gap(n), []).append(n)
    a0 = start[("K", 0, 0)]; o0 = start[("WO", 0, 0)]
    stamp_at = [-1, 0, 64, 110, 111, a0+15, a0+16+128, a0+16+256, a0+16+384, o0-2, o0-1, N-2, N-1]
    ops = []
    for g in range(-1, N):
        if g >= 0: ops.append(mfma(g))
        ops += pre[g] + post[g]
        for n in rd.get(g, []): ops += reads_for(n)
        ops += fill[g]
        if cfg.stamps and g in stamp_at:
            k = 66 + 2 * stamp_at.index(g)
            ops.append(Op(f"{'s_memrealtime' if cfg.stamps == 1 else 's_memtime'} s[{k}:{k+1}]")); ops.append(Op("s_waitcnt lgkmcnt(0)", kind="drain"))
    import re
    if cfg.fake16:
        new = []; pend = None; cnt = 0
        idxs = [i for i, o in enumerate(ops) if o.text.startswith("v_mfma")]
        ins = {}
        for a, i in enumerate(idxs):
            o = ops[i]
            m_ = re.match(r"v_mfma_f32_32x32x16_bf16 v\[(\d+):\d+\], (\S+), ([av])\[(\d+):\d+\], (\S+)", o.text)
            d, A_, bt, b, c_ = int(m_.group(1)), m_.group(2), m_.group(3), int(m_.group(4)), m_.group(5)
            k = (a % 2) * 8
            b2 = b ^ 4
            def mk(dd, bb): return f"v_mfma_f32_16x16x32_bf16 v[{dd}:{dd+3}], {A_}, {bt}[{bb}:{bb+3}], " + ("0" if (c_ == "0" or (d < 32 and M[a].get("s8") == 1 and M[a].get("half") == 0)) else f"v[{dd}:{dd+3}]")
            o.text = mk(d + k, b)
            nxt = idxs[a+1] if a + 1 < len(idxs) else i + 1
            gap = nxt - i - 1
            ins[i + min(gap // 2, 3)] = Op(mk(d + k + 4, b2))
        for i, o in enumerate(ops):
            new.append(o)
            if i in ins: new.append(ins[i])
        ops = new
    nb = 0; relbar = {}; chkbar = {}
    for o in ops:
        if o.text.startswith("; need"):
            for p_ in o.prod: chkbar.setdefault(p_, nb)
        if o.kind == "rel": relbar[o.prod] = nb + 1
        if o.text == "s_barrier": nb += 1
    SCHED.update(rel=relbar, chk=chkbar, nbar=nb)
    for j in range(4):
        for e in make_table(j, cfg): assert e[4] <= nb, e
    q = []
    for o in ops:
        if o.kind == "lds":
            if len(q) >= 15:
                A("s_waitcnt lgkmcnt(10)"); q = q[-10:]
            q.append(o.prod)
        elif o.kind == "use":
            last = max((i for i, t in enumerate(q) if t in o.cons), default=-1)
            if last >= 0:
                k = len(q) - 1 - last
                A(f"s_waitcnt lgkmcnt({k})"); q = q[last+1:]
        elif o.kind == "drain": q = []
        A(o.text)
    A(f"s_lshl_b32 s6, s{S_W}, 7"); A(f"s_lshl_b32 s7, s{S_H}, 2"); A("s_add_u32 s6, s6, s7"); A(f"s_add_u32 s6, s6, s{S_FB}")
    A("s_waitcnt vmcnt(14)")
    tag_loop(A, "c")
    A("v_mov_b32 v1, 0"); A("s_mov_b64 exec, 1")
    for c_ in range(7):
        A(f"s_waitcnt vmcnt({2*(6-c_) + c_})")
        A(f"buffer_store_dword v{VMX}, v1, {srd(SRD_WS)}, s6 offen offset:{c_*512} sc1")
    A("s_mov_b64 exec, -1")
    A(f"s_add_u32 s{S_G}, s{S_W}, 4"); A(f"s_cmp_eq_u32 s{S_W}, 3"); A("s_cbranch_scc1 L_fin")
    gen_reduce(A, cfg)
    for j in stubs:
        A(f"L_stub_{j}:"); A(f"s_call_b64 s[{S_RET}:{S_RET+1}], L_rescale"); A(f"s_branch L_back_{j}")
    for sl in slow:
        u, p, dst, base = sl[:4]; ar = sl[4] if len(sl) > 4 else VLA
        A(f"L_slow_{u}:")
        if cfg.csleep: A(f"s_sleep {cfg.csleep}")
        A(f"ds_read_b32 v{dst}, v{ar} offset:{base + p*16}"); A(f"s_sub_u32 s{S_BUD}, s{S_BUD}, 1"); A("s_cbranch_scc1 L_abort"); A("s_waitcnt lgkmcnt(0)")
        A(f"v_cmp_eq_u32 s[4:5], 0, v{dst}"); A("s_cmp_lg_u64 s[4:5], 0"); A(f"s_cbranch_scc1 L_slow_{u}"); A(f"s_branch L_sback_{u}")
    A("L_abort:"); A("s_endpgm")
    A("L_rescale:")
    A("s_nop 15")
    A(f"v_mov_b32 v{VT0}, v{VMX}"); A("s_nop 1"); A(f"v_permlane32_swap_b32 v{VT0}, v{VMX}"); A("s_nop 1")
    A(f"v_max_f32 v{VMX}, v{VMX}, v{VT0}"); A(f"v_mul_f32 v{VMX}, s{S_C}, v{VMX}"); A(f"v_max_f32 v{VMX}, v{VMX}, v{VM}")
    A(f"v_sub_f32 v{VT0}, v{VM}, v{VMX}"); A(f"v_exp_f32 v{VT0}, v{VT0}"); A(f"v_mov_b32 v{VM}, v{VMX}")
    A(f"v_mul_f32 v{VL}, v{VL}, v{VT0}")
    for r in range(128): A(f"v_mul_f32 v{OA+r}, v{OA+r}, v{VT0}")
    A("s_nop 1"); A(f"s_setpc_b64 s[{S_RET}:{S_RET+1}]")
    gen_loader(A, cfg)
    A(".p2align 8"); A(".type L_table,@object"); A("L_table:")
    for j in range(4):
        t = [0] * 128
        for e in make_table(j, cfg): t[e[5]] = SLOT0 + e[3]*SLOTSZ
        for i in range(0, 128, 8): A(".long " + ", ".join(f"{x:#x}" for x in t[i:i+8]))
    return L

def gen(cfg):
    out = [HEADER.rstrip()]
    out.append("; @launch grid=(256,1,1) block=(512,1,1) lds=163840")
    out.append('.amdgcn_target "amdgcn-amd-amdhsa--gfx950"'); out.append(".text")
    out += gen_main(cfg)
    out.append('.section .rodata,"a"'); out.append(".p2align 6")
    out.append(f""".amdhsa_kernel {KNAME}
  .amdhsa_next_free_vgpr 256
  .amdhsa_next_free_sgpr 102
  .amdhsa_accum_offset 192
  .amdhsa_group_segment_fixed_size 0
  .amdhsa_kernarg_size 64
  .amdhsa_user_sgpr_count 2
  .amdhsa_user_sgpr_kernarg_segment_ptr 1
  .amdhsa_system_sgpr_workgroup_id_x 1
.end_amdhsa_kernel""")
    return "\n".join(out) + "\n"

if __name__ == "__main__":
    cfg = Cfg()
    for a in sys.argv[2:]:
        k, v = a.split("=")
        setattr(cfg, k, int(v) if v.lstrip("-").isdigit() else v)
    open(sys.argv[1], "w").write(gen(cfg))
```

```python
import math, sys, struct

KNAME = "standalone__gqa_block_cached__near_ridge_kernel"
HEADER = open("standalone__gqa_block_cached__near_ridge.s.ref").read().split("; Override launch")[0]

class Cfg:
    kv_fl = ""
    w_fl = ""
    LA = 4
    FA = 3
    shift = 8
    rot = 1
    stamps = 0
    nodma = 0
    prio = 0
    lsleep = 1
    cut = 46
    maxper = 2
    ampa = -1
    ampb = -1
    ampwg = 77
    fake16 = 0
    room = 7
    force = 0
    first = 2
    token = 1
    lprio = 3
    csleep = 0
    tsleep = 0
    tokat = 15

S0, S1 = 0, 16
FR, NF = 32, 5
VKB, VVB, VA, VF, VLA, VDA, VM, VL, VMX, VT0, VWO, VST = 52, 53, 54, 55, 56, 57, 58, 59, 60, 61, 62, 63
OA = 64
QF = 0
LM, DM, MLX, TOK = 0, 2048, 4096, 2032
SLOT0, SLOTSZ, NSLOT = 7168, 17408, 9
SRD_X, SRD_K, SRD_V, SRD_WQ, SRD_WO, SRD_WS, SRD_OUT = 8, 12, 16, 20, 24, 28, 96
S_W, S_B, S_H, S_QH, S_J = 3, 32, 33, 34, 35
S_QB, S_KH, S_C, S_YB, S_T, S_T2, S_ROT = 36, 37, 38, 39, 42, 43, 44
S_RET = 40
S_G, S_FB, S_BUD = 62, 63, 41
S_RET = 8
FLAG_BASE = 16 << 20
def srd(n): return f"s[{n}:{n+3}]"
def fl(x): return (" " + x) if x else ""

class Op:
    def __init__(self, text, kind="x", prod=None, cons=None):
        self.text, self.kind, self.prod, self.cons = text, kind, prod, cons

ITEMS = []
for i in range(4):
    ITEMS.append(("X", i))
    ITEMS += [("WQ", t) for t in range(4*i, min(4*i+4, 14))]
ITEMS += [("QX", 0), ("QX", 1)]
ATT = [("K", 0)]
for j in range(16):
    if j < 15: ATT.append(("K", j+1))
    ATT.append(("V", j))
for t in ATT: ITEMS += [t + (0,), t + (1,)]
ITEMS += [("OX", i) for i in range(4)]
ITEMS += [("WO", c, hh) for c in range(7) for hh in range(2)]
P = {t: i for i, t in enumerate(ITEMS)}
CB_Q, CB_O1, CB_O2 = 110, 111, 112
TYPES = {"X": 0, "WQ": 1, "K": 2, "V": 3, "WO": 4, "QX": 5, "OX": 5}
NSTATIC = 2

SCHED = {}
def make_table(j, cfg):
    relbar, chkbar = SCHED["rel"], SCHED["chk"]
    key = {}
    for p, t in enumerate(ITEMS):
        k = float(p)
        if t[0] == "X" and t[1] > 0: k -= 2.5
        if t[0] in ("K", "V") and (ATT.index(t[:2]) & 3) == j: k -= cfg.shift + 0.5 - 0.01 * t[2]
        key[t] = max(k, NSTATIC - 0.5 + 0.001 * p) if p >= NSTATIC else k
    order = sorted(ITEMS, key=lambda t: key[t])
    assert order[:NSTATIC] == ITEMS[:NSTATIC]
    occ = [None] * NSLOT
    ent = []
    for t in order:
        free = [s for s in range(NSLOT) if occ[s] is None]
        if free: s = free[0]; early = 0
        else:
            s = min(range(NSLOT), key=lambda s: relbar[P[occ[s]]]); early = relbar[P[occ[s]]]
        occ[s] = t
        idx = t[1]; half = t[2] if len(t) > 2 else 0
        ent.append([TYPES[t[0]], idx, half, s, early, P[t], chkbar[P[t]]])
    for a in range(1, len(ent)): ent[a][4] = max(ent[a][4], ent[a-1][4])
    late = 10**9
    for a in range(len(ent) - 1, -1, -1):
        assert ent[a][4] <= ent[a][6] - 1 or ent[a][0] == 5 and ent[a][4] <= ent[a][6], ("deadlock", j, ent[a], ITEMS[ent[a][5]])
        late = min(late, ent[a][6]); ent[a][6] = max(late - cfg.force, 0)
    return ent
def pack(e):
    ty, idx, half, s, early, p, late = e
    return ty | (idx << 3) | (half << 7) | (s << 8) | (p << 12), early | (late << 8)

def mk_srd(A, n, lo, size):
    A(f"s_mov_b32 s{n}, s{lo}"); A(f"s_and_b32 s{n+1}, s{lo+1}, 0xffff"); A(f"s_mov_b32 s{n+2}, {size:#x}"); A(f"s_mov_b32 s{n+3}, 0x20000")

def stamp_tail(A, cfg, lab):
    if not cfg.stamps: return
    A("s_waitcnt vmcnt(0)"); A("s_memrealtime s[94:95]" if cfg.stamps == 1 else "s_memtime s[94:95]"); A("s_waitcnt lgkmcnt(0)")
    if cfg.ampa >= 0:
        A(f"s_cmp_lg_u32 s2, {cfg.ampwg}"); A("s_cbranch_scc1 L_noamp"); A(f"s_cmp_lg_u32 s{S_W}, 0"); A("s_cbranch_scc1 L_noamp")
        if cfg.ampa == 99:
            A("v_readfirstlane_b32 s7, v4"); A("s_nop 3"); A(f"s_sub_u32 s6, s{64+2*cfg.ampb}, s7"); A("s_add_u32 s6, s6, 300")
        else: A(f"s_sub_u32 s6, s{64+2*cfg.ampb}, s{64+2*cfg.ampa}")
        A("s_lshl_b32 s6, s6, 2"); A("s_min_u32 s6, s6, 30000"); A("s_add_u32 s6, s6, s94")
        A("L_amp:"); A("s_memrealtime s[4:5]"); A("s_waitcnt lgkmcnt(0)"); A("s_sub_u32 s7, s4, s6"); A("s_cmp_lt_i32 s7, 0"); A("s_cbranch_scc1 L_amp")
        A("L_noamp:")
    A(f"s_lshl_b32 s{S_T}, s2, 3"); A(f"s_add_u32 s{S_T}, s{S_T}, s{S_W}"); A(f"s_lshl_b32 s{S_T}, s{S_T}, 7"); A(f"s_add_u32 s{S_T}, s{S_T}, {64<<20}")
    A("s_mov_b64 exec, -1")
    if cfg.stamps == 2: A(f"s_sub_u32 s92, 0x20000, s{S_BUD}"); A("s_mov_b32 s93, 0")
    for i in range(32): A(f"v_mov_b32 v{64+i}, s{64+i}")
    A("v_mov_b32 v1, 0"); A("s_mov_b64 exec, 1")
    for i in range(8): A(f"buffer_store_dwordx4 v[{64+4*i}:{67+4*i}], v1, {srd(SRD_WS)}, s{S_T} offen offset:{16*i}")

def tag_loop(A, lab):
    A(f"L_tag_{lab}:")
    A(f"v_cmp_ne_u32 vcc, 0, v{VMX}"); A(f"s_sub_u32 s{S_BUD}, s{S_BUD}, 1"); A(f"s_cbranch_scc1 L_tagok_{lab}"); A("s_nop 2"); A(f"s_cbranch_vccnz L_tagok_{lab}")
    A("v_mov_b32 v1, 0"); A(f"global_load_dword v{VMX}, v1, s[0:1] sc1"); A("s_waitcnt vmcnt(0)"); A(f"s_branch L_tag_{lab}")
    A(f"L_tagok_{lab}:")

def gen_reduce(A, cfg):
    A("L_reduce:")
    A("v_mbcnt_lo_u32_b32 v2, -1, 0"); A("v_mbcnt_hi_u32_b32 v2, -1, v2")
    tag_loop(A, "r")
    A(f"v_mov_b32 v4, v{VMX}")
    A(f"s_lshr_b32 s4, s{S_H}, 3"); A(f"s_bfe_u32 s5, s{S_H}, 0x10002"); A(f"s_bfe_u32 s6, s{S_H}, 0x10001"); A(f"s_and_b32 s7, s{S_H}, 1")
    A("s_lshl_b32 s45, s5, 1"); A("s_add_u32 s45, s45, s4"); A(f"s_lshl_b32 s46, s{S_G}, 2"); A("s_add_u32 s45, s45, s46"); A("s_lshl_b32 s45, s45, 7"); A(f"s_add_u32 s45, s45, s{S_FB}")
    A(f"s_add_u32 s46, s{S_G}, s{S_ROT}"); A("s_sub_u32 s47, s46, 7"); A("s_cmp_ge_u32 s46, 7"); A("s_cselect_b32 s46, s47, s46")
    A(f"s_lshl_b32 s47, s{S_B}, 1"); A(f"s_add_u32 s47, s47, s{S_QH}"); A("s_lshl_b32 s47, s47, 1"); A("s_add_u32 s47, s47, s4")
    A("s_lshl_b32 s46, s46, 1"); A("s_add_u32 s46, s46, s5"); A("s_lshl_b32 s46, s46, 1"); A("s_add_u32 s46, s46, s6")
    A("s_mul_i32 s48, s47, 28"); A("s_add_u32 s48, s48, s46"); A("s_lshl_b32 s48, s48, 14"); A("s_lshl_b32 s49, s7, 9"); A("s_add_u32 s48, s48, s49")
    A(f"s_mul_i32 s50, s47, {32*896}"); A("s_lshl_b32 s46, s46, 5"); A("s_add_u32 s50, s50, s46"); A("s_lshl_b32 s49, s7, 4"); A("s_add_u32 s50, s50, s49")
    A("v_and_b32 v5, 15, v2"); A("v_lshlrev_b32 v5, 2, v5")
    A("v_and_b32 v6, 31, v2"); A("v_lshrrev_b32 v7, 5, v2"); A("v_lshlrev_b32 v8, 4, v6"); A("v_lshl_add_u32 v8, v7, 13, v8")
    A("v_mul_u32_u24 v9, 896, v6")
    A("s_add_u32 s49, s48, 4096")
    A("s_mov_b32 s51, 0")
    A("s_waitcnt lgkmcnt(0)")
    A("L_rpoll:")
    A(f"buffer_load_dword v10, v5, {srd(SRD_WS)}, s45 offen sc1")
    A("s_add_u32 s51, s51, 1")
    A("s_waitcnt vmcnt(0)")
    A("v_cmp_ne_u32 vcc, v10, v4")
    A("s_cmp_gt_u32 s51, 0x8000"); A("s_cbranch_scc1 L_rgo")
    A("s_cbranch_vccz L_rgo")
    A("s_sleep 1"); A("s_branch L_rpoll")
    A("L_rgo:")
    if cfg.stamps == 1: A("s_memrealtime s[92:93]")
    for p in range(8):
        A(f"buffer_load_dwordx4 v[{16+4*p}:{19+4*p}], v8, {srd(SRD_WS)}, s{48 + p//4} offen offset:{(p%4)*1024} sc1")
    for p in range(8):
        A(f"s_waitcnt vmcnt({7-p})")
        for i in range(4):
            if p == 0:
                A(f"v_lshlrev_b32 v{48+2*i}, 16, v{16+i}"); A(f"v_and_b32 v{49+2*i}, 0xffff0000, v{16+i}")
            else:
                A(f"v_lshlrev_b32 v10, 16, v{16+4*p+i}"); A(f"v_and_b32 v11, 0xffff0000, v{16+4*p+i}")
                A(f"v_add_f32 v{48+2*i}, v{48+2*i}, v10"); A(f"v_add_f32 v{49+2*i}, v{49+2*i}, v11")
    for i in range(8): A(f"v_mov_b32 v{56+i}, v{48+i}")
    A("s_nop 1")
    for i in range(8): A(f"v_permlane32_swap_b32 v{48+i}, v{56+i}")
    A("s_nop 1")
    for i in range(8): A(f"v_add_f32 v{48+i}, v{48+i}, v{56+i}")
    for i in range(4): A(f"v_cvt_pk_bf16_f32 v{16+i}, v{48+2*i}, v{49+2*i}")
    A("s_mov_b32 exec_hi, 0")
    A(f"buffer_store_dwordx4 v[16:19], v9, {srd(SRD_OUT)}, s50 offen")
    A("L_fin:")
    stamp_tail(A, cfg, "r")
    A("s_endpgm")

def gen_loader(A, cfg):
    LW, XB, KVB, WQB, WOB, E, I, SL, KB, E2, KM, VMo = 45, 46, 47, 60, 61, 68, 69, 72, 70, 71, 66, 67
    VOX, VOWQ, VOK, VOV, VOWO, VTAB, VFL = 32, 36, 40, 44, 48, 22, 26
    IDXs, HALF = 76, 77
    NB = SCHED["nbar"]
    A("L_loader:")
    if cfg.lprio: A(f"s_setprio {cfg.lprio}")
    A(f"s_sub_u32 s{LW}, s{S_W}, 4")
    A("s_getpc_b64 s[74:75]"); A("L_pc:"); A("s_add_u32 s74, s74, L_table-L_pc"); A("s_addc_u32 s75, s75, 0")
    A(f"s_lshl_b32 s6, s{S_J}, 9"); A("v_lshlrev_b32 v9, 4, v4"); A("v_add_u32 v9, s6, v9")
    A("v_lshrrev_b32 v5, 3, v2"); A("v_and_b32 v6, 7, v2"); A("v_lshlrev_b32 v6, 4, v6")
    A(f"v_mul_u32_u24 v{VOX}, {8*896}, v5"); A(f"v_add_u32 v{VOX}, v{VOX}, v6")
    A(f"v_lshlrev_b32 v8, 4, v4"); A(f"v_lshl_add_u32 v{VOWQ}, v3, 15, v8")
    A(f"s_lshl_b32 s{XB}, s{S_B}, 1"); A(f"s_add_u32 s{XB}, s{XB}, s{S_QH}"); A(f"s_lshl_b32 s{XB}, s{XB}, 4"); A(f"s_and_b32 s6, s{LW}, 1"); A(f"s_add_u32 s{XB}, s{XB}, s6"); A(f"s_mul_i32 s{XB}, s{XB}, {4*896}")
    A(f"s_lshl_b32 s{WQB}, s{LW}, 16"); A(f"s_lshl_b32 s6, s{S_H}, 9"); A(f"s_add_u32 s{WQB}, s{WQB}, s6")
    A(f"s_mul_i32 s{KM}, s{LW}, {4*1040}"); A(f"s_mul_i32 s{VMo}, s{LW}, {4*1088}")
    A(f"s_lshl_b32 s{KVB}, s{S_B}, 3"); A(f"s_add_u32 s{KVB}, s{KVB}, s4"); A(f"s_lshl_b32 s{KVB}, s{KVB}, 19")
    A(f"s_lshl_b32 s6, s{LW}, 11"); A(f"s_add_u32 s81, s{KVB}, s6")
    A(f"s_lshl_b32 s6, s{LW}, 13"); A(f"s_add_u32 s82, s{KVB}, s6"); A(f"s_lshr_b32 s6, s{LW}, 1"); A("s_lshl_b32 s6, s6, 8"); A("s_add_u32 s82, s82, s6")
    A(f"s_lshl_b32 s{WOB}, s{S_H}, 3"); A(f"s_add_u32 s{WOB}, s{WOB}, s{LW}"); A(f"s_mul_i32 s{WOB}, s{WOB}, {32*896}")
    A("v_and_b32 v8, 15, v2"); A("v_lshlrev_b32 v8, 4, v8")
    A(f"v_lshl_add_u32 v{VOK}, v7, 13, v8"); A(f"v_lshl_add_u32 v{VOV}, v7, 11, v8")
    A(f"v_mul_u32_u24 v{VOWO}, {4*896}, v5"); A(f"v_add_u32 v{VOWO}, v{VOWO}, v6")
    for vo, ds, st in ((VOX, 896, 1040), (VOWQ, 8192, 1088), (VOK, 512, 1040), (VOV, 512, 1088), (VOWO, 896, 1088)):
        for ii in (3, 2, 1, 0): A(f"v_add_u32 v{vo+ii}, {4096 + ii*(ds-st)}, v{vo}")
    if cfg.stamps == 1: A("s_memrealtime s[68:69]")
    A("s_waitcnt lgkmcnt(0)")
    if cfg.stamps == 1: A("s_memrealtime s[70:71]")
    for n, lo, size in ((SRD_X, 48, 8*128*448*2), (SRD_WQ, 54, 448*4096*2), (SRD_K, 50, 32 << 20), (SRD_V, 52, 32 << 20), (SRD_WO, 56, 4096*448*2)):
        A(f"s_sub_u32 s{n}, s{lo}, 4096"); A(f"s_subb_u32 s{n+1}, s{lo+1}, 0"); A(f"s_and_b32 s{n+1}, s{n+1}, 0xffff"); A(f"s_mov_b32 s{n+2}, {size+4096:#x}"); A(f"s_mov_b32 s{n+3}, 0x20000")
    mk_srd(A, SRD_WS, 58, 256 << 20); mk_srd(A, SRD_OUT, 100, 8*128*448*2)
    A(f"s_mov_b32 s84, s{S_ROT}")
    def emit(e):
        ty, idx, half, sl = e[0], e[1], e[2], SLOT0 + e[3]*SLOTSZ
        if ty == 5: return 0
        if ty == 0:
            A(f"s_cmp_ge_u32 s{LW}, 2"); A(f"s_cselect_b32 s6, s{84+2*idx+1}, s{84+2*idx}"); A("s_lshl_b32 s6, s6, 7"); A(f"s_add_u32 m0, s{KM}, {sl}"); A(f"s_add_u32 s6, s6, s{XB}")
            st, vo, sr, f = 1040, VOX, SRD_X, cfg.w_fl
        elif ty == 1:
            A(f"s_lshl_b32 s6, s{84+(idx>>1)}, 19"); A(f"s_add_u32 s6, s6, s{WQB}"); A(f"s_add_u32 m0, s{VMo}, {sl}"); A(f"s_add_u32 s6, s6, {(idx&1) << 18}")
            st, vo, sr, f = 1088, VOWQ, SRD_WQ, cfg.w_fl
        elif ty == 2:
            A(f"s_add_u32 m0, s{KM}, {sl}"); A(f"s_add_u32 s6, s81, {idx*32768 + half*256}")
            st, vo, sr, f = 1040, VOK, SRD_K, cfg.kv_fl
        elif ty == 3:
            A(f"s_add_u32 m0, s{VMo}, {sl}"); A(f"s_add_u32 s6, s{82 if half == 0 else 83}, {idx*32768}")
            st, vo, sr, f = 1088, VOV, SRD_V, cfg.kv_fl
        else:
            A(f"s_lshl_b32 s6, s{84+idx}, 7"); A(f"s_add_u32 s6, s6, s{WOB}"); A(f"s_add_u32 m0, s{VMo}, {sl}"); A(f"s_add_u32 s6, s6, {half*128*896}")
            st, vo, sr, f = 1088, VOWO, SRD_WO, cfg.w_fl
        if cfg.nodma and ty in (2, 3, 4): return 0
        for ii in range(4):
            A(f"buffer_load_dwordx4 v{vo+ii}, {srd(sr)}, s6 offen offset:{ii*st}{fl(f)} lds")
        return 4
    for g in range(1, 8):
        A(f"s_add_u32 s{84+g}, s{83+g}, 1"); A(f"s_cmp_eq_u32 s{84+g}, 7"); A(f"s_cselect_b32 s{84+g}, 0, s{84+g}")
    A("s_xor_b32 s83, s82, 0x100")
    A("s_mov_b32 m0, 0"); A("s_mov_b32 exec_hi, 0"); A("global_load_lds_dwordx4 v9, s[74:75]"); A("s_mov_b32 exec_hi, -1")
    for j in range(1, 4):
        A(f"s_cmp_eq_u32 s{S_J}, {j}"); A(f"s_cbranch_scc1 L_ld{j}")
    chk = SCHED["chk"]
    for j in range(4):
        A(f"L_ld{j}:")
        tab = make_table(j, cfg); q = ["tab"]; pos = 0
        for k in range(NB):
            n = 0
            while pos < len(tab) and tab[pos][4] <= k and (n < (cfg.first if k == 0 else cfg.maxper) or tab[pos][6] <= k + 1):
                c = emit(tab[pos]); q += [tab[pos][5]] * c; pos += 1
                if c: n += 1
            need = [p for p in chk if chk[p] == k + 1] + (["tab"] if k == 0 else [])
            for p in need: assert p == "tab" or ITEMS[p][0] in ("QX", "OX") or p in [e[5] for e in tab[:pos]], (j, k, p)
            last = max((i for i, t in enumerate(q) if t in need), default=-1)
            if cfg.stamps == 1 and k == 0: A("s_memrealtime s[72:73]")
            if last >= 0:
                kk = len(q) - 1 - last; assert kk <= 63
                A(f"s_waitcnt vmcnt({kk})"); del q[:last+1]
            if cfg.stamps == 1 and k in (0, 2): A(f"s_memrealtime s[{76+k}:{77+k}]")
            A("s_barrier")
        assert pos == len(tab)
        if j < 3: A("s_branch L_ldone")
    A("L_ldone:")
    A(f"s_mov_b32 s{S_G}, s{LW}")
    A(f"v_mov_b32 v{VMX}, 0")
    A("s_branch L_reduce")

def gen_main(cfg):
    L = []; A = L.append
    A(f".globl {KNAME}"); A(".p2align 8"); A(f".type {KNAME},@function"); A(f"{KNAME}:")
    A("s_cmp_lt_u32 s2, 256"); A("s_cbranch_scc1 L_main_go"); A("s_endpgm"); A("L_main_go:")
    if cfg.stamps: A("s_memrealtime s[64:65]" if cfg.stamps == 1 else "s_memtime s[64:65]")
    A("s_load_dwordx8 s[48:55], s[0:1], 0")
    A("s_load_dwordx2 s[56:57], s[0:1], 32")
    A("s_load_dwordx2 s[58:59], s[0:1], 56")
    A("s_load_dwordx2 s[100:101], s[0:1], 40")
    A("s_load_dwordx2 s[0:1], s[0:1], 48")
    A("v_lshrrev_b32 v1, 6, v0"); A("v_and_b32 v2, 63, v0")
    A(f"v_readfirstlane_b32 s{S_W}, v1")
    A("s_and_b32 s4, s2, 7"); A("s_lshr_b32 s5, s2, 3")
    A(f"s_lshr_b32 s{S_B}, s5, 2"); A(f"s_and_b32 s{S_J}, s5, 3")
    A(f"s_and_b32 s6, s{S_J}, 1"); A(f"s_lshl_b32 s{S_H}, s4, 1"); A(f"s_add_u32 s{S_H}, s{S_H}, s6")
    A(f"s_lshr_b32 s{S_QH}, s{S_J}, 1")
    A(f"s_lshl_b32 s{S_ROT}, s{S_B}, 1"); A(f"s_add_u32 s{S_ROT}, s{S_ROT}, s{S_QH}")
    A(f"s_lshl_b32 s{S_FB}, s{S_ROT}, 12"); A(f"s_add_u32 s{S_FB}, s{S_FB}, {FLAG_BASE}")
    if cfg.rot:
        for _ in range(2):
            A(f"s_sub_u32 s6, s{S_ROT}, 7"); A(f"s_cmp_ge_u32 s{S_ROT}, 7"); A(f"s_cselect_b32 s{S_ROT}, s6, s{S_ROT}")
    else: A(f"s_mov_b32 s{S_ROT}, 0")
    A("v_lshrrev_b32 v3, 5, v2"); A("v_and_b32 v4, 31, v2"); A("v_lshrrev_b32 v7, 4, v2")
    A(f"s_mov_b32 s{S_BUD}, 0x20000")
    A(f"s_cmp_ge_u32 s{S_W}, 4"); A("s_cbranch_scc1 L_loader")
    A("v_mov_b32 v20, 0"); A("s_waitcnt lgkmcnt(0)")
    mk_srd(A, SRD_WS, 58, 256 << 20); mk_srd(A, SRD_OUT, 100, 8*128*448*2)
    A(f"s_add_u32 s6, s2, s{S_W}"); A("s_cmp_lg_u32 s6, 0"); A("s_cbranch_scc1 L_notag")
    A("s_memrealtime s[6:7]"); A("s_waitcnt lgkmcnt(0)"); A("s_or_b32 s6, s6, 1"); A("v_mov_b32 v9, s6")
    A("global_store_dword v20, v9, s[0:1] sc1")
    A("L_notag:")
    if cfg.prio: A(f"s_setprio {cfg.prio}")
    A(f"s_and_b32 s{S_QB}, s{S_W}, 1"); A(f"s_lshr_b32 s{S_KH}, s{S_W}, 1")
    c = math.log2(math.e) / 16.0
    A(f"s_mov_b32 s{S_C}, {struct.unpack('<I', struct.pack('<f', c))[0]:#x}")
    A(f"s_lshl_b32 s{S_YB}, s{S_B}, 1"); A(f"s_add_u32 s{S_YB}, s{S_YB}, s{S_QH}"); A(f"s_lshl_b32 s{S_YB}, s{S_YB}, 1"); A(f"s_add_u32 s{S_YB}, s{S_YB}, s{S_QB}")
    A(f"s_mul_i32 s{S_YB}, s{S_YB}, 28"); A(f"s_lshl_b32 s6, s{S_KH}, 1"); A(f"s_add_u32 s{S_YB}, s{S_YB}, s6"); A(f"s_lshl_b32 s{S_YB}, s{S_YB}, 4")
    A(f"s_add_u32 s{S_YB}, s{S_YB}, s{S_H}"); A(f"s_lshl_b32 s{S_YB}, s{S_YB}, 10")
    A(f"v_lshlrev_b32 v{VST}, 4, v2")
    A("v_bfe_u32 v12, v2, 2, 2"); A("v_and_b32 v13, 3, v2"); A("v_and_b32 v14, 1, v7")
    A(f"v_mov_b32 v{VLA}, 0")
    A("v_and_b32 v15, 1, v13"); A("v_lshlrev_b32 v15, 4, v15"); A("v_lshrrev_b32 v16, 1, v13"); A("v_lshl_add_u32 v15, v16, 3, v15"); A("v_lshl_add_u32 v15, v14, 5, v15")
    A("v_mul_u32_u24 v16, 1088, v12")
    VWQ, VXB = 20, 21
    A(f"v_mul_u32_u24 v{VWQ}, {4*1088}, v3"); A(f"v_add3_u32 v{VWQ}, v{VWQ}, v16, v15"); A(f"s_lshl_b32 s6, s{S_KH}, 8"); A(f"v_add_u32 v{VWQ}, s6, v{VWQ}")
    A(f"v_lshl_add_u32 v{VVB}, v3, 8, v16"); A(f"v_lshl_add_u32 v{VVB}, v14, 5, v{VVB}"); A(f"v_lshl_add_u32 v{VVB}, v13, 3, v{VVB}")
    A(f"s_mul_i32 s6, s{S_KH}, {8*1088}"); A(f"v_add_u32 v{VVB}, s6, v{VVB}")
    A(f"v_and_b32 v{VKB}, 15, v2"); A(f"v_mul_u32_u24 v{VKB}, 1040, v{VKB}"); A(f"v_lshl_add_u32 v{VKB}, v14, 8, v{VKB}"); A(f"v_lshl_add_u32 v{VKB}, v3, 4, v{VKB}")
    A(f"s_lshl_b32 s6, s{S_KH}, 9"); A(f"v_add_u32 v{VKB}, s6, v{VKB}")
    A(f"v_lshl_add_u32 v{VWO}, v3, 7, v16"); A(f"v_add_u32 v{VWO}, v{VWO}, v15"); A(f"s_lshl_b32 s6, s{S_KH}, 6"); A(f"v_add_u32 v{VWO}, s6, v{VWO}")
    A(f"v_and_b32 v{VXB}, 7, v2"); A(f"v_mul_u32_u24 v{VXB}, 1040, v{VXB}"); A("v_bfe_u32 v17, v2, 3, 2"); A(f"v_lshl_add_u32 v{VXB}, v17, 7, v{VXB}"); A(f"v_lshl_add_u32 v{VXB}, v3, 4, v{VXB}")
    A(f"s_lshl_b32 s6, s{S_QB}, 9"); A(f"v_add_u32 v{VXB}, s6, v{VXB}")

    def xreg(n):
        k = n % 16
        return f"v[{128+4*k}:{131+4*k}]"
    M = []
    for tt in range(14):
        for t in range(2):
            for d in range(4): M.append(dict(ph="Q", tt=tt, t=t, d=d, item=("WQ", tt)))
    for t_ in ATT:
        for half in range(2):
            if t_[0] == "K":
                for s8 in range(8): M.append(dict(ph="QK", j=t_[1], s8=s8, half=half, item=t_ + (half,)))
            else:
                for t in range(2):
                    for d in range(4): M.append(dict(ph="PV", j=t_[1], t=t, d=d, half=half, item=t_ + (half,)))
    for c_ in range(7):
        for tp in range(16): M.append(dict(ph="O", c=c_, tp=tp, item=("WO", c_, tp >> 3)))
    N = len(M); assert N == 736
    start = {}
    for n, m in enumerate(M): start.setdefault(m["item"], n)
    LA, FA = cfg.LA, cfg.FA
    fill = {n: [] for n in range(-1, N)}
    pre = {n: [] for n in range(-1, N)}
    hard = {0, start[("K", 0, 0)], start[("WO", 0, 0)]}
    slow = []
    uid = [0]
    def flag_read(p, dst=VF, base=LM):
        return Op(f"ds_read_b32 v{dst}, v{VLA} offset:{base + p*4}", kind="lds", prod=("fl", p, base))
    def flag_check(p, dst=VF, base=LM):
        return [Op(f"; need {p}", kind="use", cons=[("fl", p, base)], prod=[p])]
    def release(p): return Op(f"; free {p}", kind="rel", prod=p)
    def cbar(k): return [Op("s_waitcnt lgkmcnt(0)", kind="drain"), Op("s_barrier")]
    basereg = {"WQ": VWQ, "K": VKB, "V": VVB, "WO": VWO}
    def lo_gap(n):
        hs = max(h for h in hard if h <= n)
        return hs - 1
    def read_gap(n): return max(n - LA, lo_gap(n))
    LASTBAR = len(ITEMS) - 1 - NSLOT + 4
    post = {n: [] for n in range(-1, N)}
    for t in ITEMS:
        if t not in start: continue
        s = start[t]; g = read_gap(s); gf = max(g - FA, lo_gap(s))
        (post if gf == g else fill)[gf].append(flag_read(P[t]))
        post[g] += ([] if s in hard else [Op("s_barrier")]) + flag_check(P[t]) + [Op(f"v_add_u32 v{VA}, v{VF}, v{basereg[t[0]]}")]
        fill[s + 7].append(release(P[t]))
    for i in range(4):
        s = start[("WQ", 4*i)]
        ops = [flag_read(P[("X", i)], VT0)] + flag_check(P[("X", i)], VT0) + [Op(f"v_add_u32 v{VT0}, v{VT0}, v{VXB}")]
        rds = []
        for k in range(8 if i < 3 else 4):
            rds.append(Op(f"ds_read_b128 {xreg(8*i+k)}, v{VT0} offset:{(k//4)*8320 + (k%4)*32}", kind="lds", prod=("X", 8*i+k)))
        if i == 0:
            pre[-1] += [Op("s_barrier")] + ops + rds
            fill[5].append(release(P[("X", i)]))
        else:
            fill[s - 16].append(ops[0]); fill[s - 13] += ops[1:]
            for k, r in enumerate(rds): fill[s - 13 + k // 2].append(r)
            fill[s - 2].append(release(P[("X", i)]))
    def Sreg(j): return S0 if j % 2 == 0 else S1
    def spread(ops, a, b):
        k = b - a
        for i, o in enumerate(ops): fill[a + (i * k) // len(ops)].append(o)
    def softmax_ops(j):
        s = Sreg(j); seq = []
        for r in range(16 + 3):
            if r < 16: seq.append(Op(f"v_fma_f32 v{s+r}, v{s+r}, s{S_C}, -v{VM}"))
            if 0 <= r - 1 < 16: seq.append(Op(f"v_exp_f32 v{s+r-1}, v{s+r-1}"))
            if 0 <= r - 3 < 16:
                q = r - 3
                seq.append(Op(f"v_add_f32 v{VL}, v{VL}, v{s+q}"))
                if q % 2 == 1: seq.append(Op(f"v_cvt_pk_bf16_f32 v{s + q//2}, v{s+q-1}, v{s+q}", kind="cvt%d" % (q // 2)))
        return seq
    def max_ops(j):
        s = Sreg(j)
        seq = [Op(f"v_max3_f32 v{VMX}, v{s}, v{s+1}, v{s+2}"), Op(f"v_max3_f32 v{VT0}, v{s+3}, v{s+4}, v{s+5}")]
        seq += [Op(f"v_max3_f32 v{VMX}, v{VMX}, v{s+6}, v{s+7}"), Op(f"v_max3_f32 v{VT0}, v{VT0}, v{s+8}, v{s+9}")]
        seq += [Op(f"v_max3_f32 v{VMX}, v{VMX}, v{s+10}, v{s+11}"), Op(f"v_max3_f32 v{VT0}, v{VT0}, v{s+12}, v{s+13}")]
        seq += [Op(f"v_max3_f32 v{VMX}, v{VMX}, v{s+14}, v{s+15}"), Op(f"v_max_f32 v{VMX}, v{VMX}, v{VT0}")]
        return seq
    e = start[("K", 0, 0)] - 1
    pq = P[("QX", 0)]
    fill[e - 4] += [Op(f"s_lshl_b32 s6, s{S_QB}, 2"), Op(f"v_add_u32 v{VMX}, s6, v{VLA}")]
    fill[e - 3].append(Op(f"ds_read_b32 v{VT0}, v{VMX} offset:{LM + pq*4}", kind="lds", prod=("flq",)))
    qx = [Op("; need q", kind="use", cons=[("flq",)], prod=[pq, pq+1]), Op("s_nop 2"),
          Op(f"v_add_u32 v{VT0}, v{VT0}, v{VST}"), Op(f"s_lshl_b32 s7, s{S_KH}, 13"), Op(f"v_add_u32 v{VMX}, s7, v{VT0}"), Op("s_nop 5")]
    for n in range(32):
        qx.append(Op(f"v_cvt_pk_bf16_f32 v{OA+n}, v{OA+2*n}, v{OA+2*n+1}"))
        if n % 4 == 3: qx.append(Op(f"ds_write_b128 v{VMX}, v[{OA+n-3}:{OA+n}] offset:{(n//4)*1024}", kind="lds", prod=("w",)))
    qx += cbar(CB_Q)
    for s in range(16):
        qx.append(Op(f"ds_read_b128 a[{QF+4*s}:{QF+4*s+3}], v{VT0} offset:{s*1024}", kind="lds", prod=("Q", s)))
    pre[e] = fill[e] + qx; fill[e] = []
    fill[e + 16] += [release(pq), release(pq + 1)]
    e0 = start[("K", 0, 0)] + 15
    im = [Op("s_nop 15")] + max_ops(0) + [Op(f"v_mov_b32 v{VT0}, v{VMX}"), Op("s_nop 1"), Op(f"v_permlane32_swap_b32 v{VT0}, v{VMX}"), Op("s_nop 1"),
          Op(f"v_max_f32 v{VMX}, v{VMX}, v{VT0}"), Op(f"v_mul_f32 v{VM}, s{S_C}, v{VMX}"), Op(f"v_mov_b32 v{VL}, 0")]
    fill[e0] += im
    stubs = []
    for j in range(16):
        pvs = start[("V", j, 0)]
        sm = softmax_ops(j)
        if j < 15:
            qs = start[("K", j+1, 0)]
            i3 = max(i for i, o in enumerate(sm) if o.kind == "cvt3") + 1
            assert cfg.cut >= i3 + 2
            spread(sm[:cfg.cut], qs, qs + 16)
            spread(sm[cfg.cut:], pvs, pvs + 3)
            mo = max_ops(j+1) + [Op(f"v_fma_f32 v{VT0}, v{VMX}, s{S_C}, -v{VM}"), Op(f"v_cmp_lt_f32 vcc, 0x41000000, v{VT0}")]
            spread(mo, pvs + 6, pvs + 13)
            fill[pvs + 15].append(Op(f"s_cbranch_vccnz L_stub_{j}")); fill[pvs + 15].append(Op(f"L_back_{j}:"))
            stubs.append(j)
        else:
            fill[pvs - 1] += sm + [Op("s_nop 1")]
    e = start[("WO", 0, 0)] - 1
    po = P[("OX", 0)]
    T = S0
    fill[e - 5] += [Op(f"s_lshl_b32 s6, s{S_W}, 2"), Op(f"v_add_u32 v{S0+8}, s6, v{VLA}"), Op(f"v_xor_b32 v{S0+9}, 8, v{S0+8}")]
    fill[e - 4] += [Op(f"ds_read_b32 v{S0+10}, v{S0+8} offset:{LM + po*4}", kind="lds", prod=("flo1",)), Op(f"ds_read_b32 v{S0+11}, v{S0+9} offset:{LM + po*4}", kind="lds", prod=("flo2",))]
    WA, RA, MA = S0+10, S0+11, S0+12
    ox = [Op("; need o", kind="use", cons=[("flo1",), ("flo2",)], prod=[po+i for i in range(4)]),
          Op(f"v_mov_b32 v{VT0}, v{VL}"), Op(f"v_add_u32 v{WA}, v{WA}, v{VST}"), Op(f"v_add_u32 v{RA}, v{RA}, v{VST}"), Op(f"v_permlane32_swap_b32 v{VT0}, v{VL}"),
          Op(f"s_lshl_b32 s6, s{S_W}, 9"), Op(f"s_add_u32 s6, s6, {MLX}"), Op(f"v_lshrrev_b32 v{MA}, 1, v{VST}"), Op(f"v_add_u32 v{MA}, s6, v{MA}"),
          Op(f"v_add_f32 v{VL}, v{VL}, v{VT0}"), Op("s_nop 2"),
          Op(f"ds_write_b64 v{MA}, v[{VM}:{VM+1}]", kind="lds", prod=("w",)), Op(f"v_xor_b32 v{MA}, 0x400, v{MA}")]
    assert VL == VM + 1
    for i in range(16):
        r = OA + 64 + 4*i
        ox.append(Op(f"ds_write_b128 v{WA}, v[{r}:{r+3}] offset:{i*1024}", kind="lds", prod=("w",)))
    ox += cbar(CB_O1)
    ox.append(Op(f"ds_read_b64 v[{T}:{T+1}], v{MA}", kind="lds", prod=("ml",)))
    for i in range(12):
        r = OA + 64 + 4*i
        ox.append(Op(f"ds_read_b128 v[{r}:{r+3}], v{RA} offset:{i*1024}", kind="lds", prod=("o", i)))
    ox += [Op(f"v_max_f32 v{T+2}, v{T}, v{VM}", kind="use", cons=[("ml",)]), Op(f"v_sub_f32 v{T+4}, v{VM}, v{T+2}"), Op(f"v_sub_f32 v{T+6}, v{T}, v{T+2}"),
           Op(f"v_exp_f32 v{T+4}, v{T+4}"), Op(f"v_exp_f32 v{T+6}, v{T+6}"), Op("s_nop 0"),
           Op(f"v_mul_f32 v{T+3}, v{VL}, v{T+4}"), Op(f"v_fmac_f32 v{T+3}, v{T+1}, v{T+6}"), Op(f"v_rcp_f32 v{T+3}, v{T+3}"), Op("s_nop 0"),
           Op(f"v_mul_f32 v{T+4}, v{T+4}, v{T+3}"), Op(f"v_mul_f32 v{T+6}, v{T+6}, v{T+3}")]
    for i in range(16):
        for k in (0, 2):
            r0 = OA + 4*i + k
            ox.append(Op(f"v_pk_mul_f32 v[{r0}:{r0+1}], v[{r0}:{r0+1}], v[{T+4}:{T+5}] op_sel_hi:[1,0]"))
        for k in (0, 2):
            r0 = OA + 4*i + k
            ox.append(Op(f"v_pk_fma_f32 v[{r0}:{r0+1}], v[{r0+64}:{r0+65}], v[{T+6}:{T+7}], v[{r0}:{r0+1}] op_sel_hi:[1,0,1]", kind="use", cons=[("o", i)]))
        if i < 4:
            r = OA + 64 + 4*(12+i)
            ox.append(Op(f"ds_read_b128 v[{r}:{r+3}], v{RA} offset:{(12+i)*1024}", kind="lds", prod=("o", 12+i)))
        ox.append(Op(f"v_cvt_pk_bf16_f32 v{OA+2*i}, v{OA+4*i}, v{OA+4*i+1}")); ox.append(Op(f"v_cvt_pk_bf16_f32 v{OA+2*i+1}, v{OA+4*i+2}, v{OA+4*i+3}"))
        if i % 2 == 1: ox.append(Op(f"ds_write_b128 v{RA}, v[{OA+2*i-2}:{OA+2*i+1}] offset:{(i//2)*1024}", kind="lds", prod=("w",)))
    ox += cbar(CB_O2)
    ox += [Op(f"s_cmp_eq_u32 s{S_KH}, 0"), Op("s_cselect_b64 s[6:7], -1, 0"), Op(f"v_cndmask_b32 v{T}, v{WA}, v{RA}, s[6:7]"), Op(f"v_cndmask_b32 v{T+1}, v{RA}, v{WA}, s[6:7]")]
    for s in range(16):
        ox.append(Op(f"ds_read_b128 a[{QF+4*s}:{QF+4*s+3}], v{T + s//8} offset:{(s%8)*1024}", kind="lds", prod=("Of", s)))
    ox += [Op(f"s_mov_b32 s{S_G}, s{S_ROT}"), Op(f"v_mov_b32 v{VT0}, 0"), Op(f"global_load_dword v{VMX}, v{VT0}, s[0:1] sc1")]
    pre[e] = fill[e] + [Op("s_nop 3")] + ox; fill[e] = []
    fill[e + 16] += [release(po + i) for i in range(4)]
    def Y(c_): return OA + 64 + 16 * (c_ & 1)
    def ystore(c_):
        seq = [Op(f"s_lshl_b32 s{S_T2}, s{S_G}, 16"), Op(f"s_add_u32 s{S_T2}, s{S_T2}, s{S_YB}")]
        for t in range(2):
            d = S1 + 4 * t + 8 * (c_ & 1); y = Y(c_) + 8 * t
            for i in range(4): seq.append(Op(f"v_cvt_pk_bf16_f32 v{d+i}, v{y+2*i}, v{y+2*i+1}"))
            seq.append(Op(f"buffer_store_dwordx4 v[{d}:{d+3}], v{VST}, {srd(SRD_WS)}, s{S_T2} offen sc1"))
            if t == 0: seq.append(Op(f"s_add_u32 s{S_T2}, s{S_T2}, 16384"))
        seq += [Op(f"s_add_u32 s{S_G}, s{S_G}, 1"), Op(f"s_cmp_eq_u32 s{S_G}, 7"), Op(f"s_cselect_b32 s{S_G}, 0, s{S_G}")]
        return seq
    for c_ in range(7):
        if c_ < 6:
            ys = ystore(c_); st = start[("WO", c_+1, 0)]
            spread(ys[:-3], st + 5, st + 12); fill[st + 13] += ys[-3:]
        else: fill[N-1] += [Op("s_nop 15")] + ystore(c_)

    def reads_for(n):
        m = M[n]; ops = []; fr = FR + 4 * (n % NF)
        if m["ph"] == "QK":
            return [Op(f"ds_read_b128 v[{fr}:{fr+3}], v{VA} offset:{m['s8']*32}", kind="lds", prod=("F", n))]
        for hh in range(2):
            if m["ph"] == "Q": off = m["t"]*8*1088 + hh*512 + m["d"]*64
            elif m["ph"] == "PV": off = m["t"]*4*1088 + hh*512 + m["d"]*64
            else:
                tp = m["tp"] & 7; off = (tp >> 1)*4352 + (tp & 1)*512 + hh*256
            ops.append(Op(f"ds_read_b64_tr_b16 v[{fr+2*hh}:{fr+2*hh+1}], v{VA} offset:{off}", kind="lds", prod=("F", n)))
        return ops
    def mfma(n):
        m = M[n]; fr = FR + 4 * (n % NF); a = f"v[{fr}:{fr+3}]"; cons = [("F", n)]
        if m["ph"] == "Q":
            d = f"v[{OA+16*m['d']}:{OA+16*m['d']+15}]"; xn = 2*m["tt"] + m["t"]; cons.append(("X", xn))
            t = f"{d}, {a}, {xreg(xn)}, {'0' if xn == 0 else d}"
        elif m["ph"] == "QK":
            s = Sreg(m["j"]); d = f"v[{s}:{s+15}]"; sn = m["s8"] + 8*m["half"]; q = QF + 4*sn; cons.append(("Q", sn))
            t = f"{d}, {a}, a[{q}:{q+3}], {'0' if sn == 0 else d}"
        elif m["ph"] == "PV":
            db = m["d"] + 4*m["half"]
            d = f"v[{OA+16*db}:{OA+16*db+15}]"; p = Sreg(m["j"]) + 4*m["t"]
            t = f"{d}, {a}, v[{p}:{p+3}], {'0' if (m['j'] == 0 and m['t'] == 0) else d}"
        else:
            y = Y(m["c"]); d = f"v[{y}:{y+15}]"; o = QF + 4*m["tp"]; cons.append(("Of", m["tp"]))
            t = f"{d}, {a}, a[{o}:{o+3}], {'0' if m['tp'] == 0 else d}"
        return Op("v_mfma_f32_32x32x16_bf16 " + t, kind="use", cons=cons)
    rd = {}
    for n in range(N): rd.setdefault(read_gap(n), []).append(n)
    a0 = start[("K", 0, 0)]; o0 = start[("WO", 0, 0)]
    stamp_at = [-1, 0, 64, 110, 111, a0+15, a0+16+128, a0+16+256, a0+16+384, o0-2, o0-1, N-2, N-1]
    ops = []
    for g in range(-1, N):
        if g >= 0: ops.append(mfma(g))
        ops += pre[g] + post[g]
        for n in rd.get(g, []): ops += reads_for(n)
        ops += fill[g]
        if cfg.stamps and g in stamp_at:
            k = 66 + 2 * stamp_at.index(g)
            ops.append(Op(f"{'s_memrealtime' if cfg.stamps == 1 else 's_memtime'} s[{k}:{k+1}]")); ops.append(Op("s_waitcnt lgkmcnt(0)", kind="drain"))
    import re
    if cfg.fake16:
        new = []; pend = None; cnt = 0
        idxs = [i for i, o in enumerate(ops) if o.text.startswith("v_mfma")]
        ins = {}
        for a, i in enumerate(idxs):
            o = ops[i]
            m_ = re.match(r"v_mfma_f32_32x32x16_bf16 v\[(\d+):\d+\], (\S+), ([av])\[(\d+):\d+\], (\S+)", o.text)
            d, A_, bt, b, c_ = int(m_.group(1)), m_.group(2), m_.group(3), int(m_.group(4)), m_.group(5)
            k = (a % 2) * 8
            b2 = b ^ 4
            def mk(dd, bb): return f"v_mfma_f32_16x16x32_bf16 v[{dd}:{dd+3}], {A_}, {bt}[{bb}:{bb+3}], " + ("0" if (c_ == "0" or (d < 32 and M[a].get("s8") == 1 and M[a].get("half") == 0)) else f"v[{dd}:{dd+3}]")
            o.text = mk(d + k, b)
            nxt = idxs[a+1] if a + 1 < len(idxs) else i + 1
            gap = nxt - i - 1
            ins[i + min(gap // 2, 3)] = Op(mk(d + k + 4, b2))
        for i, o in enumerate(ops):
            new.append(o)
            if i in ins: new.append(ins[i])
        ops = new
    nb = 0; relbar = {}; chkbar = {}
    for o in ops:
        if o.text.startswith("; need"):
            for p_ in o.prod: chkbar.setdefault(p_, nb)
        if o.kind == "rel": relbar[o.prod] = nb + 1
        if o.text == "s_barrier": nb += 1
    SCHED.update(rel=relbar, chk=chkbar, nbar=nb)
    for j in range(4):
        for e in make_table(j, cfg): assert e[4] <= nb, e
    q = []
    for o in ops:
        if o.kind == "lds":
            if len(q) >= 15:
                A("s_waitcnt lgkmcnt(10)"); q = q[-10:]
            q.append(o.prod)
        elif o.kind == "use":
            last = max((i for i, t in enumerate(q) if t in o.cons), default=-1)
            if last >= 0:
                k = len(q) - 1 - last
                A(f"s_waitcnt lgkmcnt({k})"); q = q[last+1:]
        elif o.kind == "drain": q = []
        A(o.text)
    A(f"s_lshl_b32 s6, s{S_W}, 7"); A(f"s_lshl_b32 s7, s{S_H}, 2"); A("s_add_u32 s6, s6, s7"); A(f"s_add_u32 s6, s6, s{S_FB}")
    A("s_waitcnt vmcnt(14)")
    tag_loop(A, "c")
    A("v_mov_b32 v1, 0"); A("s_mov_b64 exec, 1")
    for c_ in range(7):
        A(f"s_waitcnt vmcnt({2*(6-c_) + c_})")
        A(f"buffer_store_dword v{VMX}, v1, {srd(SRD_WS)}, s6 offen offset:{c_*512} sc1")
    A("s_mov_b64 exec, -1")
    A(f"s_add_u32 s{S_G}, s{S_W}, 4"); A(f"s_cmp_eq_u32 s{S_W}, 3"); A("s_cbranch_scc1 L_fin")
    gen_reduce(A, cfg)
    for j in stubs:
        A(f"L_stub_{j}:"); A(f"s_call_b64 s[{S_RET}:{S_RET+1}], L_rescale"); A(f"s_branch L_back_{j}")
    for sl in slow:
        u, p, dst, base = sl[:4]; ar = sl[4] if len(sl) > 4 else VLA
        A(f"L_slow_{u}:")
        if cfg.csleep: A(f"s_sleep {cfg.csleep}")
        A(f"ds_read_b32 v{dst}, v{ar} offset:{base + p*16}"); A(f"s_sub_u32 s{S_BUD}, s{S_BUD}, 1"); A("s_cbranch_scc1 L_abort"); A("s_waitcnt lgkmcnt(0)")
        A(f"v_cmp_eq_u32 s[4:5], 0, v{dst}"); A("s_cmp_lg_u64 s[4:5], 0"); A(f"s_cbranch_scc1 L_slow_{u}"); A(f"s_branch L_sback_{u}")
    A("L_abort:"); A("s_endpgm")
    A("L_rescale:")
    A("s_nop 15")
    A(f"v_mov_b32 v{VT0}, v{VMX}"); A("s_nop 1"); A(f"v_permlane32_swap_b32 v{VT0}, v{VMX}"); A("s_nop 1")
    A(f"v_max_f32 v{VMX}, v{VMX}, v{VT0}"); A(f"v_mul_f32 v{VMX}, s{S_C}, v{VMX}"); A(f"v_max_f32 v{VMX}, v{VMX}, v{VM}")
    A(f"v_sub_f32 v{VT0}, v{VM}, v{VMX}"); A(f"v_exp_f32 v{VT0}, v{VT0}"); A(f"v_mov_b32 v{VM}, v{VMX}")
    A(f"v_mul_f32 v{VL}, v{VL}, v{VT0}")
    for r in range(128): A(f"v_mul_f32 v{OA+r}, v{OA+r}, v{VT0}")
    A("s_nop 1"); A(f"s_setpc_b64 s[{S_RET}:{S_RET+1}]")
    gen_loader(A, cfg)
    A(".p2align 8"); A(".type L_table,@object"); A("L_table:")
    for j in range(4):
        t = [0] * 128
        for e in make_table(j, cfg): t[e[5]] = SLOT0 + e[3]*SLOTSZ
        for i in range(0, 128, 8): A(".long " + ", ".join(f"{x:#x}" for x in t[i:i+8]))
    return L

def gen(cfg):
    out = [HEADER.rstrip()]
    out.append("; @launch grid=(256,1,1) block=(512,1,1) lds=163840")
    out.append('.amdgcn_target "amdgcn-amd-amdhsa--gfx950"'); out.append(".text")
    out += gen_main(cfg)
    out.append('.section .rodata,"a"'); out.append(".p2align 6")
    out.append(f""".amdhsa_kernel {KNAME}
  .amdhsa_next_free_vgpr 256
  .amdhsa_next_free_sgpr 102
  .amdhsa_accum_offset 192
  .amdhsa_group_segment_fixed_size 0
  .amdhsa_kernarg_size 64
  .amdhsa_user_sgpr_count 2
  .amdhsa_user_sgpr_kernarg_segment_ptr 1
  .amdhsa_system_sgpr_workgroup_id_x 1
.end_amdhsa_kernel""")
    return "\n".join(out) + "\n"

if __name__ == "__main__":
    cfg = Cfg()
    for a in sys.argv[2:]:
        k, v = a.split("=")
        setattr(cfg, k, int(v) if v.lstrip("-").isdigit() else v)
    open(sys.argv[1], "w").write(gen(cfg))
```

```python
import math, sys, struct, re

KNAME = "standalone__gqa_block_cached__near_ridge_kernel"
HEADER = open("standalone__gqa_block_cached__near_ridge.s.ref").read().split("; Override launch")[0]

class Cfg:
    LA = 4
    FA = 5
    shift = 8
    first = 4
    la2 = 3
    hold = 0
    maxper = 2
    stamps = 0
    nodma = 0
    lprio = 0
    prio = 0
    early = 20
    wopf = 58
    fold = 1
    f0 = 0
    sigl = 5
    thr = 8.0
    w2 = 1
    drop = '_'
    trace = 0
    ovf = 1.0
    oxd = 3
    qxd = 0
    pf = 0
    pfd = 12
    pf0 = 3
    defer = 12
    pause = 0
    minla = 2
    pairl = 0
    pat = '4_4_4_4_4_4_4_4'

S0, S1 = 0, 16
FR, NF = 32, 4
NM = 48
VL0, VL1, VF, VKB, VVB, VA, VLA = 56, 57, 58, 60, 61, 62, 63
VMX, VT0, VSP = 48, 49, 50
OA = 64
QF = 0
ST = 1056
MLX = 1024
SLOT0, SLOTSZ, NSLOT = 11776, 16896, 9
SRD_X, SRD_K, SRD_V, SRD_WQ, SRD_WO, SRD_WS, SRD_OUT = 8, 12, 16, 20, 24, 28, 96
S_W, S_B, S_H, S_QH, S_J = 3, 32, 33, 34, 35
S_QB, S_KH, S_C, S_YB, S_LC, S_BUD, S_T, S_T2, S_ROT = 36, 37, 38, 39, 40, 41, 42, 43, 44
S_RET = 8
S_G, S_FB = 62, 63
FLAG_BASE = 16 << 20
def srd(n): return f"s[{n}:{n+3}]"
def f32(x): return struct.unpack('<I', struct.pack('<f', x))[0]

class Op:
    def __init__(self, text, kind="x", prod=None, cons=None):
        self.text, self.kind, self.prod, self.cons = text, kind, prod, cons

ITEMS = []
for i in range(4):
    ITEMS.append(("X", i))
    ITEMS += [("WQ", t) for t in range(4*i, min(4*i+4, 14))]
ITEMS += [("QX", 0), ("QX", 1)]
ATT = [("K", 0)]
for j in range(16):
    if j < 15: ATT.append(("K", j+1))
    ATT.append(("V", j))
for t in ATT: ITEMS += [t + (0,), t + (1,)]
ITEMS += [("OX", i) for i in range(4)]
ITEMS += [("WO", c, hh) for c in range(7) for hh in range(2)]
P = {t: i for i, t in enumerate(ITEMS)}
NSTATIC = 3
SCHED = {}

def make_table(j, cfg):
    relbar, chkbar = SCHED["rel"], SCHED["chk"]
    key = {}
    for p, t in enumerate(ITEMS):
        k = float(p)
        if t[0] == "X" and t[1] > 0: k -= 2.5
        if not cfg.pf and t[0] in ("K", "V") and (ATT.index(t[:2]) & 3) == j: k = P[t[:2] + (0,)] - cfg.shift - 0.5 + 0.01 * t[2]
        if t[0] == "OX": k = P[("OX", 3)] + cfg.oxd + 0.5 + 0.01 * t[1]
        if t[0] == "QX": k = P[("QX", 1)] + cfg.qxd + 0.45 + 0.01 * t[1]
        key[t] = max(k, NSTATIC - 0.5 + 0.001 * p) if p >= NSTATIC else k
    order = sorted(ITEMS, key=lambda t: key[t])
    assert order[:NSTATIC] == ITEMS[:NSTATIC]
    occ = [None] * NSLOT
    ent = []
    for t in order:
        free = [s for s in range(NSLOT) if occ[s] is None]
        if free: s = free[0]; early = 0
        else:
            s = min(range(NSLOT), key=lambda s: relbar[P[occ[s]]]); early = relbar[P[occ[s]]]
        occ[s] = t
        ent.append(dict(t=t, slot=s, early=early, p=P[t], late=chkbar[P[t]]))
    for a in range(1, len(ent)): ent[a]["early"] = max(ent[a]["early"], ent[a-1]["early"])
    late = 10**9
    for e in reversed(ent):
        lim = e["late"] - (0 if e["t"][0] in ("QX", "OX") else 1)
        assert e["early"] <= lim, ("deadlock", j, e)
        late = min(late, e["late"]); e["late"] = late
    return ent

def mk_srd(A, n, lo, size, bias=0):
    if bias:
        A(f"s_sub_u32 s{n}, s{lo}, {bias}"); A(f"s_subb_u32 s{n+1}, s{lo+1}, 0"); A(f"s_and_b32 s{n+1}, s{n+1}, 0xffff")
    else:
        A(f"s_mov_b32 s{n}, s{lo}"); A(f"s_and_b32 s{n+1}, s{lo+1}, 0xffff")
    A(f"s_mov_b32 s{n+2}, {size+bias:#x}"); A(f"s_mov_b32 s{n+3}, 0x20000")

def stamp(cfg, k): return f"{'s_memrealtime' if cfg.stamps == 1 else 's_memtime'} s[{64+2*k}:{65+2*k}]"

def stamp_tail(A, cfg):
    if not cfg.stamps: return
    A("s_waitcnt vmcnt(0)"); A(stamp(cfg, 15)); A("s_waitcnt lgkmcnt(0)")
    A(f"s_lshl_b32 s{S_T}, s2, 3"); A(f"s_add_u32 s{S_T}, s{S_T}, s{S_W}"); A(f"s_lshl_b32 s{S_T}, s{S_T}, 7"); A(f"s_add_u32 s{S_T}, s{S_T}, {64<<20}")
    A("s_mov_b64 exec, -1")
    for i in range(32): A(f"v_mov_b32 v{64+i}, s{64+i}")
    A("v_mov_b32 v1, 0"); A("s_mov_b64 exec, 1")
    for i in range(8): A(f"buffer_store_dwordx4 v[{64+4*i}:{67+4*i}], v1, {srd(SRD_WS)}, s{S_T} offen offset:{16*i}")

def tag_loop(A, lab):
    A(f"L_tag_{lab}:")
    A(f"v_cmp_ne_u32 vcc, 0, v{VMX}"); A(f"s_sub_u32 s{S_BUD}, s{S_BUD}, 1"); A(f"s_cbranch_scc1 L_tagok_{lab}"); A("s_nop 2"); A(f"s_cbranch_vccnz L_tagok_{lab}")
    A(f"v_mov_b32 v{VSP}, 0"); A(f"global_load_dword v{VMX}, v{VSP}, s[0:1] sc1"); A("s_waitcnt vmcnt(0)"); A(f"s_branch L_tag_{lab}")
    A(f"L_tagok_{lab}:")

def mod7(A, r, n=1):
    for _ in range(n):
        A(f"s_sub_u32 s7, s{r}, 7"); A(f"s_cmp_ge_u32 s{r}, 7"); A(f"s_cselect_b32 s{r}, s7, s{r}")

def gen_reduce(A, cfg):
    A("L_reduce:")
    A("v_mbcnt_lo_u32_b32 v2, -1, 0"); A("v_mbcnt_hi_u32_b32 v2, -1, v2")
    A(f"s_lshr_b32 s4, s{S_H}, 3"); A(f"s_bfe_u32 s5, s{S_H}, 0x10002"); A(f"s_bfe_u32 s6, s{S_H}, 0x10001"); A(f"s_and_b32 s52, s{S_H}, 1")
    A("s_lshl_b32 s45, s5, 1"); A("s_add_u32 s45, s45, s4"); A(f"s_lshl_b32 s46, s{S_G}, 2"); A("s_add_u32 s45, s45, s46"); A("s_lshl_b32 s45, s45, 7"); A(f"s_add_u32 s45, s45, s{S_FB}")
    A(f"s_add_u32 s46, s{S_G}, s{S_ROT}"); mod7(A, 46)
    A(f"s_lshl_b32 s47, s{S_B}, 1"); A(f"s_add_u32 s47, s47, s{S_QH}"); A("s_lshl_b32 s47, s47, 1"); A("s_add_u32 s47, s47, s4")
    A("s_lshl_b32 s46, s46, 1"); A("s_add_u32 s46, s46, s5")
    A("s_lshl_b32 s53, s46, 1"); A("s_add_u32 s53, s53, s6")
    A("s_mul_i32 s48, s47, 28"); A("s_add_u32 s48, s48, s53"); A("s_lshl_b32 s48, s48, 14"); A("s_lshl_b32 s49, s52, 9"); A("s_add_u32 s48, s48, s49")
    A("s_lshl_b32 s50, s47, 1"); A("s_add_u32 s50, s50, s6"); A(f"s_mul_i32 s50, s50, {16*896}"); A("s_lshl_b32 s46, s46, 6"); A("s_add_u32 s50, s50, s46"); A("s_lshl_b32 s49, s52, 4"); A("s_add_u32 s50, s50, s49")
    A("v_and_b32 v3, 15, v2"); A("v_lshlrev_b32 v5, 2, v3")
    A("v_and_b32 v6, 31, v2"); A("v_lshrrev_b32 v7, 5, v2"); A("v_lshlrev_b32 v8, 4, v6"); A("v_lshl_add_u32 v8, v7, 13, v8")
    A("v_mul_u32_u24 v9, 896, v3"); A("v_bfe_u32 v7, v2, 4, 1"); A("v_lshl_add_u32 v9, v7, 3, v9")
    A("s_add_u32 s49, s48, 4096")
    tag_loop(A, "r")
    A(f"v_mov_b32 v4, v{VMX}")
    A("L_rpoll:")
    A(f"buffer_load_dword v10, v5, {srd(SRD_WS)}, s45 offen sc1")
    A(f"s_sub_u32 s{S_BUD}, s{S_BUD}, 1")
    A("s_waitcnt vmcnt(0)")
    A("v_cmp_ne_u32 vcc, v10, v4")
    A("s_cbranch_scc1 L_rgo"); A("s_nop 2")
    A("s_cbranch_vccz L_rgo")
    A("s_sleep 1"); A("s_branch L_rpoll")
    A("L_rgo:")
    if cfg.stamps: A(stamp(cfg, 14))
    for p in range(8):
        A(f"buffer_load_dwordx4 v[{16+4*p}:{19+4*p}], v8, {srd(SRD_WS)}, s{48 + p//4} offen offset:{(p%4)*1024} sc1")
    for p in range(8):
        A(f"s_waitcnt vmcnt({7-p})")
        for i in range(4):
            if p == 0:
                A(f"v_lshlrev_b32 v{48+2*i}, 16, v{16+i}"); A(f"v_and_b32 v{49+2*i}, 0xffff0000, v{16+i}")
            else:
                A(f"v_lshlrev_b32 v10, 16, v{16+4*p+i}"); A(f"v_and_b32 v11, 0xffff0000, v{16+4*p+i}")
                A(f"v_add_f32 v{48+2*i}, v{48+2*i}, v10"); A(f"v_add_f32 v{49+2*i}, v{49+2*i}, v11")
    for i in range(8): A(f"v_mov_b32 v{56+i}, v{48+i}")
    A("s_nop 1")
    for i in range(8): A(f"v_permlane32_swap_b32 v{48+i}, v{56+i}")
    A("s_nop 1")
    for i in range(8): A(f"v_add_f32 v{48+i}, v{48+i}, v{56+i}")
    for i in range(4): A(f"v_cvt_pk_bf16_f32 v{16+i}, v{48+2*i}, v{49+2*i}")
    A("s_mov_b32 exec_hi, 0")
    A(f"buffer_store_dwordx2 v[16:17], v9, {srd(SRD_OUT)}, s50 offen")
    A(f"buffer_store_dwordx2 v[18:19], v9, {srd(SRD_OUT)}, s50 offen offset:32")
    A("L_fin:")
    stamp_tail(A, cfg)
    A("s_endpgm")

LW, XB, WQB, WOB, LM4, KB_, VB0, VB1, RQ = 45, 46, 47, 60, 61, 81, 82, 83, 84
VOX, VOWQ, VOK, VOV, VOWO = 12, 16, 20, 24, 28
def ld_emit(A, cfg, e):
    t = e["t"]; sl = SLOT0 + e["slot"] * SLOTSZ; ty = t[0]
    if ty in ("QX", "OX"): return 0
    idx = t[1]; half = t[2] if len(t) > 2 else 0
    if ty == "X":
        A(f"s_cmp_ge_u32 s{LW}, 2"); A(f"s_cselect_b32 s6, s{RQ+2*idx+1}, s{RQ+2*idx}"); A("s_lshl_b32 s6, s6, 7"); A(f"s_add_u32 m0, s{LM4}, {sl}"); A(f"s_add_u32 s6, s6, s{XB}")
        vo, sr = VOX, SRD_X
    elif ty == "WQ":
        A(f"s_lshl_b32 s6, s{RQ+(idx>>1)}, 19"); A(f"s_add_u32 m0, s{LM4}, {sl}"); A(f"s_add_u32 s6, s6, s{WQB}")
        if idx & 1: A(f"s_add_u32 s6, s6, {1 << 18}")
        vo, sr = VOWQ, SRD_WQ
    elif ty == "K":
        A(f"s_add_u32 m0, s{LM4}, {sl}"); A(f"s_add_u32 s6, s{KB_}, {idx*32768 + half*256}"); vo, sr = VOK, SRD_K
    elif ty == "V":
        A(f"s_add_u32 m0, s{LM4}, {sl}"); A(f"s_add_u32 s6, s{VB0 if half == 0 else VB1}, {idx*32768}"); vo, sr = VOV, SRD_V
    else:
        A(f"s_lshl_b32 s6, s{RQ+idx}, 7"); A(f"s_add_u32 m0, s{LM4}, {sl}"); A(f"s_add_u32 s6, s6, s{WOB}")
        if half: A(f"s_add_u32 s6, s6, {128*896}")
        vo, sr = VOWO, SRD_WO
    if cfg.nodma and ty in ("K", "V", "WO"): return 0
    for ii in range(4):
        A(f"buffer_load_dwordx4 v{vo+ii}, {srd(sr)}, s6 offen offset:{ii*ST} lds")
    return 4
def rot_table(A, lo, hi):
    for g in range(lo, hi):
        A(f"s_add_u32 s{RQ+g}, s{RQ+g-1}, 1"); A(f"s_cmp_eq_u32 s{RQ+g}, 7"); A(f"s_cselect_b32 s{RQ+g}, 0, s{RQ+g}")
def voff4(A, vo, ds):
    for ii in (3, 2, 1, 0): A(f"v_add_u32 v{vo+ii}, {4096 + ii*(ds-ST)}, v{vo}")

def gen_entry(A, cfg):
    A("s_cmp_lt_u32 s2, 256"); A("s_cbranch_scc1 L_main_go"); A("s_endpgm"); A("L_main_go:")
    if cfg.stamps: A(stamp(cfg, 0))
    A("s_load_dwordx8 s[48:55], s[0:1], 0")
    A("s_load_dwordx4 s[56:59], s[0:1], 32")
    A("s_load_dwordx4 s[92:95], s[0:1], 48")
    A("v_lshrrev_b32 v1, 6, v0"); A("v_and_b32 v2, 63, v0")
    A(f"v_readfirstlane_b32 s{S_W}, v1")
    A("s_and_b32 s4, s2, 7"); A("s_lshr_b32 s5, s2, 3")
    A(f"s_lshr_b32 s{S_B}, s5, 2"); A(f"s_and_b32 s{S_J}, s5, 3")
    A(f"s_and_b32 s6, s{S_J}, 1"); A(f"s_lshl_b32 s{S_H}, s4, 1"); A(f"s_add_u32 s{S_H}, s{S_H}, s6")
    A(f"s_lshr_b32 s{S_QH}, s{S_J}, 1")
    A(f"s_lshr_b32 s{S_ROT}, s5, 1")
    A(f"s_cmp_lt_u32 s{S_W}, 4"); A("s_cbranch_scc1 L_compute")
    A(f"s_sub_u32 s{LW}, s{S_W}, 4")
    A("s_lshl_b32 s6, s6, 2"); A(f"s_add_u32 s{RQ}, s{S_ROT}, s6"); A(f"s_mul_i32 s7, s{RQ}, 37"); A("s_lshr_b32 s7, s7, 8"); A("s_mul_i32 s7, s7, 7"); A(f"s_sub_u32 s{RQ}, s{RQ}, s7")
    rot_table(A, 1, 2)
    A("v_lshrrev_b32 v5, 3, v2"); A("v_and_b32 v6, 7, v2"); A("v_lshlrev_b32 v6, 4, v6")
    A("v_and_b32 v8, 1, v5"); A("v_lshrrev_b32 v7, 4, v2"); A("v_lshl_add_u32 v8, v7, 4, v8"); A(f"v_mul_u32_u24 v{VOX}, 896, v8"); A(f"v_add_u32 v{VOX}, v{VOX}, v6")
    voff4(A, VOX, 1792)
    A(f"s_lshl_b32 s{XB}, s{S_ROT}, 3"); A(f"s_and_b32 s6, s{LW}, 1"); A(f"s_add_u32 s{XB}, s{XB}, s6"); A(f"s_mul_i32 s{XB}, s{XB}, {8*896}")
    A(f"s_mul_i32 s{LM4}, s{LW}, {4*ST}")
    A("v_lshrrev_b32 v3, 5, v2"); A("v_and_b32 v4, 31, v2"); A("v_lshlrev_b32 v8, 4, v4"); A(f"v_lshl_add_u32 v{VOWQ}, v3, 15, v8")
    voff4(A, VOWQ, 8192)
    A(f"s_lshl_b32 s{WQB}, s{LW}, 16"); A(f"s_lshl_b32 s6, s{S_H}, 9"); A(f"s_add_u32 s{WQB}, s{WQB}, s6")
    A("s_getpc_b64 s[74:75]"); A("L_pc:"); A("s_add_u32 s74, s74, L_table-L_pc"); A("s_addc_u32 s75, s75, 0")
    A(f"s_lshl_b32 s6, s{S_J}, 9"); A("v_add_u32 v9, s6, v8")
    A("s_mov_b32 m0, 0"); A("s_mov_b32 exec_hi, 0"); A("global_load_lds_dwordx4 v9, s[74:75]"); A("s_mov_b32 exec_hi, -1")
    if cfg.stamps == 1: A(stamp(cfg, 2))
    A("s_waitcnt lgkmcnt(0)")
    mk_srd(A, SRD_X, 48, 8*128*448*2, 4096)
    t0 = make_table(0, cfg)
    ld_emit(A, cfg, t0[0])
    mk_srd(A, SRD_WQ, 54, 448*4096*2, 4096)
    ld_emit(A, cfg, t0[1]); ld_emit(A, cfg, t0[2])
    if cfg.stamps == 1: A(stamp(cfg, 3))

def common_tail_setup(A):
    A("s_mov_b32 s0, s92"); A("s_mov_b32 s1, s93")
    mk_srd(A, SRD_WS, 94, 256 << 20); mk_srd(A, SRD_OUT, 58, 8*128*448*2)
    A(f"s_lshl_b32 s{S_FB}, s{S_ROT}, 12"); A(f"s_add_u32 s{S_FB}, s{S_FB}, {FLAG_BASE}")
    A(f"s_mov_b32 s{S_BUD}, 0x20000")

def gen_loader(A, cfg):
    NB = SCHED["nbar"]
    if cfg.lprio: A(f"s_setprio {cfg.lprio}")
    rot_table(A, 2, 8)
    A(f"s_lshl_b32 s80, s{S_B}, 3"); A("s_add_u32 s80, s80, s4"); A("s_lshl_b32 s80, s80, 19")
    A(f"s_lshl_b32 s6, s{LW}, 11"); A(f"s_add_u32 s{KB_}, s80, s6")
    A(f"s_and_b32 s78, s{LW}, 1"); A("s_lshl_b32 s78, s78, 2"); A(f"s_lshr_b32 s79, s{LW}, 1")
    A("s_lshl_b32 s6, s79, 5"); A("s_add_u32 s6, s6, s78"); A("s_lshl_b32 s6, s6, 9"); A(f"s_add_u32 s{VB0}, s80, s6"); A("s_lshl_b32 s6, s79, 8"); A(f"s_add_u32 s{VB0}, s{VB0}, s6")
    A(f"s_xor_b32 s{VB1}, s{VB0}, 0x100")
    A(f"s_lshl_b32 s{WOB}, s{S_H}, 8"); A("s_lshl_b32 s6, s79, 6"); A(f"s_add_u32 s{WOB}, s{WOB}, s6"); A(f"s_add_u32 s{WOB}, s{WOB}, s78"); A(f"s_mul_i32 s{WOB}, s{WOB}, 896")
    A("v_and_b32 v8, 15, v2"); A("v_lshlrev_b32 v8, 4, v8")
    A(f"v_lshl_add_u32 v{VOK}, v7, 13, v8"); A(f"v_lshl_add_u32 v{VOV}, v7, 12, v8")
    A(f"v_mul_u32_u24 v{VOWO}, {8*896}, v5"); A(f"v_add_u32 v{VOWO}, v{VOWO}, v6")
    voff4(A, VOK, 512); voff4(A, VOV, 512); voff4(A, VOWO, 896)
    mk_srd(A, SRD_K, 50, 32 << 20, 4096); mk_srd(A, SRD_V, 52, 32 << 20, 4096); mk_srd(A, SRD_WO, 56, 4096*448*2, 4096)
    A(f"s_lshl_b32 s76, s{S_ROT}, 2"); A(f"s_add_u32 s76, s76, s{LW}"); A(f"s_mul_i32 s76, s76, {28*128}"); A(f"s_mul_i32 s6, s{S_H}, {256*896}"); A("s_add_u32 s76, s76, s6")
    A("v_min_u32 v10, 27, v2"); A("v_lshlrev_b32 v10, 7, v10"); A("v_add_u32 v10, 4096, v10")
    A(f"s_lshl_b32 s77, s{LW}, 13"); A("s_add_u32 s77, s77, s80"); A("v_lshlrev_b32 v40, 7, v2"); A("v_add_u32 v40, 4096, v40")
    common_tail_setup(A)
    mod7(A, S_ROT, 2)
    for j in range(1, 4):
        A(f"s_cmp_eq_u32 s{S_J}, {j}"); A(f"s_cbranch_scc1 L_ld{j}")
    chk = SCHED["chk"]
    for j in range(4):
        A(f"L_ld{j}:")
        tab = make_table(j, cfg); pos = NSTATIC
        q = ["tab"] + [e["p"] for e in tab[:NSTATIC] for _ in range(4)]
        rot_done = False; lastl = -100
        for k in range(NB):
            n = NSTATIC if k == 0 else 0
            def own(e): return not cfg.pf and e["t"][0] in ("K", "V") and (ATT.index(e["t"][:2]) & 3) == j
            while pos < len(tab) and tab[pos]["early"] <= k and (n < (cfg.first if k == 0 else 1) or (n < cfg.maxper and tab[pos]["late"] - k <= cfg.la2) or k in SCHED["boost"] and n < 2 or tab[pos]["late"] <= k + 1):
                if cfg.hold and k in SCHED["hold"] and tab[pos]["late"] > k + 1 and tab[pos]["t"][0] not in ("QX", "OX"): break
                if not own(tab[pos]) and k <= lastl + cfg.pause and tab[pos]["late"] > k + cfg.minla: break
                if cfg.pairl and own(tab[pos]) and tab[pos]["t"][2] == 0 and tab[pos+1]["early"] > k and tab[pos]["late"] > k + cfg.minla + 1: break
                if own(tab[pos]): lastl = k
                if tab[pos]["t"][0] == "WO" and not rot_done:
                    A(f"s_mov_b32 s{RQ}, s{S_ROT}"); rot_table(A, 1, 7); rot_done = True
                c = ld_emit(A, cfg, tab[pos]); q += [tab[pos]["p"]] * c; pos += 1
                if c: n += 1
            if cfg.pf:
                for ai, t in enumerate(ATT):
                    if (ai & 3) == j and max(chk[P[t + (0,)]] - cfg.pfd, cfg.pf0 + (ai & 3) * cfg.pf) == k:
                        A(f"s_add_u32 s6, s77, {t[1]*32768}"); A(f"buffer_load_dword v11, v40, {srd(SRD_K if t[0] == 'K' else SRD_V)}, s6 offen"); q.append("pf")
            if k == cfg.wopf:
                A(f"buffer_load_dword v11, v10, {srd(SRD_WO)}, s76 offen"); q.append("pf")
                A(f"v_mov_b32 v{VSP}, 0"); A(f"global_load_dword v{VMX}, v{VSP}, s[0:1] sc1"); q.append("pf")
            need = [p for p in chk if chk[p] == k + 1] + (["tab"] if k == 0 else [])
            for p in need: assert p == "tab" or ITEMS[p][0] in ("QX", "OX") or p in [e["p"] for e in tab[:pos]], (j, k, p)
            last = max((i for i, t in enumerate(q) if t in need), default=-1)
            if cfg.stamps == 1 and k == 0: A(stamp(cfg, 4))
            if last >= 0:
                kk = len(q) - 1 - last; assert kk <= 63
                A(f"s_waitcnt vmcnt({kk})"); del q[:last+1]
            if cfg.stamps == 1 and k in (0, 2): A(stamp(cfg, 1 if k == 0 else 5))
            if cfg.trace:
                A("s_memtime s[66:67]"); A("s_waitcnt lgkmcnt(0)"); A(f"v_writelane_b32 v{100 + k//64}, s66, {k % 64}")
            A("s_barrier")
            if cfg.trace:
                A("s_memtime s[66:67]"); A("s_waitcnt lgkmcnt(0)"); A(f"v_writelane_b32 v{102 + k//64}, s66, {k % 64}")
        assert pos == len(tab)
        if cfg.trace:
            A(f"s_lshl_b32 s6, s2, 2"); A(f"s_add_u32 s6, s6, s{LW}"); A("s_lshl_b32 s6, s6, 10"); A(f"s_add_u32 s6, s6, {66<<20}"); A("v_lshlrev_b32 v104, 2, v2")
            for i in range(4): A(f"buffer_store_dword v{100+i}, v104, {srd(SRD_WS)}, s6 offen offset:{i*256}")
        A(f"s_mov_b32 s{S_G}, s{LW}")
        A("s_branch L_reduce")

def build_compute(cfg):
    L = []; A = L.append
    A("L_compute:")
    A(f"s_and_b32 s{S_QB}, s{S_W}, 1"); A(f"s_lshr_b32 s{S_KH}, s{S_W}, 1")
    A(f"s_mov_b32 s{S_C}, {f32(math.log2(math.e) / 16.0):#x}")
    A(f"s_lshl_b32 s{S_YB}, s{S_ROT}, 1"); A(f"s_add_u32 s{S_YB}, s{S_YB}, s{S_QB}")
    A(f"s_mul_i32 s{S_YB}, s{S_YB}, 28"); A(f"s_lshl_b32 s6, s{S_KH}, 1"); A(f"s_add_u32 s{S_YB}, s{S_YB}, s6"); A(f"s_lshl_b32 s{S_YB}, s{S_YB}, 4")
    A(f"s_add_u32 s{S_YB}, s{S_YB}, s{S_H}"); A(f"s_lshl_b32 s{S_YB}, s{S_YB}, 10")
    A("v_and_b32 v3, 15, v2"); A("v_lshrrev_b32 v4, 4, v2"); A("v_bfe_u32 v5, v2, 2, 2"); A("v_and_b32 v6, 3, v2"); A("v_lshlrev_b32 v6, 3, v6")
    VWQ, VXB, VQW, VQR = 20, 21, 22, 23
    A("v_lshrrev_b32 v7, 2, v2"); A(f"v_mul_u32_u24 v{VWQ}, {ST}, v7"); A(f"s_lshl_b32 s6, s{S_KH}, 8"); A(f"v_add3_u32 v{VWQ}, v{VWQ}, v6, s6")
    A("v_and_b32 v7, 7, v7"); A(f"v_mul_u32_u24 v{VVB}, {ST}, v7"); A("v_lshrrev_b32 v8, 5, v2"); A(f"v_lshl_add_u32 v{VVB}, v8, 8, v{VVB}")
    A(f"s_mul_i32 s6, s{S_KH}, {8*ST}"); A(f"v_add3_u32 v{VVB}, v{VVB}, v6, s6")
    A(f"v_mul_u32_u24 v{VKB}, {ST}, v3"); A(f"v_lshl_add_u32 v{VKB}, v4, 4, v{VKB}"); A(f"s_lshl_b32 s6, s{S_KH}, 9"); A(f"v_add_u32 v{VKB}, s6, v{VKB}")
    A("v_lshrrev_b32 v9, 1, v3"); A(f"v_mul_u32_u24 v{VXB}, {ST}, v9"); A("v_and_b32 v9, 1, v2"); A(f"v_lshl_add_u32 v{VXB}, v9, 7, v{VXB}"); A(f"v_lshl_add_u32 v{VXB}, v4, 4, v{VXB}")
    A(f"s_lshl_b32 s6, s{S_QB}, 9"); A(f"v_add_u32 v{VXB}, s6, v{VXB}")
    A(f"v_lshlrev_b32 v{VQR}, 4, v2")
    A(f"v_lshlrev_b32 v{VQW}, 4, v3"); A(f"v_lshl_add_u32 v{VQW}, v8, 8, v{VQW}"); A("v_and_b32 v9, 1, v4"); A(f"v_lshl_add_u32 v{VQW}, v9, 3, v{VQW}")
    A(f"s_lshl_b32 s6, s{S_KH}, 13"); A(f"v_add_u32 v{VQW}, s6, v{VQW}")
    A(f"v_mov_b32 v{VLA}, 0"); A(f"v_mov_b32 v24, s{S_C}"); A(f"v_mov_b32 v25, s{S_C}")
    A("s_waitcnt lgkmcnt(0)")
    common_tail_setup(A)
    mod7(A, S_ROT, 2)
    A(f"s_add_u32 s6, s2, s{S_W}"); A("s_cmp_lg_u32 s6, 0"); A("s_cbranch_scc1 L_notag")
    A("s_memrealtime s[6:7]"); A("s_waitcnt lgkmcnt(0)"); A("s_or_b32 s6, s6, 1"); A("v_mov_b32 v9, s6")
    A(f"global_store_dword v{VLA}, v9, s[0:1] sc1")
    A("L_notag:")
    if cfg.prio: A(f"s_setprio {cfg.prio}")

    def xr(n): return 128 + 4 * (n % 16)
    def acc(ks, cb, u): return OA + ((ks*2 + cb)*2 + u) * 4
    M = []
    for tt in range(14):
        for dt in range(8): M.append(dict(ph="Q", tt=tt, dt=dt, item=("WQ", tt)))
    for t_ in ATT:
        for half in range(2):
            if t_[0] == "K":
                for k4 in range(4):
                    for kt in range(2): M.append(dict(ph="QK", j=t_[1], k4=k4, kt=kt, half=half, item=t_ + (half,)))
            else:
                for dt in range(8): M.append(dict(ph="PV", j=t_[1], dt=dt, half=half, item=t_ + (half,)))
    for c_ in range(7):
        for hh in range(2):
            for k4 in range(4):
                for nt in range(2): M.append(dict(ph="O", c=c_, hh=hh, k4=k4, nt=nt, item=("WO", c_, hh)))
    N = len(M); assert N == 736
    start = {}
    for n, m in enumerate(M): start.setdefault(m["item"], n)
    LA, FA = cfg.LA, cfg.FA
    fill = {n: [] for n in range(-1, N)}
    pre = {n: [] for n in range(-1, N)}
    post = {n: [] for n in range(-1, N)}
    tailf = {n: [] for n in range(-1, N)}
    a0 = start[("K", 0, 0)]; o0 = start[("WO", 0, 0)]
    hard = {0, a0, o0}
    VWO, VST, VTA, VTB = VKB, VVB, 52, 53
    def tab_read(p, dst=VF, ar=VLA): return Op(f"ds_read_b32 v{dst}, v{ar} offset:@T{p*4}@", kind="lds", prod=("fl", p, dst))
    def need(ps, cons): return Op(f"; need", kind="use", cons=cons, prod=list(ps))
    def release(p): return Op(f"; free", kind="rel", prod=p)
    def cbar(): return [Op("s_waitcnt lgkmcnt(0)", kind="drain"), Op("s_barrier")]
    basereg = {"WQ": VWQ, "K": VKB, "V": VVB, "WO": VWO}
    pat = []
    for ln in cfg.pat.split("_"): pat += list(range(int(ln)))
    assert len(pat) == 32
    buf = [pat[(n - a0 - 16) % 32] for n in range(N)]
    prevu = {}
    lastu = {}
    for n in range(N):
        prevu[n] = lastu.get(buf[n], -10); lastu[buf[n]] = n
    def lo_gap(n): return max(h for h in hard if h <= n) - 1
    def read_gap(n):
        lo = lo_gap(n)
        return max(n - LA, lo, prevu[n])
    for t in ITEMS:
        if t not in start: continue
        s = start[t]; g = read_gap(s); gf = max(g - FA, lo_gap(s) + (0 if s in hard else 1)); p = P[t]
        nd = [p]; rl = [p]; vf = VF
        if t[0] == "WO":
            p0 = P[("WO", t[1], 0)]
            tr = tab_read(p0, VF, VTA if t[2] == 0 else VTB); tr.prod = ("fl", p, VF); tr.text = tr.text.replace("@T", "").replace("@", "")
            nd = [p0, p0 + 1] if t[2] == 0 else []
            rl = [p0, p0 + 1] if t[2] == 1 else []
        elif t[0] in ("K", "V"):
            assert P[t[:2] + (0,)] % 2 == 0
            if t[2] == 0: tr = Op(f"ds_read_b64 v[{VF}:{VF+1}], v{VLA} offset:@T{p*4}@", kind="lds", prod=("fl", p, VF))
            else: tr = None; vf = VF + 1
        else: tr = tab_read(p)
        if tr: (post if gf == g else fill)[gf].append(tr)
        post[g] += ([] if s in hard else [Op("s_barrier")]) + [need(nd, [("fl", p, VF)]), Op(f"v_add_u32 v{VA}, v{vf}, v{basereg[t[0]]}")]
        tailf[s + 7] += [release(x) for x in rl]
    for i in range(4):
        s = start[("WQ", 4*i)]; p = P[("X", i)]
        ops = [tab_read(p, VT0), need([p], [("fl", p, VT0)]), Op(f"v_add_u32 v{VT0}, v{VT0}, v{VXB}")]
        rds = []
        for k in range(8 if i < 3 else 4):
            tl, cb = k >> 1, k & 1
            r = xr(8*i + k)
            rds.append(Op(f"ds_read_b128 v[{r}:{r+3}], v{VT0} offset:{(tl>>1)*8*ST + cb*256 + (tl&1)*64}", kind="lds", prod=("X", 8*i+k)))
        if i == 0:
            pre[-1] += [Op("s_barrier")] + ops + rds[:2]
            fill[-1] += rds[2:]
            fill[5].append(release(p))
        else:
            fill[s - 15].append(ops[0]); fill[s - 12] += ops[1:]
            for k, r in enumerate(rds): fill[s - 12 + k // 2].append(r)
            fill[s - 2].append(release(p))
    def Sreg(j): return S0 if j % 2 == 0 else S1
    def spread(ops, a, b):
        k = b - a
        w = [2 if o.text.startswith("v_exp") else 1 for o in ops]; tot = sum(w); c = 0
        for o, wi in zip(ops, w):
            fill[a + (c * k) // tot].append(o); c += wi
    def max_cb(s, r0, r1):
        o = []
        for k in range(4):
            for cb, r in ((0, r0), (1, r1)):
                b = s + 8*cb
                o.append([f"v_max3_f32 v{r}, v{b}, v{b+1}, v{b+2}", f"v_max3_f32 v{r}, v{r}, v{b+3}, v{b+4}", f"v_max3_f32 v{r}, v{r}, v{b+5}, v{b+6}", f"v_max_f32 v{r}, v{r}, v{b+7}"][k])
        return o
    def step_ops(j):
        s = Sreg(j); t0 = Sreg(j+1) + 8; t1 = t0 + 1; L_ = []
        def add(txt, deps): L_.append((Op(txt), deps)); return len(L_) - 1
        a = add(f"v_max3_f32 v{t0}, v{s}, v{s+1}, v{s+2}", []); b = add(f"v_max3_f32 v{t1}, v{s+8}, v{s+9}, v{s+10}", [a])
        a = add(f"v_max3_f32 v{t0}, v{t0}, v{s+3}, v{s+11}", [b]); b = add(f"v_max3_f32 v{t1}, v{t1}, v{s+4}, v{s+5}", [a])
        a = add(f"v_max3_f32 v{t0}, v{t0}, v{s+6}, v{s+7}", [b]); b = add(f"v_max3_f32 v{t1}, v{t1}, v{s+12}, v{s+13}", [a])
        a = add(f"v_max3_f32 v{t0}, v{t0}, v{s+14}, v{s+15}", [b]); a = add(f"v_max_f32 v{t0}, v{t0}, v{t1}", [a])
        a = add(f"v_cmp_lt_f32 vcc, s{S_T}, v{t0}", [a]); br = add(f"s_cbranch_vccnz L_ra_@{j-1}@\nL_rab_@{j-1}@:", [a])
        ex = {}; ad = {}; cv = {}
        for r in range(16): ex[r] = add(f"v_exp_f32 v{s+r}, v{s+r}", [br] + ([ex[r-1]] if r else []))
        for r in range(16):
            ad[r] = add(f"v_add_f32 v{VL0 + r//8}, v{VL0 + r//8}, v{s+r}", [ex[r]] + ([ad[r-1]] if r else []))
            if r % 2: cv[r//2] = add(f"v_cvt_pk_bf16_f32 v{s + r//2}, v{s+r-1}, v{s+r}", [ex[r], ad[r//2]] + ([cv[r//2-1]] if r > 1 else []))
        return L_
    def xlane(op, regs, tmp):
        o = []
        for sw in ("v_permlane16_swap_b32", "v_permlane32_swap_b32"):
            for r, t in zip(regs, tmp): o.append(f"v_mov_b32 v{t}, v{r}")
            o.append("s_nop 1")
            for r, t in zip(regs, tmp): o.append(f"{sw} v{t}, v{r}")
            o.append("s_nop 1")
            for r, t in zip(regs, tmp): o.append(f"{op} v{r}, v{r}, v{t}")
        return o
    e = a0 - 1; pq = P[("QX", 0)]
    fill[e - 4] += [Op(f"s_lshl_b32 s6, s{S_QB}, 2"), Op(f"v_mov_b32 v{VMX}, s6")]
    fill[e - 3].append(tab_read(pq, VT0, VMX))
    fill[e - 1] += [need([pq, pq+1], [("fl", pq, VT0)]), Op(f"v_add_u32 v{VQW}, v{VT0}, v{VQW}"), Op(f"v_add_u32 v{VQR}, v{VT0}, v{VQR}")]
    qx = []
    for n in range(16):
        r = OA + 4*n
        if n == 12: qx.append(Op("s_nop 1"))
        qx += [Op(f"v_pk_mul_f32 v[{r}:{r+1}], v[{r}:{r+1}], v[24:25]"), Op(f"v_pk_mul_f32 v[{r+2}:{r+3}], v[{r+2}:{r+3}], v[24:25]"), Op(f"v_cvt_pk_bf16_f32 v{r}, v{r}, v{r+1}"), Op(f"v_cvt_pk_bf16_f32 v{r+1}, v{r+2}, v{r+3}"),
               Op(f"ds_write_b64 v{VQW}, v[{r}:{r+1}] offset:{(n>>1)*1024 + (n&1)*512}", kind="lds", prod=("w",))]
    for r in range(128, 192): qx.append(Op(f"v_mov_b32 v{r}, 0"))
    qx += [Op("; HOLD")] + cbar() + [Op("; BOOST")]
    for s in range(16):
        qx.append(Op(f"ds_read_b128 a[{QF+4*s}:{QF+4*s+3}], v{VQR} offset:{s*1024}", kind="lds", prod=("Q", s)))
    pre[e] = tailf[e] + fill[e] + qx; fill[e] = []; tailf[e] = []
    spread([Op(f"v_mov_b32 v{r}, 0") for r in range(64, 128)], a0, a0 + 16)
    fill[e + 16] += [release(pq), release(pq + 1)]
    im = ["s_nop 7"] + max_cb(S0, NM, NM+4) + xlane("v_max_f32", (NM, NM+4), (VL0, VL1))
    im += [f"v_sub_f32 v{S0+r}, v{S0+r}, v{NM + 4*(r//8)}" for r in range(16)]
    im += [f"v_sub_f32 v{NM+4*cb+k}, 0, v{NM+4*cb}" for cb in range(2) for k in (3, 2, 1, 0)] + [f"v_mov_b32 v{VL0}, 0", f"v_mov_b32 v{VL1}, 0"]
    for j in range(15):
        pvs = start[("V", j, 0)]
        tailf[pvs + 15] += [Op(f"s_cbranch_vccnz L_rb_@{j}@"), Op(f"L_rbb_@{j}@:"), Op(f"; STEP {j+1}")]
    e = o0 - 1; po = P[("OX", 0)]
    T = S0; WA, RA, MA = S0+8, S0+10, S0+12
    fill[e - 7] += [Op("v_mbcnt_lo_u32_b32 v2, -1, 0"), Op("v_mbcnt_hi_u32_b32 v2, -1, v2"), Op(f"s_lshl_b32 s6, s{S_QB}, 3"), Op(f"v_mov_b32 v6, s6")]
    fill[e - 6] += [Op(f"ds_read_b64 v[{WA}:{WA+1}], v6 offset:{po*4}", kind="lds", prod=("fl", po, WA))]
    fill[e - 5] += [Op(x) for x in xlane("v_add_f32", (VL0, VL1), (4, 5))]
    fill[e - 3] += [Op(f"v_lshlrev_b32 v{VST}, 4, v2"), need([po+i for i in range(4)], [("fl", po, WA)]),
                    Op(f"s_lshl_b32 s6, s{S_KH}, 13"), Op("s_xor_b32 s7, s6, 0x2000"),
                    Op(f"v_add3_u32 v{RA}, v{WA}, v{VST}, s7"), Op(f"v_add3_u32 v{RA+1}, v{WA+1}, v{VST}, s7"),
                    Op(f"v_add3_u32 v{WA}, v{WA}, v{VST}, s6"), Op(f"v_add3_u32 v{WA+1}, v{WA+1}, v{VST}, s6"),
                    Op(f"s_lshl_b32 s6, s{S_W}, 10"), Op(f"s_add_u32 s6, s6, {MLX}"), Op(f"v_add_u32 v{MA}, s6, v{VST}"),
                    Op(f"s_xor_b32 s7, s{S_W}, 2"), Op("s_lshl_b32 s7, s7, 10"), Op(f"s_add_u32 s7, s7, {MLX}"), Op(f"v_add_u32 v{MA+1}, s7, v{VST}")]
    fill[e - 2] += [Op("v_bfe_u32 v3, v2, 2, 3"), Op(f"v_mul_u32_u24 v{VWO}, {ST}, v3"), Op("v_lshrrev_b32 v3, 5, v2"), Op(f"v_lshl_add_u32 v{VWO}, v3, 7, v{VWO}"),
                    Op("v_and_b32 v3, 3, v2"), Op(f"v_lshl_add_u32 v{VWO}, v3, 3, v{VWO}"), Op(f"s_lshl_b32 s6, s{S_KH}, 6"), Op(f"v_add_u32 v{VWO}, s6, v{VWO}")]
    ox = [Op(f"v_mov_b32 v54, v{NM}"), Op(f"ds_write_b128 v{MA}, v[54:57]", kind="lds", prod=("w",)), Op("s_nop 3")]
    for i in range(16):
        r = OA + 64 + 4*i
        ox.append(Op(f"ds_write_b128 v{WA + i//8}, v[{r}:{r+3}] offset:{(i%8)*1024}", kind="lds", prod=("w",)))
    ox += [Op(f"v_mov_b32 v{VSP}, 0"), Op(f"global_load_dword v{VMX}, v{VSP}, s[0:1] sc1"), Op(f"s_mov_b32 s{S_G}, s{S_ROT}")]
    ox += [Op("; HOLD")] + cbar() + [Op("; BOOST1")]
    ox.append(Op(f"ds_read_b128 v[{T}:{T+3}], v{MA+1}", kind="lds", prod=("ml",)))
    for i in range(12):
        r = OA + 64 + 4*i
        ox.append(Op(f"ds_read_b128 v[{r}:{r+3}], v{RA + i//8} offset:{(i%8)*1024}", kind="lds", prod=("o", i)))
    F = S1
    for cb in range(2):
        ox += [Op(f"v_min_f32 v{T+4}, v{T+cb}, v{54+cb}", kind="use", cons=[("ml",)]), Op(f"v_sub_f32 v{F+2*cb}, v{T+4}, v{54+cb}"), Op(f"v_sub_f32 v{F+4+2*cb}, v{T+4}, v{T+cb}"),
               Op(f"v_exp_f32 v{F+2*cb}, v{F+2*cb}"), Op(f"v_exp_f32 v{F+4+2*cb}, v{F+4+2*cb}"), Op("s_nop 0"),
               Op(f"v_mul_f32 v{T+5}, v{VL0+cb}, v{F+2*cb}"), Op(f"v_fmac_f32 v{T+5}, v{T+2+cb}, v{F+4+2*cb}"), Op(f"v_rcp_f32 v{T+5}, v{T+5}"), Op("s_nop 0"),
               Op(f"v_mul_f32 v{F+2*cb}, v{F+2*cb}, v{T+5}"), Op(f"v_mul_f32 v{F+4+2*cb}, v{F+4+2*cb}, v{T+5}")]
    ox += [Op(f"s_lshl_b32 s6, s{S_KH}, 2"), Op(f"v_mov_b32 v{VTA}, s6"), Op(f"v_xor_b32 v{VTB}, 4, v{VTA}")]
    ox2 = []
    for i in range(16):
        cb = (i >> 1) & 1
        for k in (0, 2):
            r0 = OA + 4*i + k
            ox2.append(Op(f"v_pk_mul_f32 v[{r0}:{r0+1}], v[{r0}:{r0+1}], v[{F+2*cb}:{F+2*cb+1}] op_sel_hi:[1,0]"))
        for k in (0, 2):
            r0 = OA + 4*i + k
            ox2.append(Op(f"v_pk_fma_f32 v[{r0}:{r0+1}], v[{r0+64}:{r0+65}], v[{F+4+2*cb}:{F+5+2*cb}], v[{r0}:{r0+1}] op_sel_hi:[1,0,1]", kind="use", cons=[("o", i)]))
        if i < 4:
            r = OA + 64 + 4*(12+i)
            ox2.append(Op(f"ds_read_b128 v[{r}:{r+3}], v{RA+1} offset:{(4+i)*1024}", kind="lds", prod=("o", 12+i)))
        ox2.append(Op(f"v_cvt_pk_bf16_f32 v{OA+2*i}, v{OA+4*i}, v{OA+4*i+1}")); ox2.append(Op(f"v_cvt_pk_bf16_f32 v{OA+2*i+1}, v{OA+4*i+2}, v{OA+4*i+3}"))
        if i % 2 == 1: ox2.append(Op(f"ds_write_b128 v{RA}, v[{OA+2*i-2}:{OA+2*i+1}] offset:{(i//2)*1024}", kind="lds", prod=("w2",)))
    ox2 += [Op("s_nop 1"), release(po + 1), release(po + 3)]
    pre[e] = tailf[e] + fill[e] + ox; fill[e] = ox2; tailf[e] = []
    g2 = read_gap(o0 + 8)
    bi = [i for i, o in enumerate(post[g2]) if o.text == "s_barrier"][0]
    post[g2].insert(bi, Op("; HOLD", kind="use", cons=[("w2",)]))
    post[g2] += [Op(f"ds_read_b128 a[{4*s}:{4*s+3}], v{WA} offset:{s*1024}", kind="lds", prod=("Of", s)) for s in range(8)]
    fill[o0 + 9] += [release(po), release(po + 2)]
    def Y(c_, cb, nt): return OA + 64 + 16 * (c_ & 1) + 8*cb + 4*nt
    nst = [1]
    stq = []
    def flag_ops(c_):
        k = len(stq) - 1 - max(i for i, x in enumerate(stq) if x == c_)
        stq.append("f")
        return [Op(f"s_waitcnt vmcnt({k})"), Op(f"buffer_store_dword v{VMX}, v{VSP}, {srd(SRD_WS)}, s{S_LC} offen offset:{c_*512} sc1")]
    def ystore(c_):
        seq = [Op(f"s_lshl_b32 s{S_T2}, s{S_G}, 16"), Op(f"s_add_u32 s{S_T2}, s{S_T2}, s{S_YB}")]
        for cb in range(2):
            d = S1 + 4 * cb + 8 * (c_ & 1); y = Y(c_, cb, 0)
            for i in range(4): seq.append(Op(f"v_cvt_pk_bf16_f32 v{d+i}, v{y+2*i}, v{y+2*i+1}"))
            seq.append(Op(f"buffer_store_dwordx4 v[{d}:{d+3}], v{VST}, {srd(SRD_WS)}, s{S_T2} offen sc1")); stq.append(c_)
            if cb == 0: seq.append(Op(f"s_add_u32 s{S_T2}, s{S_T2}, 16384"))
        return seq, [Op(f"s_add_u32 s{S_G}, s{S_G}, 1"), Op(f"s_cmp_eq_u32 s{S_G}, 7"), Op(f"s_cselect_b32 s{S_G}, 0, s{S_G}")]
    sigd = 0
    tl = []; tag_loop(tl.append, "c")
    tailf[o0 + 17] += [Op(f"s_lshl_b32 s{S_LC}, s{S_W}, 7"), Op(f"s_lshl_b32 s7, s{S_H}, 2"), Op(f"s_add_u32 s{S_LC}, s{S_LC}, s7"), Op(f"s_add_u32 s{S_LC}, s{S_LC}, s{S_FB}"), Op("s_waitcnt vmcnt(0)")] + [Op(x) for x in tl]
    for c_ in range(7):
        if c_ < 6:
            ys, inc = ystore(c_); st = start[("WO", c_+1, 0)]
            spread(ys, st + 3, st + 10); fill[st + 11] += inc
            if c_ - cfg.sigl >= 0:
                fill[st + 13] += flag_ops(c_ - cfg.sigl); sigd = c_ - cfg.sigl + 1
        else:
            ys, inc = ystore(c_); tailf[N-1] += [Op("s_nop 7")] + ys
            for c2 in range(sigd, 7): tailf[N-1] += flag_ops(c2)

    def reads_for(n):
        m = M[n]; ops = []; fr = FR + 4 * buf[n]
        if m["ph"] == "QK":
            return [Op(f"ds_read_b128 v[{fr}:{fr+3}], v{VA} offset:{m['kt']*256 + m['k4']*64}", kind="lds", prod=("F", n))]
        for hh in range(2):
            if m["ph"] in ("Q", "PV"): off = hh*512 + m["dt"]*32
            else: off = (m["k4"] >> 1)*8*ST + ((m["k4"] & 1)*4 + 2*hh)*128 + m["nt"]*32
            ops.append(Op(f"ds_read_b64_tr_b16 v[{fr+2*hh}:{fr+2*hh+1}], v{VA} offset:{off}", kind="lds", prod=("F", n)))
        return ops
    def mfma(n, cb):
        m = M[n]; fr = FR + 4 * buf[n]; cons = [("F", n)]; z = False
        if m["ph"] == "Q":
            d = acc(m["dt"] >> 1, cb, m["dt"] & 1); xn = 2*m["tt"] + cb; cons.append(("X", xn)); b = f"v[{xr(xn)}:{xr(xn)+3}]"; z = m["tt"] == 0
        elif m["ph"] == "QK":
            d = Sreg(m["j"]) + 8*cb + 4*m["kt"]; f = (4*m["half"] + m["k4"])*2 + cb; cons.append(("Q", f)); b = f"a[{QF+4*f}:{QF+4*f+3}]"; z = m["half"] == 0 and m["k4"] == 0
            if z and m["j"] > 0: z = f"v[{NM+4*cb}:{NM+4*cb+3}]"
        elif m["ph"] == "PV":
            d = acc(4*m["half"] + (m["dt"] >> 1), cb, m["dt"] & 1); p = Sreg(m["j"]) + 4*cb; b = f"v[{p}:{p+3}]"
        else:
            d = Y(m["c"], cb, m["nt"]); f = m["k4"]*2 + cb; z = m["hh"] == 0 and m["k4"] == 0
            if m["hh"] == 0: b = f"v[{OA+4*f}:{OA+4*f+3}]"
            else: b = f"a[{4*f}:{4*f+3}]"; cons.append(("Of", f))
        if cfg.w2 and cb == 0 and n % 2 == 0 and n + 1 < N and read_gap(n + 1) < n: cons.append(("F", n + 1))
        dd = f"v[{d}:{d+3}]"
        return Op(f"v_mfma_f32_16x16x32_bf16 {dd}, v[{fr}:{fr+3}], {b}, {z if isinstance(z, str) else ('0' if z else dd)}", kind="use", cons=cons)
    rd = {}
    for n in range(N): rd.setdefault(read_gap(n), []).append(n)
    stamp_at = [-1, 0, 64, 110, 111, a0+15, None, None, None, o0-2, o0-1, N-2, N-1] if cfg.fold else [-1, 0, 64, 110, 111, a0+15, a0+16+128, a0+16+256, a0+16+384, o0-2, o0-1, N-2, N-1]
    def wt(o): return 0 if o.text.startswith((";", "L_")) else (2 if o.text.startswith("v_exp") else 1)
    def haswait(n): return not (cfg.w2 and n % 2 == 1 and read_gap(n) < n - 1)
    half = {}
    carry = []
    for g in range(-1, N):
        r_ = [o for n in rd.get(g, []) for o in reads_for(n)]
        if g < 0 or pre[g]:
            half[2*g] = carry; half[2*g+1] = pre[g] + post[g] + r_ + fill[g]; carry = []; continue
        h0 = carry + post[g]; h1 = r_[:1]; carry = r_[1:]
        w1 = (1 if g + 1 < N and haswait(g + 1) else 0) + sum(wt(o) for o in tailf[g])
        fl_ = list(fill[g]); tot = sum(wt(o) for o in h0 + h1 + fl_) + w1
        while fl_ and sum(wt(o) for o in h0) + wt(fl_[0]) <= (tot + 1) // 2: h0.append(fl_.pop(0))
        half[2*g] = h0; half[2*g+1] = h1 + fl_
    def fixed(h):
        w = sum(wt(o) for o in half[h])
        if h & 1: w += sum(wt(o) for o in tailf[h >> 1]) + (1 if haswait((h >> 1) + 1) else 0)
        return w
    def sched(L_, a, b, dl):
        fx = [fixed(h) for h in range(a, b)]
        late = [k for k, (o, d) in enumerate(L_) if o.text.startswith("v_add") and int(o.text.split("v")[-1]) % 16 >= cfg.defer]
        free = sum(max(0, 2 - f) for f in fx[:dl]); tot = sum(wt(o) for k, (o, _) in enumerate(L_) if k not in late)
        over = max(0, tot - free)
        done = {}; asg = []; used_over = 0.0; lastop = None
        for hi, f in enumerate(fx):
            cap = 2 - f
            budget = over * (hi + 1) / dl * cfg.ovf - used_over
            while True:
                rdy = [k for k, (o, d) in enumerate(L_) if k not in done and all(x in done for x in d) and not (lastop in d and L_[lastop][0].text.startswith("v_exp") and done[lastop] == hi)]
                if hi < dl: rdy = [k for k in rdy if k not in late]
                fit = [k for k in rdy if wt(L_[k][0]) <= cap]
                if fit:
                    k = max(fit, key=lambda k: (wt(L_[k][0]), -k))
                else:
                    fit = [k for k in rdy if (wt(L_[k][0]) - max(cap, 0) <= budget + 1e-9 and cap > -1) or cap == 1]
                    if not fit: break
                    k = min(fit, key=lambda k: (wt(L_[k][0]) - max(cap, 0), -wt(L_[k][0]), k))
                    o_ = wt(L_[k][0]) - max(cap, 0); used_over += o_; budget -= o_
                cap -= wt(L_[k][0]); done[k] = hi; asg.append((k, hi)); lastop = k
        rest = [k for k in range(len(L_)) if k not in done]
        assert all(k in late for k in rest), rest
        assert all(h < dl for k, h in asg if k not in late)
        asg += [(k, b - a - 1) for k in rest]
        SCHED["info"] = (tot, free, over, len(rest), [f + sum(wt(L_[k][0]) for k, h in asg if h == hi) for hi, f in enumerate(fx)])
        return asg
    pv4 = start[("V", 4, 0)]
    A0 = 3
    asg = sched(step_ops(5), 2*pv4 + A0, 2*pv4 + A0 + 64, 64 - A0 - 2)
    bnd = 32 - A0
    for j in range(16):
        L_ = step_ops(j)
        a = 2*(start[("V", j-1, 0)] if j > 0 else a0) + A0
        early0 = []
        for k, r in asg:
            o = L_[k][0]
            if j == 0 and r < bnd:
                if k >= 10: early0 += [o, Op("s_nop 0")] if o.text.startswith("v_exp") else [o]
            elif j == 15 and r >= bnd: tailf[start[("V", 15, 0)] - 1] += [o, Op("s_nop 0")] if o.text.startswith("v_exp") else [o]
            else:
                assert not (j == 0 and k < 10)
                half[a + r].append(o)
        if j == 0: tailf[a0 + 15] += [Op(x) for x in im] + early0 + [Op("s_nop 1"), Op("; STEP 0")]
    tailf[start[("V", 15, 0)] - 1].append(Op("s_nop 1"))
    ops = []
    for g in range(-1, N):
        if g >= 0: ops += [mfma(g, 0)] + half[2*g] + [mfma(g, 1)] + half[2*g+1]
        else: ops += half[2*g+1]
        if cfg.stamps and g in stamp_at:
            tl_ = [Op(stamp(cfg, 1 + stamp_at.index(g))), Op("s_waitcnt lgkmcnt(0)")]
            if g == a0 + 15: ops += tl_ + tailf[g]
            else: ops += tailf[g] + tl_
        else: ops += tailf[g]
    nb = 0; relbar = {}; chkbar = {}; hold = set(); boost = set()
    for o in ops:
        if o.text == "; need":
            for p_ in o.prod: chkbar.setdefault(p_, nb)
        if o.kind == "rel": relbar[o.prod] = nb + 1
        if o.text == "; HOLD": hold.add(nb)
        if o.text == "; BOOST": boost.update((nb, nb + 2))
        if o.text == "; BOOST1": boost.add(nb)
        if o.text == "s_barrier": nb += 1
    SCHED.update(rel=relbar, chk=chkbar, nbar=nb, hold=hold, boost=boost)
    txt = []; q = []
    for o in ops:
        if o.kind == "lds":
            if len(q) >= 15:
                txt.append("s_waitcnt lgkmcnt(10)"); q = q[-10:]
            q.append(o.prod)
        elif o.kind == "use":
            last = max((i for i, t in enumerate(q) if t in o.cons), default=-1)
            if last >= 0:
                txt.append(f"s_waitcnt lgkmcnt({len(q) - 1 - last})"); q = q[last+1:]
        elif o.kind == "drain": q = []
        if not o.text.startswith(";") or o.text.startswith("; STEP"): txt.append(o.text)
    A(f"s_mov_b32 s{S_T}, {f32(cfg.thr):#x}")
    js = list(range(15))
    def fin(lines, toff=0): return [re.sub(r"@(\d+)@", r"\1", re.sub(r"@T(\d+)@", lambda m_: str(int(m_.group(1)) - toff), x)) for x in lines]
    if cfg.fold:
        pos = {int(x.split()[2]): i for i, x in enumerate(txt) if x.startswith("; STEP")}
        def norm(a, b, it):
            o = []
            for x in txt[pos[a]+1:pos[b]]:
                if x.startswith("; STEP"): continue
                x = re.sub(r"@T(\d+)@", lambda m_: "@T%d@" % (int(m_.group(1)) - 32*it), x)
                x = re.sub(r"_@(\d+)@", lambda m_: "_@%d@" % (int(m_.group(1)) - 2*it), x)
                o.append(x)
            return o
        f0 = cfg.f0; nit = (14 - f0) // 2
        body = norm(f0, f0 + 2, 0)
        for it in range(1, nit):
            b2 = norm(f0 + 2*it, f0 + 2*it + 2, it)
            assert b2 == body, (it, [(x, y) for x, y in zip(body, b2) if x != y][:5])
        for x in fin(txt[:pos[f0]]): A(x)
        A(f"s_mov_b32 s{S_LC}, {nit}")
        A(".p2align 6")
        A("L_attn:")
        lt = max(i for i, x in enumerate(body) if "@T" in x)
        body = body[:lt+1] + [f"v_add_u32 v{VLA}, 32, v{VLA}"] + body[lt+1:]
        dr = tuple(d.replace("-", "_") for d in cfg.drop.split("_") if d)
        if dr:
            body = [x for x in body if not x.startswith(dr)]; body = ["s_mov_b64 vcc, 0" if x.startswith("s_or_b64") else x for x in body]
        for x in fin(body): A(x)
        A(f"s_sub_u32 s{S_LC}, s{S_LC}, 1"); A(f"s_cmp_lg_u32 s{S_LC}, 0"); A("s_cbranch_scc1 L_attn")
        for x in fin(txt[pos[f0 + 2*nit]:], 32*nit): A(x)
        js = list(range(f0 + 2)) + list(range(f0 + 2*nit, 15))
    else:
        for x in fin(txt): A(x)
    A(f"s_add_u32 s{S_G}, s{S_W}, 4"); A(f"s_cmp_eq_u32 s{S_W}, 3"); A("s_cbranch_scc1 L_fin")
    gen_reduce(A, cfg)
    for j in js:
        A(f"L_ra_{j}:"); A(f"s_call_b64 s[{S_RET}:{S_RET+1}], L_resa{j % 2}"); A(f"s_branch L_rab_{j}")
        A(f"L_rb_{j}:"); A(f"s_call_b64 s[{S_RET}:{S_RET+1}], L_resb{j % 2}"); A(f"s_branch L_rbb_{j}")
    for par in range(2):
        sn = Sreg(par + 1); t0 = Sreg(par) + 8
        A(f"L_resa{par}:")
        for x in max_cb(sn, t0, t0+1) + xlane("v_max_f32", (t0, t0+1), (t0+2, t0+3)): A(x)
        for cb in range(2):
            A(f"v_max_f32 v{t0+cb}, 0, v{t0+cb}")
            for r in range(8): A(f"v_sub_f32 v{sn+8*cb+r}, v{sn+8*cb+r}, v{t0+cb}")
            for k in range(4): A(f"v_sub_f32 v{NM+4*cb+k}, v{NM+4*cb+k}, v{t0+cb}")
            A(f"v_exp_f32 v{t0+cb}, -v{t0+cb}"); A("s_nop 0"); A(f"v_mul_f32 v{VL0+cb}, v{VL0+cb}, v{t0+cb}")
        A(f"s_setpc_b64 s[{S_RET}:{S_RET+1}]")
        A(f"L_resb{par}:")
        A("s_nop 7")
        for r in range(128): A(f"v_mul_f32 v{OA+r}, v{OA+r}, v{t0 + ((r >> 3) & 1)}")
        A("s_nop 1"); A(f"s_setpc_b64 s[{S_RET}:{S_RET+1}]")
    return L

def gen(cfg):
    comp = build_compute(cfg)
    out = [HEADER.rstrip()]; A = out.append
    A("; @launch grid=(256,1,1) block=(512,1,1) lds=163840")
    A('.amdgcn_target "amdgcn-amd-amdhsa--gfx950"'); A(".text")
    A(f".globl {KNAME}"); A(".p2align 8"); A(f".type {KNAME},@function"); A(f"{KNAME}:")
    gen_entry(A, cfg); gen_loader(A, cfg)
    A(".p2align 6")
    out += comp
    A(".p2align 8"); A(".type L_table,@object"); A("L_table:")
    for j in range(4):
        t = [0] * 128
        for e in make_table(j, cfg): t[e["p"]] = SLOT0 + e["slot"]*SLOTSZ
        for i in range(0, 128, 8): A(".long " + ", ".join(f"{x:#x}" for x in t[i:i+8]))
    A('.section .rodata,"a"'); A(".p2align 6")
    A(f""".amdhsa_kernel {KNAME}
  .amdhsa_next_free_vgpr 256
  .amdhsa_next_free_sgpr 102
  .amdhsa_accum_offset 192
  .amdhsa_group_segment_fixed_size 0
  .amdhsa_kernarg_size 64
  .amdhsa_user_sgpr_count 2
  .amdhsa_user_sgpr_kernarg_segment_ptr 1
  .amdhsa_system_sgpr_workgroup_id_x 1
.end_amdhsa_kernel""")
    return "\n".join(out) + "\n"

if __name__ == "__main__":
    cfg = Cfg()
    for a in sys.argv[2:]:
        k, v = a.split("=")
        setattr(cfg, k, int(v) if v.lstrip("-").isdigit() else (v if "_" in v else float(v)))
    open(sys.argv[1], "w").write(gen(cfg))
```

```python
import math, sys, struct, re

KNAME = "standalone__gqa_block_cached__near_ridge_kernel"
HEADER = open("standalone__gqa_block_cached__near_ridge.s.ref").read().split("; Override launch")[0]

class Cfg:
    LA = 4
    FA = 5
    shift = 8
    first = 4
    la2 = 5
    hold = 1
    maxper = 2
    stamps = 0
    nodma = 0
    lprio = 0
    prio = 0
    early = 20
    wopf = 58
    fold = 1
    f0 = 0
    sigl = 3
    thr = 8.0
    w2 = 1
    drop = '_'
    trace = 0
    ovf = 1.0
    emu = 0
    oxd = 5
    qxd = 2
    tagc = 7
    tlb = 0
    halfst = 0
    stfl = 'sc1_'
    cpf = 1
    wown = 6
    xm = 69
    xmask = 1023
    pfk = '_'
    la2q = 5
    bst = '2_1_2'
    stpos = 1
    fbar = 1
    pf = 0
    pfd = 12
    pf0 = 3
    defer = 12
    pause = 0
    minla = 2
    pairl = 0
    pat = '4_4_4_4_4_4_4_4'

S0, S1 = 0, 16
FR, NF = 32, 4
NM = 48
VL0, VL1, VF, VKB, VVB, VA, VLA = 56, 57, 58, 60, 61, 62, 63
VMX, VT0, VSP = 48, 49, 50
OA = 64
QF = 0
ST = 1056
MLX = 1024
SLOT0, SLOTSZ, NSLOT = 7168, 17408, 9
STQ = 1088
SRD_X, SRD_K, SRD_V, SRD_WQ, SRD_WO, SRD_WS, SRD_OUT = 8, 12, 16, 20, 24, 28, 96
S_W, S_B, S_H, S_QH, S_J = 3, 32, 33, 34, 35
S_QB, S_KH, S_C, S_YB, S_LC, S_BUD, S_T, S_T2, S_ROT = 36, 37, 38, 39, 40, 41, 42, 43, 44
S_RET = 8
S_G, S_FB = 62, 63
FLAG_BASE = 16 << 20
def srd(n): return f"s[{n}:{n+3}]"
def f32(x): return struct.unpack('<I', struct.pack('<f', x))[0]

class Op:
    def __init__(self, text, kind="x", prod=None, cons=None):
        self.text, self.kind, self.prod, self.cons = text, kind, prod, cons

ITEMS = []
for i in range(4):
    ITEMS.append(("X", i))
    ITEMS += [("WQ", t) for t in range(4*i, min(4*i+4, 14))]
ITEMS += [("QX", 0), ("QX", 1)]
ATT = [("K", 0)]
for j in range(16):
    if j < 15: ATT.append(("K", j+1))
    ATT.append(("V", j))
for t in ATT: ITEMS += [t + (0,), t + (1,)]
ITEMS += [("OX", i) for i in range(2)]
ITEMS += [("WO", c, hh) for c in range(7) for hh in range(2)]
P = {t: i for i, t in enumerate(ITEMS)}
NSTATIC = 3
SCHED = {}

def pfk(cfg): return [int(x) for x in str(cfg.pfk).split('_') if x]
def make_table(j, cfg):
    relbar, chkbar = SCHED["rel"], SCHED["chk"]
    key = {}
    for p, t in enumerate(ITEMS):
        k = float(p)
        if t[0] == "X" and t[1] > 0: k -= 2.5
        if not cfg.pf and t[0] in ("K", "V") and (ATT.index(t[:2]) & 3) == j and ATT.index(t[:2]) // 4 >= len(pfk(cfg)): k = P[t[:2] + (0,)] - cfg.shift - 0.5 + 0.01 * t[2]
        if t[0] == "OX": k = P[("OX", 1)] + cfg.oxd + 0.5 + 0.01 * t[1]
        if t[0] == "QX": k = P[("QX", 1)] + cfg.qxd + 0.45 + 0.01 * t[1]
        key[t] = max(k, NSTATIC - 0.5 + 0.001 * p) if p >= NSTATIC else k
    order = sorted(ITEMS, key=lambda t: key[t])
    assert order[:NSTATIC] == ITEMS[:NSTATIC]
    occ = [None] * NSLOT
    ent = []
    for t in order:
        free = [s for s in range(NSLOT) if occ[s] is None]
        if free: s = free[0]; early = 0
        else:
            s = min(range(NSLOT), key=lambda s: relbar[P[occ[s]]]); early = relbar[P[occ[s]]]
        occ[s] = t
        ent.append(dict(t=t, slot=s, early=early, p=P[t], late=chkbar[P[t]]))
    for a in range(1, len(ent)): ent[a]["early"] = max(ent[a]["early"], ent[a-1]["early"])
    late = 10**9
    for e in reversed(ent):
        lim = e["late"] - (0 if e["t"][0] in ("QX", "OX") else 1)
        assert e["early"] <= lim, ("deadlock", j, e)
        late = min(late, e["late"]); e["late"] = late
    return ent

def mk_srd(A, n, lo, size, bias=0):
    if bias:
        A(f"s_sub_u32 s{n}, s{lo}, {bias}"); A(f"s_subb_u32 s{n+1}, s{lo+1}, 0"); A(f"s_and_b32 s{n+1}, s{n+1}, 0xffff")
    else:
        A(f"s_mov_b32 s{n}, s{lo}"); A(f"s_and_b32 s{n+1}, s{lo+1}, 0xffff")
    A(f"s_mov_b32 s{n+2}, {size+bias:#x}"); A(f"s_mov_b32 s{n+3}, 0x20000")

def stamp(cfg, k): return f"{'s_memrealtime' if cfg.stamps == 1 else 's_memtime'} s[{64+2*k}:{65+2*k}]"

def stamp_tail(A, cfg):
    if not cfg.stamps: return
    A("s_waitcnt vmcnt(0)"); A(stamp(cfg, 15)); A("s_waitcnt lgkmcnt(0)")
    A(f"s_lshl_b32 s{S_T}, s2, 3"); A(f"s_add_u32 s{S_T}, s{S_T}, s{S_W}"); A(f"s_lshl_b32 s{S_T}, s{S_T}, 7"); A(f"s_add_u32 s{S_T}, s{S_T}, {64<<20}")
    A("s_mov_b64 exec, -1")
    for i in range(32): A(f"v_mov_b32 v{64+i}, s{64+i}")
    A("v_mov_b32 v1, 0"); A("s_mov_b64 exec, 1")
    for i in range(8): A(f"buffer_store_dwordx4 v[{64+4*i}:{67+4*i}], v1, {srd(SRD_WS)}, s{S_T} offen offset:{16*i}")

def tag_loop(A, lab):
    A(f"L_tag_{lab}:")
    A(f"v_cmp_ne_u32 vcc, 0, v{VMX}"); A(f"s_sub_u32 s{S_BUD}, s{S_BUD}, 1"); A(f"s_cbranch_scc1 L_tagok_{lab}"); A("s_nop 2"); A(f"s_cbranch_vccnz L_tagok_{lab}")
    A(f"v_mov_b32 v{VSP}, 0"); A(f"global_load_dword v{VMX}, v{VSP}, s[0:1] sc1"); A("s_waitcnt vmcnt(0)"); A(f"s_branch L_tag_{lab}")
    A(f"L_tagok_{lab}:")

def mod7(A, r, n=1):
    for _ in range(n):
        A(f"s_sub_u32 s7, s{r}, 7"); A(f"s_cmp_ge_u32 s{r}, 7"); A(f"s_cselect_b32 s{r}, s7, s{r}")

def gen_reduce(A, cfg):
    A("L_reduce:")
    A("v_mbcnt_lo_u32_b32 v2, -1, 0"); A("v_mbcnt_hi_u32_b32 v2, -1, v2")
    A(f"s_lshr_b32 s4, s{S_H}, 3"); A(f"s_bfe_u32 s5, s{S_H}, 0x10002"); A(f"s_bfe_u32 s6, s{S_H}, 0x10001"); A(f"s_and_b32 s52, s{S_H}, 1")
    A("s_lshl_b32 s45, s5, 1"); A("s_add_u32 s45, s45, s4"); A(f"s_lshl_b32 s46, s{S_G}, 2"); A("s_add_u32 s45, s45, s46"); A("s_lshl_b32 s45, s45, 7"); A(f"s_add_u32 s45, s45, s{S_FB}")
    A(f"s_add_u32 s46, s{S_G}, s{S_ROT}"); mod7(A, 46)
    A(f"s_lshl_b32 s47, s{S_B}, 1"); A(f"s_add_u32 s47, s47, s{S_QH}"); A("s_lshl_b32 s47, s47, 1"); A("s_add_u32 s47, s47, s4")
    A("s_lshl_b32 s46, s46, 1"); A("s_add_u32 s46, s46, s5")
    A("s_lshl_b32 s53, s46, 1"); A("s_add_u32 s53, s53, s6")
    A("s_mul_i32 s48, s47, 28"); A("s_add_u32 s48, s48, s53"); A("s_lshl_b32 s48, s48, 14"); A("s_lshl_b32 s49, s52, 9"); A("s_add_u32 s48, s48, s49")
    A("s_lshl_b32 s50, s47, 1"); A("s_add_u32 s50, s50, s6"); A(f"s_mul_i32 s50, s50, {16*896}"); A("s_lshl_b32 s46, s46, 6"); A("s_add_u32 s50, s50, s46"); A("s_lshl_b32 s49, s52, 4"); A("s_add_u32 s50, s50, s49")
    A("v_and_b32 v3, 15, v2"); A("v_lshlrev_b32 v5, 2, v3")
    A("v_and_b32 v6, 31, v2"); A("v_lshrrev_b32 v7, 5, v2"); A("v_lshlrev_b32 v8, 4, v6"); A("v_lshl_add_u32 v8, v7, 13, v8")
    A("v_mul_u32_u24 v9, 896, v3"); A("v_bfe_u32 v7, v2, 4, 1"); A("v_lshl_add_u32 v9, v7, 3, v9")
    A("s_add_u32 s49, s48, 4096")
    tag_loop(A, "r")
    A(f"v_mov_b32 v4, v{VMX}")
    A("L_rpoll:")
    A(f"buffer_load_dword v10, v5, {srd(SRD_WS)}, s45 offen sc1")
    A(f"s_sub_u32 s{S_BUD}, s{S_BUD}, 1")
    A("s_waitcnt vmcnt(0)")
    A("v_cmp_ne_u32 vcc, v10, v4")
    A("s_cbranch_scc1 L_rgo"); A("s_nop 2")
    A("s_cbranch_vccz L_rgo")
    A("s_sleep 1"); A("s_branch L_rpoll")
    A("L_rgo:")
    if cfg.stamps: A(stamp(cfg, 14))
    for p in range(8):
        A(f"buffer_load_dwordx4 v[{16+4*p}:{19+4*p}], v8, {srd(SRD_WS)}, s{48 + p//4} offen offset:{(p%4)*1024} sc1")
    for p in range(8):
        A(f"s_waitcnt vmcnt({7-p})")
        for i in range(4):
            if p == 0:
                A(f"v_lshlrev_b32 v{48+2*i}, 16, v{16+i}"); A(f"v_and_b32 v{49+2*i}, 0xffff0000, v{16+i}")
            else:
                A(f"v_lshlrev_b32 v10, 16, v{16+4*p+i}"); A(f"v_and_b32 v11, 0xffff0000, v{16+4*p+i}")
                A(f"v_add_f32 v{48+2*i}, v{48+2*i}, v10"); A(f"v_add_f32 v{49+2*i}, v{49+2*i}, v11")
    for i in range(8): A(f"v_mov_b32 v{56+i}, v{48+i}")
    A("s_nop 1")
    for i in range(8): A(f"v_permlane32_swap_b32 v{48+i}, v{56+i}")
    A("s_nop 1")
    for i in range(8): A(f"v_add_f32 v{48+i}, v{48+i}, v{56+i}")
    for i in range(4): A(f"v_cvt_pk_bf16_f32 v{16+i}, v{48+2*i}, v{49+2*i}")
    A("s_mov_b32 exec_hi, 0")
    A(f"buffer_store_dwordx2 v[16:17], v9, {srd(SRD_OUT)}, s50 offen")
    A(f"buffer_store_dwordx2 v[18:19], v9, {srd(SRD_OUT)}, s50 offen offset:32")
    A("L_fin:")
    stamp_tail(A, cfg)
    A("s_endpgm")

def gen_reduce_tagged(A, cfg):
    A("v_mbcnt_lo_u32_b32 v2, -1, 0"); A("v_mbcnt_hi_u32_b32 v2, -1, v2")
    A(f"s_sub_u32 s48, s{S_FB}, {FLAG_BASE}"); A("s_lshl_b32 s48, s48, 8"); A(f"s_lshl_b32 s7, s{S_W}, 18"); A("s_add_u32 s48, s48, s7")
    A(f"s_lshr_b32 s4, s{S_H}, 2"); A("s_lshl_b32 s7, s4, 16"); A("s_add_u32 s48, s48, s7"); A(f"s_and_b32 s5, s{S_H}, 3"); A("s_lshl_b32 s7, s5, 8"); A("s_add_u32 s48, s48, s7"); A(f"s_add_u32 s48, s48, {32 << 20}")
    for i in range(1, 4): A(f"s_add_u32 s{48+i}, s48, {i*16384}")
    A("v_and_b32 v3, 15, v2"); A("v_lshrrev_b32 v5, 4, v2"); A("v_lshlrev_b32 v8, 4, v3"); A("v_lshl_add_u32 v8, v5, 12, v8")
    A(f"v_mov_b32 v4, v{VMX}")
    A(f"s_lshl_b32 s45, s{S_G}, 2"); A("s_add_u32 s45, s45, s4"); A("s_lshl_b32 s45, s45, 7"); A(f"s_add_u32 s45, s45, s{S_FB}"); A("v_lshlrev_b32 v7, 2, v3")
    A("L_tf:")
    A(f"buffer_load_dword v10, v7, {srd(SRD_WS)}, s45 offen sc1")
    A(f"s_sub_u32 s{S_BUD}, s{S_BUD}, 1")
    A("s_waitcnt vmcnt(0)")
    A("v_cmp_ne_u32 vcc, v10, v4")
    A("s_cbranch_scc1 L_fin"); A("s_nop 2")
    A("s_cbranch_vccz L_tpoll")
    A("s_sleep 1"); A("s_branch L_tf")
    A("L_tpoll:")
    for i in range(4):
        for gi in range(3):
            r = 64 + 12*i + 4*gi
            A(f"buffer_load_dwordx4 v[{r}:{r+3}], v8, {srd(SRD_WS)}, s{48+i} offen offset:{gi*1024} sc1")
    A(f"s_add_u32 s46, s{S_G}, s{S_ROT}"); mod7(A, 46)
    A(f"s_lshl_b32 s47, s{S_B}, 1"); A(f"s_add_u32 s47, s47, s{S_QH}"); A("s_lshl_b32 s47, s47, 1"); A("s_and_b32 s7, s4, 1"); A("s_add_u32 s47, s47, s7"); A(f"s_mul_i32 s47, s47, {32*896}")
    A("s_lshl_b32 s46, s46, 7"); A("s_add_u32 s47, s47, s46"); A("s_lshr_b32 s7, s4, 1"); A("s_lshl_b32 s7, s7, 6"); A("s_add_u32 s47, s47, s7"); A("s_lshl_b32 s7, s5, 3"); A("s_add_u32 s47, s47, s7")
    A("v_lshrrev_b32 v6, 1, v5"); A("v_lshl_add_u32 v6, v6, 4, v3"); A("v_mul_u32_u24 v9, 896, v6"); A("v_and_b32 v6, 1, v5"); A("v_lshl_add_u32 v9, v6, 5, v9")
    A(f"s_sub_u32 s{S_BUD}, s{S_BUD}, 1"); A("s_cselect_b32 s52, 1, 0")
    A("s_waitcnt vmcnt(0)")
    A("v_xor_b32 v10, v4, v67")
    for n in range(1, 12):
        A(f"v_xor_b32 v11, v4, v{67+4*n}"); A("v_or_b32 v10, v10, v11")
    A("v_cmp_ne_u32 vcc, 0, v10"); A("s_cmp_eq_u32 s52, 1"); A("s_cbranch_scc1 L_tgo"); A("s_nop 1"); A("s_cbranch_vccnz L_tpoll")
    A("L_tgo:")
    if cfg.stamps: A(stamp(cfg, 14))
    for w_ in range(8):
        for i in range(4):
            r = 64 + 12*i + 4*(w_//3) + w_ % 3
            if i == 0: A(f"v_lshlrev_b32 v{16+2*w_}, 16, v{r}"); A(f"v_and_b32 v{17+2*w_}, 0xffff0000, v{r}")
            else:
                A(f"v_lshlrev_b32 v10, 16, v{r}"); A(f"v_and_b32 v11, 0xffff0000, v{r}")
                A(f"v_add_f32 v{16+2*w_}, v{16+2*w_}, v10"); A(f"v_add_f32 v{17+2*w_}, v{17+2*w_}, v11")
    A("s_nop 1")
    for k in range(8): A(f"v_permlane32_swap_b32 v{16+k}, v{24+k}")
    A("s_nop 1")
    for k in range(8): A(f"v_add_f32 v{16+k}, v{16+k}, v{24+k}")
    A("s_nop 1")
    for k in range(4): A(f"v_permlane16_swap_b32 v{16+k}, v{20+k}")
    A("s_nop 1")
    for k in range(4): A(f"v_add_f32 v{16+k}, v{16+k}, v{20+k}")
    A("v_cvt_pk_bf16_f32 v16, v16, v17"); A("v_cvt_pk_bf16_f32 v17, v18, v19")
    A(f"buffer_store_dwordx2 v[16:17], v9, {srd(SRD_OUT)}, s47 offen")
    A("s_branch L_fin")

LW, XB, WQB, WOB, LM4, KB_, VB0, VB1, RQ = 45, 46, 47, 60, 61, 81, 82, 83, 84
VOX, VOWQ, VOK, VOV, VOWO, VOK2 = 12, 16, 20, 24, 28, 32
def ld_emit(A, cfg, e, j=0):
    t = e["t"]; sl = SLOT0 + e["slot"] * SLOTSZ; ty = t[0]
    if ty in ("QX", "OX"): return 0
    idx = t[1]; half = t[2] if len(t) > 2 else 0
    if ty == "X":
        A(f"s_cmp_ge_u32 s{LW}, 2"); A(f"s_cselect_b32 s6, s{RQ+2*idx+1}, s{RQ+2*idx}"); A("s_lshl_b32 s6, s6, 7"); A(f"s_add_u32 m0, s{LM4}, {sl}"); A(f"s_add_u32 s6, s6, s{XB}")
        vo, sr = VOX, SRD_X
    elif ty == "WQ":
        A(f"s_lshl_b32 s6, s{RQ+(idx>>1)}, 19"); A(f"s_add_u32 m0, s{VB1}, {sl}"); A(f"s_add_u32 s6, s6, s{WQB}")
        if idx & 1: A(f"s_add_u32 s6, s6, {1 << 18}")
        vo, sr = VOWQ, SRD_WQ
    elif ty == "K":
        A(f"s_add_u32 m0, s{LM4}, {sl}"); A(f"s_xor_b32 s6, s{KB_}, {idx*32768}"); vo, sr = (VOK if half == 0 else VOK2), SRD_K
    elif ty == "V":
        A(f"s_add_u32 m0, s{LM4}, {sl}"); A(f"s_xor_b32 s6, s{VB0}, {idx*32768 + half*256}"); vo, sr = VOV, SRD_V
    else:
        A(f"s_lshl_b32 s6, s{RQ+idx}, 7"); A(f"s_add_u32 m0, s{LM4}, {sl}"); A(f"s_add_u32 s6, s6, s{WOB}")
        if half: A(f"s_add_u32 s6, s6, {128*896}")
        vo, sr = VOWO, SRD_WO
    if cfg.nodma and ty in ("K", "V", "WO"): return 0
    if cfg.emu and ty in ("K", "V"):
        for ii in ((0, 1) if j < 2 else (2, 3)):
            A(f"buffer_load_dwordx4 v{vo+ii}, {srd(sr)}, s6 offen offset:{ii*ST} lds")
        return 2
    for ii in range(4):
        A(f"buffer_load_dwordx4 v{vo+ii}, {srd(sr)}, s6 offen offset:{ii*(STQ if ty == 'WQ' else ST)} lds")
    return 4
def rot_table(A, lo, hi):
    for g in range(lo, hi):
        A(f"s_add_u32 s{RQ+g}, s{RQ+g-1}, 1"); A(f"s_cmp_eq_u32 s{RQ+g}, 7"); A(f"s_cselect_b32 s{RQ+g}, 0, s{RQ+g}")
def voff4(A, vo, ds, st=ST):
    for ii in (3, 2, 1, 0): A(f"v_add_u32 v{vo+ii}, {4096 + ii*(ds-st)}, v{vo}")

def gen_entry(A, cfg):
    A("s_cmp_lt_u32 s2, 256"); A("s_cbranch_scc1 L_main_go"); A("s_endpgm"); A("L_main_go:")
    if cfg.stamps: A(stamp(cfg, 0))
    A("s_load_dwordx8 s[48:55], s[0:1], 0")
    A("s_load_dwordx4 s[56:59], s[0:1], 32")
    A("s_load_dwordx4 s[92:95], s[0:1], 48")
    A("v_lshrrev_b32 v1, 6, v0"); A("v_and_b32 v2, 63, v0")
    A(f"v_readfirstlane_b32 s{S_W}, v1")
    A("s_and_b32 s4, s2, 7"); A("s_lshr_b32 s5, s2, 3")
    A(f"s_lshr_b32 s{S_B}, s5, 2"); A(f"s_and_b32 s{S_J}, s5, 3")
    A(f"s_and_b32 s6, s{S_J}, 1"); A(f"s_lshl_b32 s{S_H}, s4, 1"); A(f"s_add_u32 s{S_H}, s{S_H}, s6")
    A(f"s_lshr_b32 s{S_QH}, s{S_J}, 1")
    A(f"s_lshr_b32 s{S_ROT}, s5, 1")
    A(f"s_cmp_lt_u32 s{S_W}, 4"); A("s_cbranch_scc1 L_compute")
    A(f"s_sub_u32 s{LW}, s{S_W}, 4")
    A("s_lshl_b32 s6, s6, 2"); A(f"s_add_u32 s{RQ}, s{S_ROT}, s6"); A(f"s_mul_i32 s7, s{RQ}, 37"); A("s_lshr_b32 s7, s7, 8"); A("s_mul_i32 s7, s7, 7"); A(f"s_sub_u32 s{RQ}, s{RQ}, s7")
    rot_table(A, 1, 2)
    A("v_lshrrev_b32 v5, 3, v2"); A("v_and_b32 v6, 7, v2"); A("v_lshlrev_b32 v6, 4, v6")
    A("v_and_b32 v8, 1, v5"); A("v_lshrrev_b32 v7, 4, v2"); A("v_lshl_add_u32 v8, v7, 4, v8"); A(f"v_mul_u32_u24 v{VOX}, 896, v8"); A(f"v_add_u32 v{VOX}, v{VOX}, v6")
    voff4(A, VOX, 1792)
    A(f"s_lshl_b32 s{XB}, s{S_ROT}, 3"); A(f"s_and_b32 s6, s{LW}, 1"); A(f"s_add_u32 s{XB}, s{XB}, s6"); A(f"s_mul_i32 s{XB}, s{XB}, {8*896}")
    A(f"s_mul_i32 s{LM4}, s{LW}, {4*ST}"); A(f"s_mul_i32 s{VB1}, s{LW}, {4*STQ}"); A("s_lshl_b32 s6, s6, 3"); A(f"s_add_u32 s{VB1}, s{VB1}, s6")
    A("v_lshrrev_b32 v3, 5, v2"); A("v_and_b32 v4, 31, v2"); A("v_lshlrev_b32 v8, 4, v4"); A(f"v_lshl_add_u32 v{VOWQ}, v3, 15, v8")
    voff4(A, VOWQ, 8192, STQ)
    A(f"s_lshl_b32 s{WQB}, s{LW}, 16"); A(f"s_lshl_b32 s6, s{S_H}, 9"); A(f"s_add_u32 s{WQB}, s{WQB}, s6")
    A("s_getpc_b64 s[74:75]"); A("L_pc:"); A("s_add_u32 s74, s74, L_table-L_pc"); A("s_addc_u32 s75, s75, 0")
    A(f"s_lshl_b32 s6, s{S_J}, 9"); A("v_add_u32 v9, s6, v8")
    A("s_mov_b32 m0, 0"); A("s_mov_b32 exec_hi, 0"); A("global_load_lds_dwordx4 v9, s[74:75]"); A("s_mov_b32 exec_hi, -1")
    if cfg.stamps == 1: A(stamp(cfg, 2))
    A("s_waitcnt lgkmcnt(0)")
    mk_srd(A, SRD_X, 48, 8*128*448*2, 4096)
    t0 = make_table(0, cfg)
    ld_emit(A, cfg, t0[0])
    mk_srd(A, SRD_WQ, 54, 448*4096*2, 4096)
    ld_emit(A, cfg, t0[1]); ld_emit(A, cfg, t0[2])
    if cfg.stamps == 1: A(stamp(cfg, 3))
    if cfg.fbar:
        rot_table(A, 2, 4); ld_emit(A, cfg, t0[3])
        A("s_waitcnt vmcnt(8)")
        if cfg.stamps == 1: A(stamp(cfg, 1))
        A("s_barrier")
        ld_emit(A, cfg, t0[4])

def common_tail_setup(A):
    A("s_mov_b32 s0, s92"); A("s_mov_b32 s1, s93")
    mk_srd(A, SRD_WS, 94, 256 << 20); mk_srd(A, SRD_OUT, 58, 8*128*448*2)
    A(f"s_lshl_b32 s{S_FB}, s{S_ROT}, 12"); A(f"s_add_u32 s{S_FB}, s{S_FB}, {FLAG_BASE}")
    A(f"s_mov_b32 s{S_BUD}, 0x20000")

def gen_loader(A, cfg):
    NB = SCHED["nbar"]
    if cfg.lprio: A(f"s_setprio {cfg.lprio}")
    rot_table(A, 4 if cfg.fbar else 2, 8)
    A(f"s_lshl_b32 s80, s{S_B}, 3"); A("s_add_u32 s80, s80, s4"); A(f"s_mul_i32 s5, s80, {cfg.xm}"); A(f"s_and_b32 s5, s5, {cfg.xmask}"); A("s_lshl_b32 s80, s80, 19")
    A("s_lshr_b32 s6, s5, 6"); A("s_lshl_b32 s6, s6, 15"); A(f"s_or_b32 s{KB_}, s80, s6"); A("s_and_b32 s5, s5, 63")
    A(f"s_and_b32 s78, s{LW}, 1"); A("s_lshl_b32 s78, s78, 2"); A(f"s_lshr_b32 s79, s{LW}, 1")
    A("s_xor_b32 s6, s79, 1"); A("s_lshl_b32 s6, s6, 8"); A(f"s_or_b32 s{VB0}, s{KB_}, s6")
    A(f"s_lshl_b32 s{WOB}, s{S_H}, 8"); A("s_lshl_b32 s6, s79, 6"); A(f"s_add_u32 s{WOB}, s{WOB}, s6"); A(f"s_add_u32 s{WOB}, s{WOB}, s78"); A(f"s_mul_i32 s{WOB}, s{WOB}, 896")
    A("v_and_b32 v8, 15, v2"); A("v_lshlrev_b32 v8, 4, v8")
    A(f"s_lshl_b32 s6, s{LW}, 2"); A("s_xor_b32 s6, s6, s5"); A("v_lshlrev_b32 v41, 4, v7"); A("v_xor_b32 v41, s6, v41")
    A("s_lshl_b32 s6, s79, 5"); A("s_add_u32 s6, s6, s78"); A("s_xor_b32 s6, s6, s5"); A("v_lshlrev_b32 v42, 3, v7"); A("v_xor_b32 v42, s6, v42")
    for vo, src in ((VOK, 41), (VOV, 42)):
        for ii in range(4):
            A(f"v_xor_b32 v{vo+ii}, {ii}, v{src}"); A(f"v_lshl_add_u32 v{vo+ii}, v{vo+ii}, 9, v8"); A(f"v_add_u32 v{vo+ii}, {4096 - ii*ST}, v{vo+ii}")
    A("v_lshlrev_b32 v41, 8, v3"); A("v_xor_b32 v42, 0x100, v41")
    for ii in range(4):
        A(f"v_add_u32 v{VOK2+ii}, v42, v{VOK+ii}"); A(f"v_add_u32 v{VOK+ii}, v41, v{VOK+ii}")
    A(f"v_mul_u32_u24 v{VOWO}, {8*896}, v5"); A(f"v_add_u32 v{VOWO}, v{VOWO}, v6")
    voff4(A, VOWO, 896)
    mk_srd(A, SRD_K, 50, 32 << 20, 4096); mk_srd(A, SRD_V, 52, 32 << 20, 4096); mk_srd(A, SRD_WO, 56, 4096*448*2, 4096)
    A(f"s_lshl_b32 s76, s{S_ROT}, 2"); A(f"s_add_u32 s76, s76, s{LW}"); A(f"s_mul_i32 s76, s76, {28*128}"); A(f"s_mul_i32 s6, s{S_H}, {256*896}"); A("s_add_u32 s76, s76, s6")
    A("v_min_u32 v10, 27, v2"); A("v_lshlrev_b32 v10, 7, v10"); A("v_add_u32 v10, 4096, v10")
    A(f"s_lshl_b32 s77, s{LW}, 13"); A(f"s_add_u32 s77, s77, s{KB_}"); A("v_lshlrev_b32 v40, 7, v2"); A("v_add_u32 v40, 4096, v40")
    if cfg.cpf:
        A(f"s_sub_u32 s72, s74, L_table-{KNAME}"); A("s_subb_u32 s73, s75, 0")
        A("s_lshr_b32 s6, s2, 3"); A("s_lshl_b32 s6, s6, 2"); A(f"s_add_u32 s6, s6, s{LW}"); A("s_lshl_b32 s6, s6, 7")
        A("v_lshlrev_b32 v45, 14, v2"); A("v_add_u32 v45, s6, v45"); A(f"v_min_u32 v45, L_table-{KNAME}, v45")
        A("global_load_dword v11, v45, s[72:73]")
    common_tail_setup(A)
    A(f"s_mul_i32 s6, s{S_ROT}, {56*16384}"); A(f"s_lshl_b32 s7, s{S_H}, 10"); A("s_add_u32 s6, s6, s7"); A(f"s_mul_i32 s7, s{LW}, {14*16384}"); A("s_add_u32 s6, s6, s7")
    A("v_min_u32 v43, 13, v2"); A("v_lshlrev_b32 v43, 14, v43"); A("v_add_u32 v43, s6, v43")
    A(f"s_add_u32 s6, s{S_FB}, 3968"); A("v_mov_b32 v44, s6"); A("v_cmp_lt_u32 vcc, 31, v2"); A("s_nop 1"); A("v_cndmask_b32 v43, v43, v44, vcc")
    mod7(A, S_ROT, 2)
    for j in range(1, 4):
        A(f"s_cmp_eq_u32 s{S_J}, {j}"); A(f"s_cbranch_scc1 L_ld{j}")
    chk = SCHED["chk"]
    for j in range(4):
        A(f"L_ld{j}:")
        tab = make_table(j, cfg); pos = NSTATIC
        q = ["tab"] + [e["p"] for e in tab[:NSTATIC] for _ in range(4)]
        if cfg.fbar:
            assert [e["t"] for e in tab[:5]] == [e["t"] for e in make_table(0, cfg)[:5]]
            pos = 5; q = [e["p"] for e in tab[2:5] for _ in range(4)] + (["pf"] if cfg.cpf else [])
        rot_done = False; lastl = -100
        for k in range(1 if cfg.fbar else 0, NB):
            n = NSTATIC if k == 0 else (1 if (cfg.fbar and k == 1) else 0)
            def own(e): return not cfg.pf and e["t"][0] in ("K", "V") and (ATT.index(e["t"][:2]) & 3) == j
            while pos < len(tab) and tab[pos]["early"] <= k and (n < (cfg.first if k == 0 else 1) or (n < cfg.maxper and tab[pos]["late"] - k <= (cfg.la2q if k < 15 else cfg.la2)) or n < SCHED["boost"].get(k, 0) or tab[pos]["late"] <= k + 1):
                if cfg.hold and k in SCHED["hold"] and tab[pos]["late"] > k + 1 and tab[pos]["t"][0] not in ("QX", "OX"): break
                if not own(tab[pos]) and k <= lastl + cfg.pause and tab[pos]["late"] > k + cfg.minla: break
                if cfg.pairl and own(tab[pos]) and tab[pos]["t"][2] == 0 and tab[pos+1]["early"] > k and tab[pos]["late"] > k + cfg.minla + 1: break
                if own(tab[pos]): lastl = k
                if tab[pos]["t"][0] == "WO" and not rot_done:
                    A(f"s_mov_b32 s{RQ}, s{S_ROT}"); rot_table(A, 1, 7); rot_done = True
                if tab[pos]["t"] == ATT[4*cfg.wown + j] + (0,):
                    A(f"buffer_load_dword v11, v10, {srd(SRD_WO)}, s76 offen"); q.append("pf")
                    A(f"v_mov_b32 v{VSP}, 0"); A(f"global_load_dword v{VMX}, v{VSP}, s[0:1] sc1"); q.append("pf")
                    if cfg.cpf:
                        A("global_load_dword v11, v45, s[72:73]"); q.append("pf")
                    if cfg.tlb:
                        A(f"buffer_load_dword v11, v43, {srd(SRD_WS)}, 0 offen"); q.append("pf")
                        A(f"buffer_load_dword v11, v{VSP}, {srd(SRD_OUT)}, s{XB} offen"); q.append("pf")
                c = ld_emit(A, cfg, tab[pos], j); q += [tab[pos]["p"]] * c; pos += 1
                if c: n += 1
            if cfg.pf:
                for ai, t in enumerate(ATT):
                    if (ai & 3) == j and max(chk[P[t + (0,)]] - cfg.pfd, cfg.pf0 + (ai & 3) * cfg.pf) == k:
                        A(f"s_xor_b32 s6, s77, {t[1]*32768}"); A(f"buffer_load_dword v11, v40, {srd(SRD_K if t[0] == 'K' else SRD_V)}, s6 offen"); q.append("pf")
            for i_, kk_ in enumerate(pfk(cfg)):
                if kk_ == k:
                    t = ATT[4*i_ + j]
                    A(f"s_xor_b32 s6, s77, {t[1]*32768}"); A(f"buffer_load_dword v11, v40, {srd(SRD_K if t[0] == 'K' else SRD_V)}, s6 offen"); q.append("pf")
            need = [p for p in chk if chk[p] == k + 1] + (["tab"] if k == 0 else [])
            for p in need: assert p == "tab" or ITEMS[p][0] in ("QX", "OX") or p in [e["p"] for e in tab[:pos]], (j, k, p)
            last = max((i for i, t in enumerate(q) if t in need), default=-1)
            if cfg.stamps == 1 and k == 0: A(stamp(cfg, 4))
            if last >= 0:
                kk = len(q) - 1 - last; assert kk <= 63
                A(f"s_waitcnt vmcnt({kk})"); del q[:last+1]
            pass
            if cfg.trace:
                A("s_memtime s[66:67]"); A("s_waitcnt lgkmcnt(0)"); A(f"v_writelane_b32 v{100 + k//64}, s66, {k % 64}")
            A("s_barrier")
            if cfg.trace:
                A("s_memtime s[66:67]"); A("s_waitcnt lgkmcnt(0)"); A(f"v_writelane_b32 v{102 + k//64}, s66, {k % 64}")
        assert pos == len(tab)
        if cfg.trace:
            A(f"s_lshl_b32 s6, s2, 2"); A(f"s_add_u32 s6, s6, s{LW}"); A("s_lshl_b32 s6, s6, 10"); A(f"s_add_u32 s6, s6, {66<<20}"); A("v_lshlrev_b32 v104, 2, v2")
            for i in range(4): A(f"buffer_store_dword v{100+i}, v104, {srd(SRD_WS)}, s6 offen offset:{i*256}")
        A(f"s_mov_b32 s{S_G}, s{LW}")
        A("s_branch L_reduce")

def build_compute(cfg):
    L = []; A = L.append
    A("L_compute:")
    A(f"s_and_b32 s{S_QB}, s{S_W}, 1"); A(f"s_lshr_b32 s{S_KH}, s{S_W}, 1")
    A(f"s_mov_b32 s{S_C}, {f32(math.log2(math.e) / 16.0):#x}")
    A(f"s_lshl_b32 s{S_YB}, s{S_ROT}, 1"); A(f"s_add_u32 s{S_YB}, s{S_YB}, s{S_QB}")
    A(f"s_mul_i32 s{S_YB}, s{S_YB}, 28"); A(f"s_lshl_b32 s6, s{S_KH}, 1"); A(f"s_add_u32 s{S_YB}, s{S_YB}, s6"); A(f"s_lshl_b32 s{S_YB}, s{S_YB}, 4")
    A(f"s_add_u32 s{S_YB}, s{S_YB}, s{S_H}"); A(f"s_lshl_b32 s{S_YB}, s{S_YB}, 10")
    A("v_and_b32 v3, 15, v2"); A("v_lshrrev_b32 v4, 4, v2"); A("v_bfe_u32 v5, v2, 2, 2"); A("v_and_b32 v6, 3, v2"); A("v_lshlrev_b32 v6, 3, v6")
    VWQ, VXB, VQW, VQR = 51, 52, 53, 54
    A("v_lshrrev_b32 v7, 2, v2"); A(f"v_mul_u32_u24 v{VWQ}, {STQ}, v7"); A(f"s_lshl_b32 s6, s{S_KH}, 8"); A(f"v_lshl_add_u32 v{VWQ}, v6, 1, v{VWQ}"); A("v_and_b32 v9, 1, v4"); A(f"v_lshl_add_u32 v{VWQ}, v9, 3, v{VWQ}"); A(f"v_add_u32 v{VWQ}, s6, v{VWQ}")
    A("v_and_b32 v7, 7, v7"); A(f"v_mul_u32_u24 v{VVB}, {ST}, v7"); A("v_lshrrev_b32 v8, 5, v2"); A(f"v_lshl_add_u32 v{VVB}, v8, 8, v{VVB}")
    A(f"s_mul_i32 s6, s{S_KH}, {8*ST}"); A(f"v_add3_u32 v{VVB}, v{VVB}, v6, s6")
    A(f"v_mul_u32_u24 v{VKB}, {ST}, v3"); A(f"v_lshl_add_u32 v{VKB}, v4, 4, v{VKB}"); A(f"s_lshl_b32 s6, s{S_KH}, 9"); A(f"v_add_u32 v{VKB}, s6, v{VKB}")
    A("v_lshrrev_b32 v9, 1, v3"); A(f"v_mul_u32_u24 v{VXB}, {ST}, v9"); A("v_and_b32 v9, 1, v2"); A(f"v_lshl_add_u32 v{VXB}, v9, 7, v{VXB}"); A(f"v_lshl_add_u32 v{VXB}, v4, 4, v{VXB}")
    A(f"s_lshl_b32 s6, s{S_QB}, 9"); A(f"v_add_u32 v{VXB}, s6, v{VXB}")
    A(f"s_lshl_b32 s6, s{S_KH}, 13"); A(f"v_lshlrev_b32 v{VQW}, 4, v2"); A(f"v_add_u32 v{VQW}, s6, v{VQW}"); A(f"v_xor_b32 v{VQR}, 0x2000, v{VQW}")
    for r in range(128, 192, 2): A(f"v_mov_b64 v[{r}:{r+1}], 0")
    A(f"v_mov_b32 v{VLA}, 0"); A(f"v_mov_b32 v{VL0}, s{S_C}"); A(f"v_mov_b32 v{VL1}, s{S_C}")
    A("s_waitcnt lgkmcnt(0)")
    common_tail_setup(A)
    mod7(A, S_ROT, 2)
    A(f"s_add_u32 s6, s2, s{S_W}"); A("s_cmp_lg_u32 s6, 0"); A("s_cbranch_scc1 L_notag")
    A("s_memrealtime s[6:7]"); A("s_waitcnt lgkmcnt(0)"); A("s_or_b32 s6, s6, 1"); A("v_mov_b32 v9, s6")
    A(f"global_store_dword v{VLA}, v9, s[0:1] sc1")
    A("L_notag:")
    if cfg.prio: A(f"s_setprio {cfg.prio}")

    def xr(n): return 4 * (n % 16)
    def acc(ks, cb, u): return OA + ((ks*2 + cb)*2 + u) * 4
    M = []
    for tt in range(14):
        for dt in range(8): M.append(dict(ph="Q", tt=tt, dt=dt, item=("WQ", tt)))
    for t_ in ATT:
        for half in range(2):
            if t_[0] == "K":
                for k4 in range(4):
                    for kt in range(2): M.append(dict(ph="QK", j=t_[1], k4=k4, kt=kt, half=half, item=t_ + (half,)))
            else:
                for dt in range(8): M.append(dict(ph="PV", j=t_[1], dt=dt, half=half, item=t_ + (half,)))
    for c_ in range(7):
        for hh in range(2):
            for k4 in range(4):
                for nt in range(2): M.append(dict(ph="O", c=c_, hh=hh, k4=k4, nt=nt, item=("WO", c_, hh)))
    N = len(M); assert N == 736
    start = {}
    for n, m in enumerate(M): start.setdefault(m["item"], n)
    LA, FA = cfg.LA, cfg.FA
    fill = {n: [] for n in range(-1, N)}
    pre = {n: [] for n in range(-1, N)}
    post = {n: [] for n in range(-1, N)}
    tailf = {n: [] for n in range(-1, N)}
    a0 = start[("K", 0, 0)]; o0 = start[("WO", 0, 0)]
    hard = {0, o0}
    VWO, VST, VTA, VTB = VKB, VVB, 52, 53
    def tab_read(p, dst=VF, ar=VLA): return Op(f"ds_read_b32 v{dst}, v{ar} offset:@T{p*4}@", kind="lds", prod=("fl", p, dst))
    def need(ps, cons): return Op(f"; need", kind="use", cons=cons, prod=list(ps))
    def release(p): return Op(f"; free", kind="rel", prod=p)
    def cbar(): return [Op("s_waitcnt lgkmcnt(0)", kind="drain"), Op("s_barrier")]
    basereg = {"WQ": VWQ, "K": VKB, "V": VVB, "WO": VWO}
    pat = []
    for ln in cfg.pat.split("_"): pat += list(range(int(ln)))
    assert len(pat) == 32
    buf = [pat[(n - a0 - 16) % 32] for n in range(N)]
    xbuf = {}
    for k in range(4):
        xbuf[a0 + 4 + k] = S1 + 4*k; xbuf[o0 - 4 + k] = S0 + 4*k
        buf[a0 + 4 + k] = 10 + k; buf[o0 - 4 + k] = 20 + k
    def freg(n): return xbuf.get(n, FR + 4 * buf[n])
    prevu = {}
    lastu = {}
    for n in range(N):
        prevu[n] = lastu.get(buf[n], -10); lastu[buf[n]] = n
    def lo_gap(n): return max(h for h in hard if h <= n) - 1
    def read_gap(n):
        lo = lo_gap(n)
        return max(n - (8 if n in xbuf else LA), lo, prevu[n])
    for t in ITEMS:
        if t not in start: continue
        s = start[t]; g = read_gap(s); gf = max(g - FA, lo_gap(s) + (0 if s in hard else 1)); p = P[t]
        nd = [p]; rl = [p]; vf = VF
        if t[0] == "WO":
            p0 = P[("WO", t[1], 0)]
            tr = tab_read(p0, VF, VTA if t[2] == 0 else VTB); tr.prod = ("fl", p, VF); tr.text = tr.text.replace("@T", "").replace("@", "")
            nd = [p0, p0 + 1] if t[2] == 0 else []
            rl = [p0, p0 + 1] if t[2] == 1 else []
        elif t[0] in ("K", "V"):
            assert P[t[:2] + (0,)] % 2 == 0
            if t[2] == 0: tr = Op(f"ds_read_b64 v[{VF}:{VF+1}], v{VLA} offset:@T{p*4}@", kind="lds", prod=("fl", p, VF))
            else: tr = None; vf = VF + 1
        else: tr = tab_read(p)
        if tr: (post if gf == g else fill)[gf].append(tr)
        post[g] += ([] if s in hard else [Op("s_barrier")]) + [need(nd, [("fl", p, VF)]), Op(f"v_add_u32 v{VA}, v{vf}, v{basereg[t[0]]}")]
        tailf[s + 7] += [release(x) for x in rl]
    for i in range(4):
        s = start[("WQ", 4*i)]; p = P[("X", i)]
        ops = [tab_read(p, VT0), need([p], [("fl", p, VT0)]), Op(f"v_add_u32 v{VT0}, v{VT0}, v{VXB}")]
        rds = []
        for k in range(8 if i < 3 else 4):
            tl, cb = k >> 1, k & 1
            r = xr(8*i + k)
            rds.append(Op(f"ds_read_b128 a[{r}:{r+3}], v{VT0} offset:{(tl>>1)*8*ST + cb*256 + (tl&1)*64}", kind="lds", prod=("X", 8*i+k)))
        if i == 0:
            pre[-1] += [Op("s_barrier")] + ops + rds[:2]
            fill[-1] += rds[2:]
            fill[5].append(release(p))
        else:
            fill[s - 15].append(ops[0]); fill[s - 12] += ops[1:]
            for k, r in enumerate(rds): fill[s - 12 + k // 2].append(r)
            fill[s - 2].append(release(p))
    def Sreg(j): return S0 if j % 2 == 0 else S1
    def spread(ops, a, b):
        k = b - a
        w = [2 if o.text.startswith("v_exp") else 1 for o in ops]; tot = sum(w); c = 0
        for o, wi in zip(ops, w):
            fill[a + (c * k) // tot].append(o); c += wi
    def max_cb(s, r0, r1):
        o = []
        for k in range(4):
            for cb, r in ((0, r0), (1, r1)):
                b = s + 8*cb
                o.append([f"v_max3_f32 v{r}, v{b}, v{b+1}, v{b+2}", f"v_max3_f32 v{r}, v{r}, v{b+3}, v{b+4}", f"v_max3_f32 v{r}, v{r}, v{b+5}, v{b+6}", f"v_max_f32 v{r}, v{r}, v{b+7}"][k])
        return o
    def step_ops(j):
        s = Sreg(j); t0 = Sreg(j+1) + 8; t1 = t0 + 1; L_ = []
        def add(txt, deps): L_.append((Op(txt), deps)); return len(L_) - 1
        a = add(f"v_max3_f32 v{t0}, v{s}, v{s+1}, v{s+2}", []); b = add(f"v_max3_f32 v{t1}, v{s+8}, v{s+9}, v{s+10}", [a])
        a = add(f"v_max3_f32 v{t0}, v{t0}, v{s+3}, v{s+11}", [b]); b = add(f"v_max3_f32 v{t1}, v{t1}, v{s+4}, v{s+5}", [a])
        a = add(f"v_max3_f32 v{t0}, v{t0}, v{s+6}, v{s+7}", [b]); b = add(f"v_max3_f32 v{t1}, v{t1}, v{s+12}, v{s+13}", [a])
        a = add(f"v_max3_f32 v{t0}, v{t0}, v{s+14}, v{s+15}", [b]); a = add(f"v_max_f32 v{t0}, v{t0}, v{t1}", [a])
        a = add(f"v_cmp_lt_f32 vcc, s{S_T}, v{t0}", [a]); br = add(f"s_cbranch_vccnz L_ra_@{j-1}@\nL_rab_@{j-1}@:", [a])
        ex = {}; ad = {}; cv = {}
        for r in range(16): ex[r] = add(f"v_exp_f32 v{s+r}, v{s+r}", [br] + ([ex[r-1]] if r else []))
        for r in range(16):
            ad[r] = add(f"v_add_f32 v{VL0 + r//8}, v{VL0 + r//8}, v{s+r}", [ex[r]] + ([ad[r-1]] if r else []))
            if r % 2: cv[r//2] = add(f"v_cvt_pk_bf16_f32 v{s + r//2}, v{s+r-1}, v{s+r}", [ex[r], ad[r//2]] + ([cv[r//2-1]] if r > 1 else []))
        return L_
    def xlane(op, regs, tmp):
        o = []
        for sw in ("v_permlane16_swap_b32", "v_permlane32_swap_b32"):
            for r, t in zip(regs, tmp): o.append(f"v_mov_b32 v{t}, v{r}")
            o.append("s_nop 1")
            for r, t in zip(regs, tmp): o.append(f"{sw} v{t}, v{r}")
            o.append("s_nop 1")
            for r, t in zip(regs, tmp): o.append(f"{op} v{r}, v{r}, v{t}")
        return o
    e = a0 - 1; pq = P[("QX", 0)]
    fill[e - 4] += [Op(f"s_lshl_b32 s6, s{S_QB}, 2"), Op(f"v_mov_b32 v{VMX}, s6")]
    fill[e - 3].append(tab_read(pq, VT0, VMX))
    fill[e - 1] += [need([pq, pq+1], [("fl", pq, VT0)]), Op(f"v_add_u32 v{VQW}, v{VT0}, v{VQW}"), Op(f"v_add_u32 v{VQR}, v{VT0}, v{VQR}")]
    qx = [Op("; HOLD")]
    def qpack(f):
        r = OA + 8*f; d = OA + 4*f
        return [Op(f"v_pk_mul_f32 v[{r+k}:{r+k+1}], v[{r+k}:{r+k+1}], v[{VL0}:{VL1}]") for k in (0, 2, 4, 6)] + \
               [Op(f"v_cvt_pk_bf16_f32 v{d+k}, v{r+2*k}, v{r+2*k+1}") for k in range(4)] + \
               [Op(f"ds_write_b128 v{VQW}, v[{d}:{d+3}] offset:{f*1024}", kind="lds", prod=("wq",))]
    for f in range(8): qx += qpack(f)
    tailf[e] += qx + [Op("s_nop 0")]
    g2 = read_gap(a0 + 8)
    bi = [i for i, o in enumerate(post[g2]) if o.text == "s_barrier"][0]
    post[g2].insert(bi, Op("; wq done", kind="use", cons=[("wq",)]))
    post[g2].insert(bi + 2, Op("; BOOST"))
    qr = [Op(f"ds_read_b128 a[{QF+4*s}:{QF+4*s+3}], v{VQR if s >= 8 else VQW} offset:{(s%8)*1024}", kind="lds", prod=("Q", s)) for s in list(range(8, 16)) + list(range(8))]
    post[g2] += qr[:2]
    for k in range(2, 16): fill[g2 + k // 2].append(qr[k])
    spread([Op(f"v_mov_b64 v[{r}:{r+1}], 0") for r in range(96, 128, 2)], a0, a0 + 4)
    spread([Op(f"v_mov_b64 v[{r}:{r+1}], 0") for r in range(64, 96, 2)], a0 + 8, a0 + 16)
    tailf[a0 + 15] += [Op("; q all", kind="use", cons=[("Q", s) for s in range(16)]), release(pq), release(pq + 1)]
    im = ["s_nop 7"] + max_cb(S0, NM, NM+4) + xlane("v_max_f32", (NM, NM+4), (VL0, VL1))
    im += [f"v_sub_f32 v{S0+r}, v{S0+r}, v{NM + 4*(r//8)}" for r in range(16)]
    im += [f"v_sub_f32 v{NM+4*cb+k}, 0, v{NM+4*cb}" for cb in range(2) for k in (3, 2, 1, 0)] + [f"v_mov_b32 v{VL0}, 0", f"v_mov_b32 v{VL1}, 0"]
    for j in range(15):
        pvs = start[("V", j, 0)]
        tailf[pvs + 15] += [Op(f"s_cbranch_vccnz L_rb_@{j}@"), Op(f"L_rbb_@{j}@:"), Op(f"; STEP {j+1}")]
    e = o0 - 1; po = P[("OX", 0)]
    pv = start[("V", 15, 0)]
    T = S1 + 8; WA, RA, FO = 49, 50, 52
    KP = OA + 64
    tailf[pv - 1] += []
    pre_ml = [Op(x) for x in xlane("v_add_f32", (VL0, VL1), (T, T+1))]
    pre_ml += [Op(f"v_mbcnt_lo_u32_b32 v{T+2}, -1, 0"), Op(f"v_mbcnt_hi_u32_b32 v{T+2}, -1, v{T+2}"), Op(f"v_mov_b32 v54, v{NM}"), Op(f"v_lshlrev_b32 v51, 4, v{T+2}"),
               Op(f"s_lshl_b32 s6, s{S_W}, 10"), Op(f"s_add_u32 s6, s6, {MLX}"), Op(f"v_add_u32 v{T+3}, s6, v51"), Op("; HOLD"),
               Op(f"ds_write_b128 v{T+3}, v[54:57]", kind="lds", prod=("wm",)),
               Op(f"s_xor_b32 s7, s{S_W}, 2"), Op("s_lshl_b32 s7, s7, 10"), Op(f"s_add_u32 s7, s7, {MLX}"), Op(f"v_add_u32 v{T+3}, s7, v51"),
               Op(f"s_lshl_b32 s6, s{S_QB}, 2"), Op(f"v_mov_b32 v{WA}, s6"), Op(f"ds_read_b32 v{WA}, v{WA} offset:{po*4}", kind="lds", prod=("fl", po, WA))]
    spread(pre_ml, pv, pv + 3)
    spread([Op(f"v_bfe_u32 v{T}, v{T+2}, 2, 3"), Op(f"v_mul_u32_u24 v{VWO}, {ST}, v{T}"), Op(f"v_lshrrev_b32 v{T}, 5, v{T+2}"), Op(f"v_lshl_add_u32 v{VWO}, v{T}, 7, v{VWO}"),
            Op(f"v_and_b32 v{T}, 3, v{T+2}"), Op(f"v_lshl_add_u32 v{VWO}, v{T}, 3, v{VWO}"), Op(f"s_lshl_b32 s6, s{S_KH}, 6"), Op(f"v_add_u32 v{VWO}, s6, v{VWO}")], pv + 3, pv + 4)
    g1 = read_gap(pv + 8)
    bi = [i for i, o in enumerate(post[g1]) if o.text == "s_barrier"][0]
    post[g1].insert(bi, Op("; wm done", kind="use", cons=[("wm",)]))
    post[g1] += [Op(f"ds_read_b128 v[{T+4}:{T+7}], v{T+3}", kind="lds", prod=("ml",)), Op(f"v_mov_b32 v{VST}, v51")]
    fac = [need([po, po+1], [("fl", po, WA)]), Op(f"s_lshl_b32 s6, s{S_KH}, 13"), Op("s_xor_b32 s7, s6, 0x2000"),
           Op(f"v_add3_u32 v{RA}, v{WA}, v{VST}, s7"), Op(f"v_add3_u32 v{WA}, v{WA}, v{VST}, s6")]
    for cb in range(2):
        fo = T + cb
        fac += [Op(f"v_min_f32 v{T+2}, v{T+4+cb}, v{54+cb}", kind="use", cons=[("ml",)]), Op(f"v_sub_f32 v{fo}, v{T+2}, v{54+cb}"), Op(f"v_sub_f32 v{T+4+cb}, v{T+2}, v{T+4+cb}"),
                Op(f"v_exp_f32 v{fo}, v{fo}"), Op(f"v_exp_f32 v{T+4+cb}, v{T+4+cb}"), Op("s_nop 0"),
                Op(f"v_mul_f32 v{T+2}, v{VL0+cb}, v{fo}"), Op(f"v_fmac_f32 v{T+2}, v{T+6+cb}, v{T+4+cb}"), Op(f"v_rcp_f32 v{T+2}, v{T+2}"), Op("s_nop 0"),
                Op(f"v_mul_f32 v{fo}, v{fo}, v{T+2}")]
    fac += [Op(f"v_mov_b32 v54, v{T}"), Op(f"v_mov_b32 v56, v{T+1}"), Op(f"s_lshl_b32 s6, s{S_KH}, 2"), Op(f"v_mov_b32 v{VTA}, s6"), Op(f"v_xor_b32 v{VTB}, 4, v{VTA}")]
    spread(fac, g1 + 2, pv + 9)
    snd = [Op("; HOLD")]
    for f in range(8):
        r = OA + 8*f; d = OA + 4*f; cb = f & 1
        snd += [Op(f"v_mul_f32 v{r+k}, v{r+k}, v{54+2*cb}") for k in range(8)] + [Op(f"v_cvt_pk_bf16_f32 v{d+k}, v{r+2*k}, v{r+2*k+1}") for k in range(4)]
        snd.append(Op(f"ds_write_b128 v{WA}, v[{d}:{d+3}] offset:{f*1024}", kind="lds", prod=("w",)))
    spread(snd, pv + 9, e + 1)
    ox = [Op("v_mov_b32 v51, 0"), Op(f"global_load_dword v{VMX}, v51, s[0:1] sc1"), Op(f"s_mov_b32 s{S_G}, s{S_ROT}")] + cbar() + [Op("; BOOST1")]
    RC = OA + 32
    for f in range(8):
        ox.append(Op(f"ds_read_b128 v[{RC+4*f}:{RC+4*f+3}], v{RA} offset:{f*1024}", kind="lds", prod=("o", f)))
    ox2 = []
    for f in range(8):
        cb = f & 1; r = KP + 8*f
        for k in range(4):
            t_ = S0 + 2*((4*f + k) % 8)
            ox2 += [Op(f"v_lshlrev_b32 v{t_}, 16, v{RC+4*f+k}", kind="use", cons=[("o", f)]), Op(f"v_and_b32 v{t_+1}, 0xffff0000, v{RC+4*f+k}")]
        for k in range(4):
            t_ = S0 + 2*((4*f + k) % 8)
            ox2.append(Op(f"v_pk_fma_f32 v[{r+2*k}:{r+2*k+1}], v[{r+2*k}:{r+2*k+1}], v[{54+2*cb}:{55+2*cb}], v[{t_}:{t_+1}] op_sel_hi:[1,0,1]"))
        ox2 += [Op(f"v_cvt_pk_bf16_f32 v{OA+4*f+k}, v{r+2*k}, v{r+2*k+1}") for k in range(4)]
        ox2.append(Op(f"ds_write_b128 v{RA}, v[{OA+4*f}:{OA+4*f+3}] offset:{f*1024}", kind="lds", prod=("w2",)))
    ox2 += [Op("s_nop 1")]
    pre[e] = tailf[e] + fill[e] + ox; fill[e] = ox2; tailf[e] = []
    g2 = read_gap(o0 + 8)
    bi = [i for i, o in enumerate(post[g2]) if o.text == "s_barrier"][0]
    post[g2].insert(bi, Op("; w2", kind="use", cons=[("w2",)]))
    post[g2] += [Op(f"ds_read_b128 a[{4*s}:{4*s+3}], v{WA} offset:{s*1024}", kind="lds", prod=("Of", s)) for s in range(8)] + [Op(f"v_mov_b32 v{VSP}, 0")]
    fill[o0 + 9] += [release(po), release(po + 1)]
    def Y(c_, cb, nt): return OA + 64 + 16 * (c_ & 1) + 8*cb + 4*nt
    nst = [1]
    stq = []
    def flag_ops(c_):
        k = len(stq) - 1 - max(i for i, x in enumerate(stq) if x == c_)
        stq.append("f")
        return [Op(f"s_waitcnt vmcnt({k})"), Op(f"buffer_store_dword v{VMX}, v{VSP}, {srd(SRD_WS)}, s{S_LC} offen offset:{c_*512} sc1")]
    TG = 32 << 20
    def ystore(c_):
        if c_ >= cfg.tagc:
            d = S0 + 12 * (c_ & 1) if False else (96 + 12 * (c_ & 1))
            y = Y(c_, 0, 0); parts = []
            for gi in range(3):
                seq = []
                for k in range(3):
                    w_ = 3*gi + k
                    if w_ < 8: seq.append(Op(f"v_cvt_pk_bf16_f32 v{d+4*gi+k}, v{y+2*w_}, v{y+2*w_+1}"))
                if gi == 0: seq.append(Op(f"s_add_u32 s{S_T2}, s45, {(c_ - cfg.tagc) << 18}"))
                seq.append(Op(f"buffer_store_dwordx4 v[{d+4*gi}:{d+4*gi+3}], v{VST}, {srd(SRD_WS)}, s{S_T2} offen offset:{gi*1024} sc1")); stq.append(c_)
                parts.append(seq)
            parts.append([Op(f"buffer_store_dword v{VMX}, v{VSP}, {srd(SRD_WS)}, s{S_LC} offen offset:{c_*512} sc1")]); stq.append("f")
            return parts, []
        parts = []
        for cb in range(2):
            seq = [Op(f"s_lshl_b32 s{S_T2}, s{S_G}, 16"), Op(f"s_add_u32 s{S_T2}, s{S_T2}, s{S_YB}")] if cb == 0 else [Op(f"s_add_u32 s{S_T2}, s{S_T2}, 16384")]
            d = S1 + 4 * cb + 8 * (c_ & 1); y = Y(c_, cb, 0)
            for i in range(4): seq.append(Op(f"v_cvt_pk_bf16_f32 v{d+i}, v{y+2*i}, v{y+2*i+1}"))
            if cfg.halfst and cb == 1: seq.append(Op(f"buffer_store_dword v{d}, v{VSP}, {srd(SRD_WS)}, s{S_T2} offen sc1"))
            else: seq.append(Op(f"buffer_store_dwordx4 v[{d}:{d+3}], v{VST}, {srd(SRD_WS)}, s{S_T2} offen {cfg.stfl.replace('_', ' ')}"))
            stq.append(c_)
            parts.append(seq)
        return parts, [Op(f"s_add_u32 s{S_G}, s{S_G}, 1"), Op(f"s_cmp_eq_u32 s{S_G}, 7"), Op(f"s_cselect_b32 s{S_G}, 0, s{S_G}")]
    sigd = 0
    tl = []; tag_loop(tl.append, "c")
    tailf[o0 + 14] += [Op(f"s_lshl_b32 s{S_LC}, s{S_W}, 7"), Op(f"s_lshl_b32 s7, s{S_H}, 2"), Op(f"s_add_u32 s{S_LC}, s{S_LC}, s7"), Op(f"s_add_u32 s{S_LC}, s{S_LC}, s{S_FB}"), Op("s_waitcnt vmcnt(0)")] + [Op(x) for x in tl]
    spread([Op(f"v_mov_b32 v{96+4*g_+3}, v{VMX}") for g_ in range(6)] +
           [Op(f"s_sub_u32 s45, s{S_FB}, {FLAG_BASE}"), Op("s_lshl_b32 s45, s45, 8"), Op(f"s_lshl_b32 s7, s{S_W}, 16"), Op("s_add_u32 s45, s45, s7"), Op(f"s_lshl_b32 s7, s{S_H}, 12"), Op("s_add_u32 s45, s45, s7"), Op(f"s_add_u32 s45, s45, {TG}")], o0 + 21, o0 + 27)
    for c_ in range(7):
        parts, inc = ystore(c_)
        if c_ < 6:
            st = start[("WO", c_+1, 0)]
            if cfg.stpos == 0: spread([o for p_ in parts for o in p_], st + 3, st + 10)
            else:
                spread(parts[0][:-1], st + 2, st + 4); tailf[st + 3].append(parts[0][-1])
                rest = [o for p_ in parts[1:] for o in p_[:-1]]
                spread(rest, st + 5, st + 10); tailf[st + 11] += [p_[-1] for p_ in parts[1:]]
            fill[st + 13] += inc
            if 0 <= c_ - cfg.sigl < cfg.tagc:
                tailf[st + 11] += flag_ops(c_ - cfg.sigl); sigd = c_ - cfg.sigl + 1
        else:
            tailf[N-1] += [Op("s_nop 7")] + [o for p_ in parts for o in p_]
            for c2 in range(sigd, min(7, cfg.tagc)): tailf[N-1] += flag_ops(c2)

    def reads_for(n):
        m = M[n]; ops = []; fr = freg(n)
        if m["ph"] == "QK":
            return [Op(f"ds_read_b128 v[{fr}:{fr+3}], v{VA} offset:{m['kt']*256 + m['k4']*64}", kind="lds", prod=("F", n))]
        for hh in range(2):
            if m["ph"] == "Q": off = hh*512 + (m["dt"] >> 1)*64 + (m["dt"] & 1)*8
            elif m["ph"] == "PV": off = hh*512 + m["dt"]*32
            else: off = (m["k4"] >> 1)*8*ST + ((m["k4"] & 1)*4 + 2*hh)*128 + m["nt"]*32
            ops.append(Op(f"ds_read_b64_tr_b16 v[{fr+2*hh}:{fr+2*hh+1}], v{VA} offset:{off}", kind="lds", prod=("F", n)))
        return ops
    def mfma(n, cb):
        m = M[n]; fr = freg(n); cons = [("F", n)]; z = False
        if m["ph"] == "Q":
            d = acc(m["dt"] >> 1, cb, m["dt"] & 1); xn = 2*m["tt"] + cb; cons.append(("X", xn)); b = f"a[{xr(xn)}:{xr(xn)+3}]"; z = m["tt"] == 0
        elif m["ph"] == "QK":
            d = Sreg(m["j"]) + 8*cb + 4*m["kt"]; f = (4*m["half"] + m["k4"])*2 + cb; cons.append(("Q", f)); b = f"a[{QF+4*f}:{QF+4*f+3}]"; z = m["half"] == 0 and m["k4"] == 0
            if m["j"] == 0 and m["half"] == 0: b = f"v[{OA+4*f}:{OA+4*f+3}]"; cons.pop()
            if z and m["j"] > 0: z = f"v[{NM+4*cb}:{NM+4*cb+3}]"
        elif m["ph"] == "PV":
            d = acc(4*m["half"] + (m["dt"] >> 1), cb, m["dt"] & 1); p = Sreg(m["j"]) + 4*cb; b = f"v[{p}:{p+3}]"
        else:
            d = Y(m["c"], cb, m["nt"]); f = m["k4"]*2 + cb; z = m["hh"] == 0 and m["k4"] == 0
            if m["hh"] == 0: b = f"v[{OA+4*f}:{OA+4*f+3}]"
            else: b = f"a[{4*f}:{4*f+3}]"; cons.append(("Of", f))
        if cfg.w2 and cb == 0 and n % 2 == 0 and n + 1 < N and read_gap(n + 1) < n: cons.append(("F", n + 1))
        dd = f"v[{d}:{d+3}]"
        return Op(f"v_mfma_f32_16x16x32_bf16 {dd}, v[{fr}:{fr+3}], {b}, {z if isinstance(z, str) else ('0' if z else dd)}", kind="use", cons=cons)
    rd = {}
    for n in range(N): rd.setdefault(read_gap(n), []).append(n)
    stamp_at = [-1, 0, 64, 110, 111, a0+15, None, None, None, o0-2, o0-1, N-2, N-1] if cfg.fold else [-1, 0, 64, 110, 111, a0+15, a0+16+128, a0+16+256, a0+16+384, o0-2, o0-1, N-2, N-1]
    def wt(o): return 0 if o.text.startswith((";", "L_")) else (2 if o.text.startswith("v_exp") else 1)
    def haswait(n): return not (cfg.w2 and n % 2 == 1 and read_gap(n) < n - 1)
    half = {}
    carry = []
    for g in range(-1, N):
        r_ = [o for n in rd.get(g, []) for o in reads_for(n)]
        if g < 0 or pre[g]:
            half[2*g] = carry; half[2*g+1] = pre[g] + post[g] + r_ + fill[g]; carry = []; continue
        h0 = carry + post[g]; h1 = r_[:(len(r_)+1)//2]; carry = r_[(len(r_)+1)//2:]
        if g == a0 - 1: h1 += carry; carry = []
        w1 = (1 if g + 1 < N and haswait(g + 1) else 0) + sum(wt(o) for o in tailf[g])
        fl_ = list(fill[g]); tot = sum(wt(o) for o in h0 + h1 + fl_) + w1
        while fl_ and sum(wt(o) for o in h0) + wt(fl_[0]) <= (tot + 1) // 2: h0.append(fl_.pop(0))
        half[2*g] = h0; half[2*g+1] = h1 + fl_
    def fixed(h):
        w = sum(wt(o) for o in half[h])
        if h & 1: w += sum(wt(o) for o in tailf[h >> 1]) + (1 if haswait((h >> 1) + 1) else 0)
        return w
    def sched(L_, a, b, dl):
        fx = [fixed(h) for h in range(a, b)]
        late = [k for k, (o, d) in enumerate(L_) if o.text.startswith("v_add") and int(o.text.split("v")[-1]) % 16 >= cfg.defer]
        free = sum(max(0, 2 - f) for f in fx[:dl]); tot = sum(wt(o) for k, (o, _) in enumerate(L_) if k not in late)
        over = max(0, tot - free)
        done = {}; asg = []; used_over = 0.0; lastop = None
        for hi, f in enumerate(fx):
            cap = 2 - f
            budget = over * (hi + 1) / dl * cfg.ovf - used_over
            while True:
                rdy = [k for k, (o, d) in enumerate(L_) if k not in done and all(x in done for x in d) and not (lastop in d and L_[lastop][0].text.startswith("v_exp") and done[lastop] == hi)]
                if hi < dl: rdy = [k for k in rdy if k not in late]
                fit = [k for k in rdy if wt(L_[k][0]) <= cap]
                if fit:
                    k = max(fit, key=lambda k: (wt(L_[k][0]), -k))
                else:
                    fit = [k for k in rdy if (wt(L_[k][0]) - max(cap, 0) <= budget + 1e-9 and cap > -1) or cap == 1]
                    if not fit: break
                    k = min(fit, key=lambda k: (wt(L_[k][0]) - max(cap, 0), -wt(L_[k][0]), k))
                    o_ = wt(L_[k][0]) - max(cap, 0); used_over += o_; budget -= o_
                cap -= wt(L_[k][0]); done[k] = hi; asg.append((k, hi)); lastop = k
        rest = [k for k in range(len(L_)) if k not in done]
        assert all(k in late for k in rest), rest
        assert all(h < dl for k, h in asg if k not in late)
        asg += [(k, b - a - 1) for k in rest]
        SCHED["info"] = (tot, free, over, len(rest), [f + sum(wt(L_[k][0]) for k, h in asg if h == hi) for hi, f in enumerate(fx)])
        return asg
    pv4 = start[("V", 4, 0)]
    A0 = 3
    asg = sched(step_ops(5), 2*pv4 + A0, 2*pv4 + A0 + 64, 64 - A0 - 2)
    bnd = 32 - A0
    for j in range(16):
        L_ = step_ops(j)
        a = 2*(start[("V", j-1, 0)] if j > 0 else a0) + A0
        early0 = []
        for k, r in asg:
            o = L_[k][0]
            if j == 0 and r < bnd:
                if k >= 10: early0.append(o)
            elif j == 15 and r >= bnd: early0.append(o)
            else:
                assert not (j == 0 and k < 10)
                half[a + r].append(o)
        early0 = [o for o in early0 if o.text.startswith("v_exp")] + [Op("s_nop 0")] + [o for o in early0 if not o.text.startswith("v_exp")]
        if j == 15: tailf[start[("V", 15, 0)] - 1] += early0
        if j == 0: tailf[a0 + 15] += [Op(x) for x in im] + early0 + [Op("s_nop 1"), Op("; STEP 0")]
    tailf[start[("V", 15, 0)] - 1].append(Op("s_nop 1"))
    ops = []
    for g in range(-1, N):
        if g >= 0: ops += [mfma(g, 0)] + half[2*g] + [mfma(g, 1)] + half[2*g+1]
        else: ops += half[2*g+1]
        if cfg.stamps and g in stamp_at:
            tl_ = [Op(stamp(cfg, 1 + stamp_at.index(g))), Op("s_waitcnt lgkmcnt(0)")]
            if g == a0 + 15: ops += tl_ + tailf[g]
            else: ops += tailf[g] + tl_
        else: ops += tailf[g]
    nb = 0; relbar = {}; chkbar = {}; hold = set(); boost = {}
    for o in ops:
        if o.text == "; need":
            for p_ in o.prod: chkbar.setdefault(p_, nb)
        if o.kind == "rel": relbar[o.prod] = nb + 1
        if o.text == "; HOLD": hold.add(nb)
        if o.text == "; BOOST": boost.update({nb + i_: int(x) for i_, x in enumerate(cfg.bst.split("_"))})
        if o.text == "; BOOST1": boost[nb] = 2
        if o.text == "s_barrier": nb += 1
    SCHED.update(rel=relbar, chk=chkbar, nbar=nb, hold=hold, boost=boost)
    txt = []; q = []
    for o in ops:
        if o.kind == "lds":
            if len(q) >= 15:
                txt.append("s_waitcnt lgkmcnt(10)"); q = q[-10:]
            q.append(o.prod)
        elif o.kind == "use":
            last = max((i for i, t in enumerate(q) if t in o.cons), default=-1)
            if last >= 0:
                txt.append(f"s_waitcnt lgkmcnt({len(q) - 1 - last})"); q = q[last+1:]
        elif o.kind == "drain": q = []
        if not o.text.startswith(";") or o.text.startswith("; STEP"): txt.append(o.text)
    A(f"s_mov_b32 s{S_T}, {f32(cfg.thr):#x}")
    js = list(range(15))
    def fin(lines, toff=0): return [re.sub(r"@(\d+)@", r"\1", re.sub(r"@T(\d+)@", lambda m_: str(int(m_.group(1)) - toff), x)) for x in lines]
    if cfg.fold:
        pos = {int(x.split()[2]): i for i, x in enumerate(txt) if x.startswith("; STEP")}
        def norm(a, b, it):
            o = []
            for x in txt[pos[a]+1:pos[b]]:
                if x.startswith("; STEP"): continue
                x = re.sub(r"@T(\d+)@", lambda m_: "@T%d@" % (int(m_.group(1)) - 32*it), x)
                x = re.sub(r"_@(\d+)@", lambda m_: "_@%d@" % (int(m_.group(1)) - 2*it), x)
                o.append(x)
            return o
        f0 = cfg.f0; nit = (14 - f0) // 2
        body = norm(f0, f0 + 2, 0)
        for it in range(1, nit):
            b2 = norm(f0 + 2*it, f0 + 2*it + 2, it)
            assert b2 == body, (it, [(x, y) for x, y in zip(body, b2) if x != y][:5])
        for x in fin(txt[:pos[f0]]): A(x)
        A(f"s_mov_b32 s{S_LC}, {nit}")
        A(".p2align 6")
        A("L_attn:")
        lt = max(i for i, x in enumerate(body) if "@T" in x)
        body = body[:lt+1] + [f"v_add_u32 v{VLA}, 32, v{VLA}"] + body[lt+1:]
        dr = tuple(d.replace("-", "_") for d in cfg.drop.split("_") if d)
        if dr:
            body = [x for x in body if not x.startswith(dr)]; body = ["s_mov_b64 vcc, 0" if x.startswith("s_or_b64") else x for x in body]
        for x in fin(body): A(x)
        A(f"s_sub_u32 s{S_LC}, s{S_LC}, 1"); A(f"s_cmp_lg_u32 s{S_LC}, 0"); A("s_cbranch_scc1 L_attn")
        for x in fin(txt[pos[f0 + 2*nit]:], 32*nit): A(x)
        js = list(range(f0 + 2)) + list(range(f0 + 2*nit, 15))
    else:
        for x in fin(txt): A(x)
    A(f"s_add_u32 s{S_G}, s{S_W}, 4"); A(f"s_cmp_eq_u32 s{S_W}, 3"); A("s_cbranch_scc1 L_fin")
    if cfg.tagc < 7:
        assert cfg.tagc == 4
        gen_reduce_tagged(A, cfg)
    gen_reduce(A, cfg)
    for j in js:
        A(f"L_ra_{j}:"); A(f"s_call_b64 s[{S_RET}:{S_RET+1}], L_resa{j % 2}"); A(f"s_branch L_rab_{j}")
        A(f"L_rb_{j}:"); A(f"s_call_b64 s[{S_RET}:{S_RET+1}], L_resb{j % 2}"); A(f"s_branch L_rbb_{j}")
    for par in range(2):
        sn = Sreg(par + 1); t0 = Sreg(par) + 8
        A(f"L_resa{par}:")
        for x in max_cb(sn, t0, t0+1) + xlane("v_max_f32", (t0, t0+1), (t0+2, t0+3)): A(x)
        for cb in range(2):
            A(f"v_max_f32 v{t0+cb}, 0, v{t0+cb}")
            for r in range(8): A(f"v_sub_f32 v{sn+8*cb+r}, v{sn+8*cb+r}, v{t0+cb}")
            for k in range(4): A(f"v_sub_f32 v{NM+4*cb+k}, v{NM+4*cb+k}, v{t0+cb}")
            A(f"v_exp_f32 v{t0+cb}, -v{t0+cb}"); A("s_nop 0"); A(f"v_mul_f32 v{VL0+cb}, v{VL0+cb}, v{t0+cb}")
        A(f"s_setpc_b64 s[{S_RET}:{S_RET+1}]")
        A(f"L_resb{par}:")
        A("s_nop 7")
        for r in range(128): A(f"v_mul_f32 v{OA+r}, v{OA+r}, v{t0 + ((r >> 3) & 1)}")
        A("s_nop 1"); A(f"s_setpc_b64 s[{S_RET}:{S_RET+1}]")
    return L

def gen(cfg):
    comp = build_compute(cfg)
    out = [HEADER.rstrip()]; A = out.append
    A("; @launch grid=(256,1,1) block=(512,1,1) lds=163840")
    A('.amdgcn_target "amdgcn-amd-amdhsa--gfx950"'); A(".text")
    A(f".globl {KNAME}"); A(".p2align 8"); A(f".type {KNAME},@function"); A(f"{KNAME}:")
    gen_entry(A, cfg); gen_loader(A, cfg)
    A(".p2align 6")
    out += comp
    A(".p2align 8"); A(".type L_table,@object"); A("L_table:")
    for j in range(4):
        t = [0] * 128
        for e in make_table(j, cfg): t[e["p"]] = SLOT0 + e["slot"]*SLOTSZ
        for i in range(0, 128, 8): A(".long " + ", ".join(f"{x:#x}" for x in t[i:i+8]))
    A('.section .rodata,"a"'); A(".p2align 6")
    A(f""".amdhsa_kernel {KNAME}
  .amdhsa_next_free_vgpr 256
  .amdhsa_next_free_sgpr 102
  .amdhsa_accum_offset 192
  .amdhsa_group_segment_fixed_size 0
  .amdhsa_kernarg_size 64
  .amdhsa_user_sgpr_count 2
  .amdhsa_user_sgpr_kernarg_segment_ptr 1
  .amdhsa_system_sgpr_workgroup_id_x 1
.end_amdhsa_kernel""")
    return "\n".join(out) + "\n"

if __name__ == "__main__":
    cfg = Cfg()
    for a in sys.argv[2:]:
        k, v = a.split("=")
        setattr(cfg, k, int(v) if v.lstrip("-").isdigit() else (v if "_" in v else float(v)))
    open(sys.argv[1], "w").write(gen(cfg))
```

```python
import math, sys, struct, re

KNAME = "standalone__gqa_block_cached__near_ridge_kernel"
HEADER = open("standalone__gqa_block_cached__near_ridge.s.ref").read().split("; Override launch")[0]

class Cfg:
    LA = 4
    FA = 5
    shift = 8
    first = 4
    la2 = 5
    hold = 1
    maxper = 2
    stamps = 0
    nodma = 0
    lprio = 0
    prio = 0
    early = 20
    wopf = 58
    fold = 1
    f0 = 0
    sigl = 2
    thr = 8.0
    w2 = 1
    drop = '_'
    trace = 0
    ovf = 1.0
    emu = 0
    oxd = 5
    qxd = 2
    tagc = 7
    tlb = 0
    kvt = 0
    rsleep = 8
    pp = 0
    two = 1
    iirot = 0
    lsl = 0
    fsh = 2
    halfst = 0
    stfl = 'sc1_'
    cpf = 1
    wown = 6
    xm = 69
    xmask = 1023
    pfk = '_'
    la2q = 5
    bst = '2_1_2'
    stpos = 1
    fbar = 1
    pf = 0
    pfd = 12
    pf0 = 3
    defer = 12
    pause = 0
    minla = 2
    pairl = 0
    pat = '4_4_4_4_4_4_4_4'

S0, S1 = 0, 16
FR, NF = 32, 4
NM = 48
VL0, VL1, VF, VKB, VVB, VA, VLA = 56, 57, 58, 60, 61, 62, 63
VMX, VT0, VSP = 48, 49, 50
OA = 64
QF = 0
ST = 1056
MLX = 1024
SLOT0, SLOTSZ, NSLOT = 7168, 17408, 9
STQ = 1088
SRD_X, SRD_K, SRD_V, SRD_WQ, SRD_WO, SRD_WS, SRD_OUT = 8, 12, 16, 20, 24, 28, 96
S_W, S_B, S_H, S_QH, S_J = 3, 32, 33, 34, 35
S_QB, S_KH, S_C, S_YB, S_LC, S_BUD, S_T, S_T2, S_ROT = 36, 37, 38, 39, 40, 41, 42, 43, 44
S_RET = 8
S_G, S_FB = 62, 63
FLAG_BASE = 16 << 20
def srd(n): return f"s[{n}:{n+3}]"
def f32(x): return struct.unpack('<I', struct.pack('<f', x))[0]

class Op:
    def __init__(self, text, kind="x", prod=None, cons=None):
        self.text, self.kind, self.prod, self.cons = text, kind, prod, cons

ITEMS = []
for i in range(4):
    ITEMS.append(("X", i))
    ITEMS += [("WQ", t) for t in range(4*i, min(4*i+4, 14))]
ITEMS += [("QX", 0), ("QX", 1)]
ATT = [("K", 0)]
for j in range(16):
    if j < 15: ATT.append(("K", j+1))
    ATT.append(("V", j))
for t in ATT: ITEMS += [t + (0,), t + (1,)]
ITEMS += [("OX", i) for i in range(2)]
ITEMS += [("WO", c, hh) for c in range(7) for hh in range(2)]
P = {t: i for i, t in enumerate(ITEMS)}
NSTATIC = 3
SCHED = {}

def pfk(cfg): return [int(x) for x in str(cfg.pfk).split('_') if x]
def make_table(j, cfg):
    relbar, chkbar = SCHED["rel"], SCHED["chk"]
    key = {}
    for p, t in enumerate(ITEMS):
        k = float(p)
        if t[0] == "X" and t[1] > 0: k -= 2.5
        if not cfg.pf and t[0] in ("K", "V") and (ATT.index(t[:2]) & 3) == j and ATT.index(t[:2]) // 4 >= len(pfk(cfg)): k = P[t[:2] + (0,)] - cfg.shift - 0.5 + 0.01 * t[2]
        if t[0] == "OX": k = P[("OX", 1)] + cfg.oxd + 0.5 + 0.01 * t[1]
        if t[0] == "QX": k = P[("QX", 1)] + cfg.qxd + 0.45 + 0.01 * t[1]
        key[t] = max(k, NSTATIC - 0.5 + 0.001 * p) if p >= NSTATIC else k
    order = sorted(ITEMS, key=lambda t: key[t])
    assert order[:NSTATIC] == ITEMS[:NSTATIC]
    occ = [None] * NSLOT
    ent = []
    for t in order:
        free = [s for s in range(NSLOT) if occ[s] is None]
        if free: s = free[0]; early = 0
        else:
            s = min(range(NSLOT), key=lambda s: relbar[P[occ[s]]]); early = relbar[P[occ[s]]]
        occ[s] = t
        ent.append(dict(t=t, slot=s, early=early, p=P[t], late=chkbar[P[t]]))
    for a in range(1, len(ent)): ent[a]["early"] = max(ent[a]["early"], ent[a-1]["early"])
    late = 10**9
    for e in reversed(ent):
        lim = e["late"] - (0 if e["t"][0] in ("QX", "OX") else 1)
        assert e["early"] <= lim, ("deadlock", j, e)
        late = min(late, e["late"]); e["late"] = late
    return ent

def mk_srd(A, n, lo, size, bias=0):
    if bias:
        A(f"s_sub_u32 s{n}, s{lo}, {bias}"); A(f"s_subb_u32 s{n+1}, s{lo+1}, 0"); A(f"s_and_b32 s{n+1}, s{n+1}, 0xffff")
    else:
        A(f"s_mov_b32 s{n}, s{lo}"); A(f"s_and_b32 s{n+1}, s{lo+1}, 0xffff")
    A(f"s_mov_b32 s{n+2}, {size+bias:#x}"); A(f"s_mov_b32 s{n+3}, 0x20000")

def stamp(cfg, k): return f"{'s_memrealtime' if cfg.stamps == 1 else 's_memtime'} s[{64+2*k}:{65+2*k}]"

def stamp_tail(A, cfg):
    if not cfg.stamps: return
    A("s_waitcnt vmcnt(0)"); A(stamp(cfg, 15)); A("s_waitcnt lgkmcnt(0)")
    A(f"s_lshl_b32 s{S_T}, s2, 3"); A(f"s_add_u32 s{S_T}, s{S_T}, s{S_W}"); A(f"s_lshl_b32 s{S_T}, s{S_T}, 7"); A(f"s_add_u32 s{S_T}, s{S_T}, {64<<20}")
    A("s_mov_b64 exec, -1")
    for i in range(32): A(f"v_mov_b32 v{64+i}, s{64+i}")
    A("v_mov_b32 v1, 0"); A("s_mov_b64 exec, 1")
    for i in range(8): A(f"buffer_store_dwordx4 v[{64+4*i}:{67+4*i}], v1, {srd(SRD_WS)}, s{S_T} offen offset:{16*i}")

def tag_loop(A, lab):
    A(f"L_tag_{lab}:")
    A(f"v_cmp_ne_u32 vcc, 0, v{VMX}"); A(f"s_sub_u32 s{S_BUD}, s{S_BUD}, 1"); A(f"s_cbranch_scc1 L_tagok_{lab}"); A("s_nop 2"); A(f"s_cbranch_vccnz L_tagok_{lab}")
    A(f"v_mov_b32 v{VSP}, 0"); A(f"global_load_dword v{VMX}, v{VSP}, s[0:1] sc1"); A("s_waitcnt vmcnt(0)"); A(f"s_branch L_tag_{lab}")
    A(f"L_tagok_{lab}:")

def mod7(A, r, n=1):
    for _ in range(n):
        A(f"s_sub_u32 s7, s{r}, 7"); A(f"s_cmp_ge_u32 s{r}, 7"); A(f"s_cselect_b32 s{r}, s7, s{r}")

def gen_reduce(A, cfg):
    A("L_reduce:")
    A("v_mbcnt_lo_u32_b32 v2, -1, 0"); A("v_mbcnt_hi_u32_b32 v2, -1, v2")
    A(f"s_lshr_b32 s4, s{S_H}, 3"); A(f"s_bfe_u32 s5, s{S_H}, 0x10002"); A(f"s_bfe_u32 s6, s{S_H}, 0x10001"); A(f"s_and_b32 s52, s{S_H}, 1")
    A("s_lshl_b32 s45, s5, 1"); A("s_add_u32 s45, s45, s4"); A(f"s_lshl_b32 s46, s{S_G}, 2")
    if cfg.two == 1: A(f"s_cmp_lt_u32 s{S_G}, 4"); A("s_cselect_b32 s46, 12, 24")
    if cfg.two == 2: A("s_mov_b32 s46, 24")
    A("s_add_u32 s45, s45, s46"); A(f"s_lshl_b32 s45, s45, {max(7, 4 + cfg.fsh)}"); A(f"s_add_u32 s45, s45, s{S_FB}")
    A(f"s_add_u32 s46, s{S_G}, s{S_ROT}"); mod7(A, 46)
    A(f"s_lshl_b32 s47, s{S_B}, 1"); A(f"s_add_u32 s47, s47, s{S_QH}"); A("s_lshl_b32 s47, s47, 1"); A("s_add_u32 s47, s47, s4")
    A("s_lshl_b32 s46, s46, 1"); A("s_add_u32 s46, s46, s5")
    A("s_lshl_b32 s53, s46, 1"); A("s_add_u32 s53, s53, s6")
    A("s_mul_i32 s48, s47, 28"); A("s_add_u32 s48, s48, s53"); A("s_lshl_b32 s48, s48, 14"); A("s_lshl_b32 s49, s52, 9"); A("s_add_u32 s48, s48, s49")
    A("s_lshl_b32 s50, s47, 1"); A("s_add_u32 s50, s50, s6"); A(f"s_mul_i32 s50, s50, {16*896}"); A("s_lshl_b32 s46, s46, 6"); A("s_add_u32 s50, s50, s46"); A("s_lshl_b32 s49, s52, 4"); A("s_add_u32 s50, s50, s49")
    A("v_and_b32 v3, 15, v2"); A(f"v_lshlrev_b32 v5, {cfg.fsh}, v3")
    A("v_and_b32 v6, 31, v2"); A("v_lshrrev_b32 v7, 5, v2"); A("v_lshlrev_b32 v8, 4, v6"); A("v_lshl_add_u32 v8, v7, 13, v8")
    A("v_mul_u32_u24 v9, 896, v3"); A("v_bfe_u32 v7, v2, 4, 1"); A("v_lshl_add_u32 v9, v7, 3, v9")
    A("s_add_u32 s49, s48, 4096")
    tag_loop(A, "r")
    A(f"v_mov_b32 v4, v{VMX}")
    if cfg.pp:
        for k in range(cfg.pp - 1):
            A(f"buffer_load_dword v{12+k}, v5, {srd(SRD_WS)}, s45 offen sc1"); A(f"s_sleep {cfg.rsleep}")
        A("L_rpoll:")
        for k in range(cfg.pp):
            A(f"buffer_load_dword v{12 + (k + cfg.pp - 1) % cfg.pp}, v5, {srd(SRD_WS)}, s45 offen sc1")
            A(f"s_waitcnt vmcnt({cfg.pp - 1})")
            A(f"v_cmp_ne_u32 vcc, v{12+k}, v4"); A(f"s_sleep {cfg.rsleep}")
            A("s_cbranch_vccz L_rgo")
        A(f"s_sub_u32 s{S_BUD}, s{S_BUD}, 1"); A("s_cbranch_scc0 L_rpoll")
    else:
        A("L_rpoll:")
        A(f"buffer_load_dword v10, v5, {srd(SRD_WS)}, s45 offen sc1")
        A(f"s_sub_u32 s{S_BUD}, s{S_BUD}, 1")
        A("s_waitcnt vmcnt(0)")
        A("v_cmp_ne_u32 vcc, v10, v4")
        A("s_cbranch_scc1 L_rgo"); A("s_nop 2")
        A("s_cbranch_vccz L_rgo")
        if cfg.rsleep: A(f"s_sleep {cfg.rsleep}")
        if cfg.lsl:
            A(f"s_cmp_lt_u32 s{S_W}, 4"); A("s_cbranch_scc1 L_rpoll"); A(f"s_sleep {cfg.lsl}")
        A("s_branch L_rpoll")
    A("L_rgo:")
    if cfg.stamps: A(stamp(cfg, 14))
    for p in range(8):
        A(f"buffer_load_dwordx4 v[{16+4*p}:{19+4*p}], v8, {srd(SRD_WS)}, s{48 + p//4} offen offset:{(p%4)*1024} sc1")
    for p in range(8):
        A(f"s_waitcnt vmcnt({7-p})")
        for i in range(4):
            if p == 0:
                A(f"v_lshlrev_b32 v{48+2*i}, 16, v{16+i}"); A(f"v_and_b32 v{49+2*i}, 0xffff0000, v{16+i}")
            else:
                A(f"v_lshlrev_b32 v10, 16, v{16+4*p+i}"); A(f"v_and_b32 v11, 0xffff0000, v{16+4*p+i}")
                A(f"v_add_f32 v{48+2*i}, v{48+2*i}, v10"); A(f"v_add_f32 v{49+2*i}, v{49+2*i}, v11")
    for i in range(8): A(f"v_mov_b32 v{56+i}, v{48+i}")
    A("s_nop 1")
    for i in range(8): A(f"v_permlane32_swap_b32 v{48+i}, v{56+i}")
    A("s_nop 1")
    for i in range(8): A(f"v_add_f32 v{48+i}, v{48+i}, v{56+i}")
    for i in range(4): A(f"v_cvt_pk_bf16_f32 v{16+i}, v{48+2*i}, v{49+2*i}")
    A("s_mov_b32 exec_hi, 0")
    A(f"buffer_store_dwordx2 v[16:17], v9, {srd(SRD_OUT)}, s50 offen")
    A(f"buffer_store_dwordx2 v[18:19], v9, {srd(SRD_OUT)}, s50 offen offset:32")
    A("L_fin:")
    stamp_tail(A, cfg)
    A("s_endpgm")

def gen_reduce_tagged(A, cfg):
    A("v_mbcnt_lo_u32_b32 v2, -1, 0"); A("v_mbcnt_hi_u32_b32 v2, -1, v2")
    A(f"s_sub_u32 s48, s{S_FB}, {FLAG_BASE}"); A("s_lshl_b32 s48, s48, 8"); A(f"s_lshl_b32 s7, s{S_W}, 18"); A("s_add_u32 s48, s48, s7")
    A(f"s_lshr_b32 s4, s{S_H}, 2"); A("s_lshl_b32 s7, s4, 16"); A("s_add_u32 s48, s48, s7"); A(f"s_and_b32 s5, s{S_H}, 3"); A("s_lshl_b32 s7, s5, 8"); A("s_add_u32 s48, s48, s7"); A(f"s_add_u32 s48, s48, {32 << 20}")
    for i in range(1, 4): A(f"s_add_u32 s{48+i}, s48, {i*16384}")
    A("v_and_b32 v3, 15, v2"); A("v_lshrrev_b32 v5, 4, v2"); A("v_lshlrev_b32 v8, 4, v3"); A("v_lshl_add_u32 v8, v5, 12, v8")
    A(f"v_mov_b32 v4, v{VMX}")
    A(f"s_lshl_b32 s45, s{S_G}, 2"); A("s_add_u32 s45, s45, s4"); A("s_lshl_b32 s45, s45, 7"); A(f"s_add_u32 s45, s45, s{S_FB}"); A("v_lshlrev_b32 v7, 2, v3")
    A("L_tf:")
    A(f"buffer_load_dword v10, v7, {srd(SRD_WS)}, s45 offen sc1")
    A(f"s_sub_u32 s{S_BUD}, s{S_BUD}, 1")
    A("s_waitcnt vmcnt(0)")
    A("v_cmp_ne_u32 vcc, v10, v4")
    A("s_cbranch_scc1 L_fin"); A("s_nop 2")
    A("s_cbranch_vccz L_tpoll")
    A("s_sleep 1"); A("s_branch L_tf")
    A("L_tpoll:")
    for i in range(4):
        for gi in range(3):
            r = 64 + 12*i + 4*gi
            A(f"buffer_load_dwordx4 v[{r}:{r+3}], v8, {srd(SRD_WS)}, s{48+i} offen offset:{gi*1024} sc1")
    A(f"s_add_u32 s46, s{S_G}, s{S_ROT}"); mod7(A, 46)
    A(f"s_lshl_b32 s47, s{S_B}, 1"); A(f"s_add_u32 s47, s47, s{S_QH}"); A("s_lshl_b32 s47, s47, 1"); A("s_and_b32 s7, s4, 1"); A("s_add_u32 s47, s47, s7"); A(f"s_mul_i32 s47, s47, {32*896}")
    A("s_lshl_b32 s46, s46, 7"); A("s_add_u32 s47, s47, s46"); A("s_lshr_b32 s7, s4, 1"); A("s_lshl_b32 s7, s7, 6"); A("s_add_u32 s47, s47, s7"); A("s_lshl_b32 s7, s5, 3"); A("s_add_u32 s47, s47, s7")
    A("v_lshrrev_b32 v6, 1, v5"); A("v_lshl_add_u32 v6, v6, 4, v3"); A("v_mul_u32_u24 v9, 896, v6"); A("v_and_b32 v6, 1, v5"); A("v_lshl_add_u32 v9, v6, 5, v9")
    A(f"s_sub_u32 s{S_BUD}, s{S_BUD}, 1"); A("s_cselect_b32 s52, 1, 0")
    A("s_waitcnt vmcnt(0)")
    A("v_xor_b32 v10, v4, v67")
    for n in range(1, 12):
        A(f"v_xor_b32 v11, v4, v{67+4*n}"); A("v_or_b32 v10, v10, v11")
    A("v_cmp_ne_u32 vcc, 0, v10"); A("s_cmp_eq_u32 s52, 1"); A("s_cbranch_scc1 L_tgo"); A("s_nop 1"); A("s_cbranch_vccnz L_tpoll")
    A("L_tgo:")
    if cfg.stamps: A(stamp(cfg, 14))
    for w_ in range(8):
        for i in range(4):
            r = 64 + 12*i + 4*(w_//3) + w_ % 3
            if i == 0: A(f"v_lshlrev_b32 v{16+2*w_}, 16, v{r}"); A(f"v_and_b32 v{17+2*w_}, 0xffff0000, v{r}")
            else:
                A(f"v_lshlrev_b32 v10, 16, v{r}"); A(f"v_and_b32 v11, 0xffff0000, v{r}")
                A(f"v_add_f32 v{16+2*w_}, v{16+2*w_}, v10"); A(f"v_add_f32 v{17+2*w_}, v{17+2*w_}, v11")
    A("s_nop 1")
    for k in range(8): A(f"v_permlane32_swap_b32 v{16+k}, v{24+k}")
    A("s_nop 1")
    for k in range(8): A(f"v_add_f32 v{16+k}, v{16+k}, v{24+k}")
    A("s_nop 1")
    for k in range(4): A(f"v_permlane16_swap_b32 v{16+k}, v{20+k}")
    A("s_nop 1")
    for k in range(4): A(f"v_add_f32 v{16+k}, v{16+k}, v{20+k}")
    A("v_cvt_pk_bf16_f32 v16, v16, v17"); A("v_cvt_pk_bf16_f32 v17, v18, v19")
    A(f"buffer_store_dwordx2 v[16:17], v9, {srd(SRD_OUT)}, s47 offen")
    A("s_branch L_fin")

LW, XB, WQB, WOB, LM4, KB_, VB0, VB1, RQ = 45, 46, 47, 60, 61, 81, 82, 83, 84
VOX, VOWQ, VOK, VOV, VOWO, VOK2 = 12, 16, 20, 24, 28, 32
def ld_emit(A, cfg, e, j=0):
    t = e["t"]; sl = SLOT0 + e["slot"] * SLOTSZ; ty = t[0]
    if ty in ("QX", "OX"): return 0
    idx = t[1]; half = t[2] if len(t) > 2 else 0
    if ty == "X":
        A(f"s_cmp_ge_u32 s{LW}, 2"); A(f"s_cselect_b32 s6, s{RQ+2*idx+1}, s{RQ+2*idx}"); A("s_lshl_b32 s6, s6, 7"); A(f"s_add_u32 m0, s{LM4}, {sl}"); A(f"s_add_u32 s6, s6, s{XB}")
        vo, sr = VOX, SRD_X
    elif ty == "WQ":
        A(f"s_lshl_b32 s6, s{RQ+(idx>>1)}, 19"); A(f"s_add_u32 m0, s{VB1}, {sl}"); A(f"s_add_u32 s6, s6, s{WQB}")
        if idx & 1: A(f"s_add_u32 s6, s6, {1 << 18}")
        vo, sr = VOWQ, SRD_WQ
    elif ty == "K":
        A(f"s_add_u32 m0, s{LM4}, {sl}"); A(f"s_xor_b32 s6, s{KB_}, {idx*32768}"); vo, sr = (VOK if half == 0 else VOK2), SRD_K
    elif ty == "V":
        A(f"s_add_u32 m0, s{LM4}, {sl}"); A(f"s_xor_b32 s6, s{VB0}, {idx*32768 + half*256}"); vo, sr = VOV, SRD_V
    else:
        A(f"s_lshl_b32 s6, s{RQ+idx}, 7"); A(f"s_add_u32 m0, s{LM4}, {sl}"); A(f"s_add_u32 s6, s6, s{WOB}")
        if half: A(f"s_add_u32 s6, s6, {128*896}")
        vo, sr = VOWO, SRD_WO
    if cfg.nodma and ty in ("K", "V", "WO"): return 0
    if cfg.emu and ty in ("K", "V"):
        for ii in ((0, 1) if j < 2 else (2, 3)):
            A(f"buffer_load_dwordx4 v{vo+ii}, {srd(sr)}, s6 offen offset:{ii*ST} lds")
        return 2
    for i_ in range(4):
        ii = (i_ + j) % 4 if cfg.iirot else i_
        A(f"buffer_load_dwordx4 v{vo+ii}, {srd(sr)}, s6 offen offset:{ii*(STQ if ty == 'WQ' else ST)} lds")
    return 4
def rot_table(A, lo, hi):
    for g in range(lo, hi):
        A(f"s_add_u32 s{RQ+g}, s{RQ+g-1}, 1"); A(f"s_cmp_eq_u32 s{RQ+g}, 7"); A(f"s_cselect_b32 s{RQ+g}, 0, s{RQ+g}")
def voff4(A, vo, ds, st=ST):
    for ii in (3, 2, 1, 0): A(f"v_add_u32 v{vo+ii}, {4096 + ii*(ds-st)}, v{vo}")

def gen_entry(A, cfg):
    A("s_cmp_lt_u32 s2, 256"); A("s_cbranch_scc1 L_main_go"); A("s_endpgm"); A("L_main_go:")
    if cfg.stamps: A(stamp(cfg, 0))
    A("s_load_dwordx8 s[48:55], s[0:1], 0")
    A("s_load_dwordx4 s[56:59], s[0:1], 32")
    A("s_load_dwordx4 s[92:95], s[0:1], 48")
    A("v_lshrrev_b32 v1, 6, v0"); A("v_and_b32 v2, 63, v0")
    A(f"v_readfirstlane_b32 s{S_W}, v1")
    A("s_and_b32 s4, s2, 7"); A("s_lshr_b32 s5, s2, 3")
    A(f"s_lshr_b32 s{S_B}, s5, 2"); A(f"s_and_b32 s{S_J}, s5, 3")
    A(f"s_and_b32 s6, s{S_J}, 1"); A(f"s_lshl_b32 s{S_H}, s4, 1"); A(f"s_add_u32 s{S_H}, s{S_H}, s6")
    A(f"s_lshr_b32 s{S_QH}, s{S_J}, 1")
    A(f"s_lshr_b32 s{S_ROT}, s5, 1")
    A(f"s_cmp_lt_u32 s{S_W}, 4"); A("s_cbranch_scc1 L_compute")
    A(f"s_sub_u32 s{LW}, s{S_W}, 4")
    A("s_lshl_b32 s6, s6, 2"); A(f"s_add_u32 s{RQ}, s{S_ROT}, s6"); A(f"s_mul_i32 s7, s{RQ}, 37"); A("s_lshr_b32 s7, s7, 8"); A("s_mul_i32 s7, s7, 7"); A(f"s_sub_u32 s{RQ}, s{RQ}, s7")
    rot_table(A, 1, 2)
    A("v_lshrrev_b32 v5, 3, v2"); A("v_and_b32 v6, 7, v2"); A("v_lshlrev_b32 v6, 4, v6")
    A("v_and_b32 v8, 1, v5"); A("v_lshrrev_b32 v7, 4, v2"); A("v_lshl_add_u32 v8, v7, 4, v8"); A(f"v_mul_u32_u24 v{VOX}, 896, v8"); A(f"v_add_u32 v{VOX}, v{VOX}, v6")
    voff4(A, VOX, 1792)
    A(f"s_lshl_b32 s{XB}, s{S_ROT}, 3"); A(f"s_and_b32 s6, s{LW}, 1"); A(f"s_add_u32 s{XB}, s{XB}, s6"); A(f"s_mul_i32 s{XB}, s{XB}, {8*896}")
    A(f"s_mul_i32 s{LM4}, s{LW}, {4*ST}"); A(f"s_mul_i32 s{VB1}, s{LW}, {4*STQ}"); A("s_lshl_b32 s6, s6, 3"); A(f"s_add_u32 s{VB1}, s{VB1}, s6")
    A("v_lshrrev_b32 v3, 5, v2"); A("v_and_b32 v4, 31, v2"); A("v_lshlrev_b32 v8, 4, v4"); A(f"v_lshl_add_u32 v{VOWQ}, v3, 15, v8")
    voff4(A, VOWQ, 8192, STQ)
    A(f"s_lshl_b32 s{WQB}, s{LW}, 16"); A(f"s_lshl_b32 s6, s{S_H}, 9"); A(f"s_add_u32 s{WQB}, s{WQB}, s6")
    A("s_getpc_b64 s[74:75]"); A("L_pc:"); A("s_add_u32 s74, s74, L_table-L_pc"); A("s_addc_u32 s75, s75, 0")
    A(f"s_lshl_b32 s6, s{S_J}, 9"); A("v_add_u32 v9, s6, v8")
    A("s_mov_b32 m0, 0"); A("s_mov_b32 exec_hi, 0"); A("global_load_lds_dwordx4 v9, s[74:75]"); A("s_mov_b32 exec_hi, -1")
    if cfg.stamps == 1: A(stamp(cfg, 2))
    A("s_waitcnt lgkmcnt(0)")
    mk_srd(A, SRD_X, 48, 8*128*448*2, 4096)
    t0 = make_table(0, cfg)
    ld_emit(A, cfg, t0[0])
    mk_srd(A, SRD_WQ, 54, 448*4096*2, 4096)
    ld_emit(A, cfg, t0[1]); ld_emit(A, cfg, t0[2])
    if cfg.stamps == 1: A(stamp(cfg, 3))
    if cfg.fbar:
        rot_table(A, 2, 4); ld_emit(A, cfg, t0[3])
        A("s_waitcnt vmcnt(8)")
        if cfg.stamps == 1: A(stamp(cfg, 1))
        A("s_barrier")
        ld_emit(A, cfg, t0[4])

def common_tail_setup(A, cfg):
    A("s_mov_b32 s0, s92"); A("s_mov_b32 s1, s93")
    mk_srd(A, SRD_WS, 94, 256 << 20); mk_srd(A, SRD_OUT, 58, 8*128*448*2)
    A(f"s_lshl_b32 s{S_FB}, s{S_ROT}, {max(12, 9 + cfg.fsh)}"); A(f"s_add_u32 s{S_FB}, s{S_FB}, {FLAG_BASE}")
    A(f"s_mov_b32 s{S_BUD}, 0x20000")

def gen_loader(A, cfg):
    NB = SCHED["nbar"]
    if cfg.lprio: A(f"s_setprio {cfg.lprio}")
    rot_table(A, 4 if cfg.fbar else 2, 8)
    A(f"s_lshl_b32 s80, s{S_B}, 3"); A("s_add_u32 s80, s80, s4"); A(f"s_mul_i32 s5, s80, {cfg.xm}"); A(f"s_and_b32 s5, s5, {cfg.xmask}"); A("s_lshl_b32 s80, s80, 19")
    A("s_lshr_b32 s6, s5, 6"); A("s_lshl_b32 s6, s6, 15"); A(f"s_or_b32 s{KB_}, s80, s6"); A("s_and_b32 s5, s5, 63")
    A(f"s_and_b32 s78, s{LW}, 1"); A("s_lshl_b32 s78, s78, 2"); A(f"s_lshr_b32 s79, s{LW}, 1")
    A("s_xor_b32 s6, s79, 1"); A("s_lshl_b32 s6, s6, 8"); A(f"s_or_b32 s{VB0}, s{KB_}, s6")
    A(f"s_lshl_b32 s{WOB}, s{S_H}, 8"); A("s_lshl_b32 s6, s79, 6"); A(f"s_add_u32 s{WOB}, s{WOB}, s6"); A(f"s_add_u32 s{WOB}, s{WOB}, s78"); A(f"s_mul_i32 s{WOB}, s{WOB}, 896")
    A("v_and_b32 v8, 15, v2"); A("v_lshlrev_b32 v8, 4, v8")
    A(f"s_lshl_b32 s6, s{LW}, 2"); A("s_xor_b32 s6, s6, s5"); A("v_lshlrev_b32 v41, 4, v7"); A("v_xor_b32 v41, s6, v41")
    A("s_lshl_b32 s6, s79, 5"); A("s_add_u32 s6, s6, s78"); A("s_xor_b32 s6, s6, s5"); A("v_lshlrev_b32 v42, 3, v7"); A("v_xor_b32 v42, s6, v42")
    for vo, src in ((VOK, 41), (VOV, 42)):
        for ii in range(4):
            A(f"v_xor_b32 v{vo+ii}, {ii}, v{src}"); A(f"v_lshl_add_u32 v{vo+ii}, v{vo+ii}, 9, v8"); A(f"v_add_u32 v{vo+ii}, {4096 - ii*ST}, v{vo+ii}")
    A("v_lshlrev_b32 v41, 8, v3"); A("v_xor_b32 v42, 0x100, v41")
    for ii in range(4):
        A(f"v_add_u32 v{VOK2+ii}, v42, v{VOK+ii}"); A(f"v_add_u32 v{VOK+ii}, v41, v{VOK+ii}")
    A(f"v_mul_u32_u24 v{VOWO}, {8*896}, v5"); A(f"v_add_u32 v{VOWO}, v{VOWO}, v6")
    voff4(A, VOWO, 896)
    mk_srd(A, SRD_K, 50, 32 << 20, 4096); mk_srd(A, SRD_V, 52, 32 << 20, 4096); mk_srd(A, SRD_WO, 56, 4096*448*2, 4096)
    A(f"s_lshl_b32 s76, s{S_ROT}, 2"); A(f"s_add_u32 s76, s76, s{LW}"); A(f"s_mul_i32 s76, s76, {28*128}"); A(f"s_mul_i32 s6, s{S_H}, {256*896}"); A("s_add_u32 s76, s76, s6")
    A("v_min_u32 v10, 27, v2"); A("v_lshlrev_b32 v10, 7, v10"); A("v_add_u32 v10, 4096, v10")
    A(f"s_lshl_b32 s77, s{LW}, 13"); A(f"s_add_u32 s77, s77, s{KB_}"); A("v_lshlrev_b32 v40, 7, v2"); A("v_add_u32 v40, 4096, v40")
    if cfg.kvt:
        A("v_mov_b32 v46, 4096"); A(f"buffer_load_dword v11, v46, {srd(SRD_K)}, s77 offen"); A(f"buffer_load_dword v11, v46, {srd(SRD_V)}, s77 offen")
    if cfg.cpf:
        A(f"s_sub_u32 s72, s74, L_table-{KNAME}"); A("s_subb_u32 s73, s75, 0")
        A("s_lshr_b32 s6, s2, 3"); A("s_lshl_b32 s6, s6, 2"); A(f"s_add_u32 s6, s6, s{LW}"); A("s_lshl_b32 s6, s6, 7")
        A("v_lshlrev_b32 v45, 14, v2"); A("v_add_u32 v45, s6, v45"); A(f"v_min_u32 v45, L_table-{KNAME}, v45")
        A("global_load_dword v11, v45, s[72:73]")
    common_tail_setup(A, cfg)
    A(f"s_mul_i32 s6, s{S_ROT}, {56*16384}"); A(f"s_lshl_b32 s7, s{S_H}, 10"); A("s_add_u32 s6, s6, s7"); A(f"s_mul_i32 s7, s{LW}, {14*16384}"); A("s_add_u32 s6, s6, s7")
    A("v_min_u32 v43, 13, v2"); A("v_lshlrev_b32 v43, 14, v43"); A("v_add_u32 v43, s6, v43")
    A(f"s_add_u32 s6, s{S_FB}, 3968"); A("v_mov_b32 v44, s6"); A("v_cmp_lt_u32 vcc, 31, v2"); A("s_nop 1"); A("v_cndmask_b32 v43, v43, v44, vcc")
    mod7(A, S_ROT, 2)
    for j in range(1, 4):
        A(f"s_cmp_eq_u32 s{S_J}, {j}"); A(f"s_cbranch_scc1 L_ld{j}")
    chk = SCHED["chk"]
    for j in range(4):
        A(f"L_ld{j}:")
        tab = make_table(j, cfg); pos = NSTATIC
        q = ["tab"] + [e["p"] for e in tab[:NSTATIC] for _ in range(4)]
        if cfg.fbar:
            assert [e["t"] for e in tab[:5]] == [e["t"] for e in make_table(0, cfg)[:5]]
            pos = 5; q = [e["p"] for e in tab[2:5] for _ in range(4)] + (["pf"] if cfg.cpf else []) + (["pf", "pf"] if cfg.kvt else [])
        rot_done = False; lastl = -100
        for k in range(1 if cfg.fbar else 0, NB):
            n = NSTATIC if k == 0 else (1 if (cfg.fbar and k == 1) else 0)
            def own(e): return not cfg.pf and e["t"][0] in ("K", "V") and (ATT.index(e["t"][:2]) & 3) == j
            while pos < len(tab) and tab[pos]["early"] <= k and (n < (cfg.first if k == 0 else 1) or (n < cfg.maxper and tab[pos]["late"] - k <= (cfg.la2q if k < 15 else cfg.la2)) or n < SCHED["boost"].get(k, 0) or tab[pos]["late"] <= k + 1):
                if cfg.hold and k in SCHED["hold"] and tab[pos]["late"] > k + 1 and tab[pos]["t"][0] not in ("QX", "OX"): break
                if not own(tab[pos]) and k <= lastl + cfg.pause and tab[pos]["late"] > k + cfg.minla: break
                if cfg.pairl and own(tab[pos]) and tab[pos]["t"][2] == 0 and tab[pos+1]["early"] > k and tab[pos]["late"] > k + cfg.minla + 1: break
                if own(tab[pos]): lastl = k
                if tab[pos]["t"][0] == "WO" and not rot_done:
                    A(f"s_mov_b32 s{RQ}, s{S_ROT}"); rot_table(A, 1, 7); rot_done = True
                if tab[pos]["t"] == ATT[4*cfg.wown + j] + (0,):
                    A(f"buffer_load_dword v11, v10, {srd(SRD_WO)}, s76 offen"); q.append("pf")
                    A(f"v_mov_b32 v{VSP}, 0"); A(f"global_load_dword v{VMX}, v{VSP}, s[0:1] sc1"); q.append("pf")
                    if cfg.cpf:
                        A("global_load_dword v11, v45, s[72:73]"); q.append("pf")
                    if cfg.tlb:
                        A(f"buffer_load_dword v11, v43, {srd(SRD_WS)}, 0 offen"); q.append("pf")
                        A(f"buffer_load_dword v11, v{VSP}, {srd(SRD_OUT)}, s{XB} offen"); q.append("pf")
                c = ld_emit(A, cfg, tab[pos], j); q += [tab[pos]["p"]] * c; pos += 1
                if c: n += 1
            if cfg.pf:
                for ai, t in enumerate(ATT):
                    if (ai & 3) == j and max(chk[P[t + (0,)]] - cfg.pfd, cfg.pf0 + (ai & 3) * cfg.pf) == k:
                        A(f"s_xor_b32 s6, s77, {t[1]*32768}"); A(f"buffer_load_dword v11, v40, {srd(SRD_K if t[0] == 'K' else SRD_V)}, s6 offen"); q.append("pf")
            for i_, kk_ in enumerate(pfk(cfg)):
                if kk_ == k:
                    t = ATT[4*i_ + j]
                    A(f"s_xor_b32 s6, s77, {t[1]*32768}"); A(f"buffer_load_dword v11, v40, {srd(SRD_K if t[0] == 'K' else SRD_V)}, s6 offen"); q.append("pf")
            need = [p for p in chk if chk[p] == k + 1] + (["tab"] if k == 0 else [])
            for p in need: assert p == "tab" or ITEMS[p][0] in ("QX", "OX") or p in [e["p"] for e in tab[:pos]], (j, k, p)
            last = max((i for i, t in enumerate(q) if t in need), default=-1)
            if cfg.stamps == 1 and k == 0: A(stamp(cfg, 4))
            if last >= 0:
                kk = len(q) - 1 - last; assert kk <= 63
                A(f"s_waitcnt vmcnt({kk})"); del q[:last+1]
            pass
            if cfg.trace:
                A("s_memtime s[66:67]"); A("s_waitcnt lgkmcnt(0)"); A(f"v_writelane_b32 v{100 + k//64}, s66, {k % 64}")
            A("s_barrier")
            if cfg.trace:
                A("s_memtime s[66:67]"); A("s_waitcnt lgkmcnt(0)"); A(f"v_writelane_b32 v{102 + k//64}, s66, {k % 64}")
        assert pos == len(tab)
        if cfg.trace:
            A(f"s_lshl_b32 s6, s2, 2"); A(f"s_add_u32 s6, s6, s{LW}"); A("s_lshl_b32 s6, s6, 10"); A(f"s_add_u32 s6, s6, {66<<20}"); A("v_lshlrev_b32 v104, 2, v2")
            for i in range(4): A(f"buffer_store_dword v{100+i}, v104, {srd(SRD_WS)}, s6 offen offset:{i*256}")
        A(f"s_mov_b32 s{S_G}, s{LW}")
        A("s_branch L_reduce")

def build_compute(cfg):
    L = []; A = L.append
    A("L_compute:")
    A(f"s_and_b32 s{S_QB}, s{S_W}, 1"); A(f"s_lshr_b32 s{S_KH}, s{S_W}, 1")
    A(f"s_mov_b32 s{S_C}, {f32(math.log2(math.e) / 16.0):#x}")
    A(f"s_lshl_b32 s{S_YB}, s{S_ROT}, 1"); A(f"s_add_u32 s{S_YB}, s{S_YB}, s{S_QB}")
    A(f"s_mul_i32 s{S_YB}, s{S_YB}, 28"); A(f"s_lshl_b32 s6, s{S_KH}, 1"); A(f"s_add_u32 s{S_YB}, s{S_YB}, s6"); A(f"s_lshl_b32 s{S_YB}, s{S_YB}, 4")
    A(f"s_add_u32 s{S_YB}, s{S_YB}, s{S_H}"); A(f"s_lshl_b32 s{S_YB}, s{S_YB}, 10")
    A("v_and_b32 v3, 15, v2"); A("v_lshrrev_b32 v4, 4, v2"); A("v_bfe_u32 v5, v2, 2, 2"); A("v_and_b32 v6, 3, v2"); A("v_lshlrev_b32 v6, 3, v6")
    VWQ, VXB, VQW, VQR = 51, 52, 53, 54
    A("v_lshrrev_b32 v7, 2, v2"); A(f"v_mul_u32_u24 v{VWQ}, {STQ}, v7"); A(f"s_lshl_b32 s6, s{S_KH}, 8"); A(f"v_lshl_add_u32 v{VWQ}, v6, 1, v{VWQ}"); A("v_and_b32 v9, 1, v4"); A(f"v_lshl_add_u32 v{VWQ}, v9, 3, v{VWQ}"); A(f"v_add_u32 v{VWQ}, s6, v{VWQ}")
    A("v_and_b32 v7, 7, v7"); A(f"v_mul_u32_u24 v{VVB}, {ST}, v7"); A("v_lshrrev_b32 v8, 5, v2"); A(f"v_lshl_add_u32 v{VVB}, v8, 8, v{VVB}")
    A(f"s_mul_i32 s6, s{S_KH}, {8*ST}"); A(f"v_add3_u32 v{VVB}, v{VVB}, v6, s6")
    A(f"v_mul_u32_u24 v{VKB}, {ST}, v3"); A(f"v_lshl_add_u32 v{VKB}, v4, 4, v{VKB}"); A(f"s_lshl_b32 s6, s{S_KH}, 9"); A(f"v_add_u32 v{VKB}, s6, v{VKB}")
    A("v_lshrrev_b32 v9, 1, v3"); A(f"v_mul_u32_u24 v{VXB}, {ST}, v9"); A("v_and_b32 v9, 1, v2"); A(f"v_lshl_add_u32 v{VXB}, v9, 7, v{VXB}"); A(f"v_lshl_add_u32 v{VXB}, v4, 4, v{VXB}")
    A(f"s_lshl_b32 s6, s{S_QB}, 9"); A(f"v_add_u32 v{VXB}, s6, v{VXB}")
    A(f"s_lshl_b32 s6, s{S_KH}, 13"); A(f"v_lshlrev_b32 v{VQW}, 4, v2"); A(f"v_add_u32 v{VQW}, s6, v{VQW}"); A(f"v_xor_b32 v{VQR}, 0x2000, v{VQW}")
    for r in range(128, 192, 2): A(f"v_mov_b64 v[{r}:{r+1}], 0")
    A(f"v_mov_b32 v{VLA}, 0"); A(f"v_mov_b32 v{VL0}, s{S_C}"); A(f"v_mov_b32 v{VL1}, s{S_C}")
    A("s_waitcnt lgkmcnt(0)")
    common_tail_setup(A, cfg)
    mod7(A, S_ROT, 2)
    A(f"s_add_u32 s6, s2, s{S_W}"); A("s_cmp_lg_u32 s6, 0"); A("s_cbranch_scc1 L_notag")
    A("s_memrealtime s[6:7]"); A("s_waitcnt lgkmcnt(0)"); A("s_or_b32 s6, s6, 1"); A("v_mov_b32 v9, s6")
    A(f"global_store_dword v{VLA}, v9, s[0:1] sc1")
    A("L_notag:")
    if cfg.prio: A(f"s_setprio {cfg.prio}")

    def xr(n): return 4 * (n % 16)
    def acc(ks, cb, u): return OA + ((ks*2 + cb)*2 + u) * 4
    M = []
    for tt in range(14):
        for dt in range(8): M.append(dict(ph="Q", tt=tt, dt=dt, item=("WQ", tt)))
    for t_ in ATT:
        for half in range(2):
            if t_[0] == "K":
                for k4 in range(4):
                    for kt in range(2): M.append(dict(ph="QK", j=t_[1], k4=k4, kt=kt, half=half, item=t_ + (half,)))
            else:
                for dt in range(8): M.append(dict(ph="PV", j=t_[1], dt=dt, half=half, item=t_ + (half,)))
    for c_ in range(7):
        for hh in range(2):
            for k4 in range(4):
                for nt in range(2): M.append(dict(ph="O", c=c_, hh=hh, k4=k4, nt=nt, item=("WO", c_, hh)))
    N = len(M); assert N == 736
    start = {}
    for n, m in enumerate(M): start.setdefault(m["item"], n)
    LA, FA = cfg.LA, cfg.FA
    fill = {n: [] for n in range(-1, N)}
    pre = {n: [] for n in range(-1, N)}
    post = {n: [] for n in range(-1, N)}
    tailf = {n: [] for n in range(-1, N)}
    a0 = start[("K", 0, 0)]; o0 = start[("WO", 0, 0)]
    hard = {0, o0}
    VWO, VST, VTA, VTB = VKB, VVB, 52, 53
    def tab_read(p, dst=VF, ar=VLA): return Op(f"ds_read_b32 v{dst}, v{ar} offset:@T{p*4}@", kind="lds", prod=("fl", p, dst))
    def need(ps, cons): return Op(f"; need", kind="use", cons=cons, prod=list(ps))
    def release(p): return Op(f"; free", kind="rel", prod=p)
    def cbar(): return [Op("s_waitcnt lgkmcnt(0)", kind="drain"), Op("s_barrier")]
    basereg = {"WQ": VWQ, "K": VKB, "V": VVB, "WO": VWO}
    pat = []
    for ln in cfg.pat.split("_"): pat += list(range(int(ln)))
    assert len(pat) == 32
    buf = [pat[(n - a0 - 16) % 32] for n in range(N)]
    xbuf = {}
    for k in range(4):
        xbuf[a0 + 4 + k] = S1 + 4*k; xbuf[o0 - 4 + k] = S0 + 4*k
        buf[a0 + 4 + k] = 10 + k; buf[o0 - 4 + k] = 20 + k
    def freg(n): return xbuf.get(n, FR + 4 * buf[n])
    prevu = {}
    lastu = {}
    for n in range(N):
        prevu[n] = lastu.get(buf[n], -10); lastu[buf[n]] = n
    def lo_gap(n): return max(h for h in hard if h <= n) - 1
    def read_gap(n):
        lo = lo_gap(n)
        return max(n - (8 if n in xbuf else LA), lo, prevu[n])
    for t in ITEMS:
        if t not in start: continue
        s = start[t]; g = read_gap(s); gf = max(g - FA, lo_gap(s) + (0 if s in hard else 1)); p = P[t]
        nd = [p]; rl = [p]; vf = VF
        if t[0] == "WO":
            p0 = P[("WO", t[1], 0)]
            tr = tab_read(p0, VF, VTA if t[2] == 0 else VTB); tr.prod = ("fl", p, VF); tr.text = tr.text.replace("@T", "").replace("@", "")
            nd = [p0, p0 + 1] if t[2] == 0 else []
            rl = [p0, p0 + 1] if t[2] == 1 else []
        elif t[0] in ("K", "V"):
            assert P[t[:2] + (0,)] % 2 == 0
            if t[2] == 0: tr = Op(f"ds_read_b64 v[{VF}:{VF+1}], v{VLA} offset:@T{p*4}@", kind="lds", prod=("fl", p, VF))
            else: tr = None; vf = VF + 1
        else: tr = tab_read(p)
        if tr: (post if gf == g else fill)[gf].append(tr)
        post[g] += ([] if s in hard else [Op("s_barrier")]) + [need(nd, [("fl", p, VF)]), Op(f"v_add_u32 v{VA}, v{vf}, v{basereg[t[0]]}")]
        tailf[s + 7] += [release(x) for x in rl]
    for i in range(4):
        s = start[("WQ", 4*i)]; p = P[("X", i)]
        ops = [tab_read(p, VT0), need([p], [("fl", p, VT0)]), Op(f"v_add_u32 v{VT0}, v{VT0}, v{VXB}")]
        rds = []
        for k in range(8 if i < 3 else 4):
            tl, cb = k >> 1, k & 1
            r = xr(8*i + k)
            rds.append(Op(f"ds_read_b128 a[{r}:{r+3}], v{VT0} offset:{(tl>>1)*8*ST + cb*256 + (tl&1)*64}", kind="lds", prod=("X", 8*i+k)))
        if i == 0:
            pre[-1] += [Op("s_barrier")] + ops + rds[:2]
            fill[-1] += rds[2:]
            fill[5].append(release(p))
        else:
            fill[s - 15].append(ops[0]); fill[s - 12] += ops[1:]
            for k, r in enumerate(rds): fill[s - 12 + k // 2].append(r)
            fill[s - 2].append(release(p))
    def Sreg(j): return S0 if j % 2 == 0 else S1
    def spread(ops, a, b):
        k = b - a
        w = [2 if o.text.startswith("v_exp") else 1 for o in ops]; tot = sum(w); c = 0
        for o, wi in zip(ops, w):
            fill[a + (c * k) // tot].append(o); c += wi
    def max_cb(s, r0, r1):
        o = []
        for k in range(4):
            for cb, r in ((0, r0), (1, r1)):
                b = s + 8*cb
                o.append([f"v_max3_f32 v{r}, v{b}, v{b+1}, v{b+2}", f"v_max3_f32 v{r}, v{r}, v{b+3}, v{b+4}", f"v_max3_f32 v{r}, v{r}, v{b+5}, v{b+6}", f"v_max_f32 v{r}, v{r}, v{b+7}"][k])
        return o
    def step_ops(j):
        s = Sreg(j); t0 = Sreg(j+1) + 8; t1 = t0 + 1; L_ = []
        def add(txt, deps): L_.append((Op(txt), deps)); return len(L_) - 1
        a = add(f"v_max3_f32 v{t0}, v{s}, v{s+1}, v{s+2}", []); b = add(f"v_max3_f32 v{t1}, v{s+8}, v{s+9}, v{s+10}", [a])
        a = add(f"v_max3_f32 v{t0}, v{t0}, v{s+3}, v{s+11}", [b]); b = add(f"v_max3_f32 v{t1}, v{t1}, v{s+4}, v{s+5}", [a])
        a = add(f"v_max3_f32 v{t0}, v{t0}, v{s+6}, v{s+7}", [b]); b = add(f"v_max3_f32 v{t1}, v{t1}, v{s+12}, v{s+13}", [a])
        a = add(f"v_max3_f32 v{t0}, v{t0}, v{s+14}, v{s+15}", [b]); a = add(f"v_max_f32 v{t0}, v{t0}, v{t1}", [a])
        a = add(f"v_cmp_lt_f32 vcc, s{S_T}, v{t0}", [a]); br = add(f"s_cbranch_vccnz L_ra_@{j-1}@\nL_rab_@{j-1}@:", [a])
        ex = {}; ad = {}; cv = {}
        for r in range(16): ex[r] = add(f"v_exp_f32 v{s+r}, v{s+r}", [br] + ([ex[r-1]] if r else []))
        for r in range(16):
            ad[r] = add(f"v_add_f32 v{VL0 + r//8}, v{VL0 + r//8}, v{s+r}", [ex[r]] + ([ad[r-1]] if r else []))
            if r % 2: cv[r//2] = add(f"v_cvt_pk_bf16_f32 v{s + r//2}, v{s+r-1}, v{s+r}", [ex[r], ad[r//2]] + ([cv[r//2-1]] if r > 1 else []))
        return L_
    def xlane(op, regs, tmp):
        o = []
        for sw in ("v_permlane16_swap_b32", "v_permlane32_swap_b32"):
            for r, t in zip(regs, tmp): o.append(f"v_mov_b32 v{t}, v{r}")
            o.append("s_nop 1")
            for r, t in zip(regs, tmp): o.append(f"{sw} v{t}, v{r}")
            o.append("s_nop 1")
            for r, t in zip(regs, tmp): o.append(f"{op} v{r}, v{r}, v{t}")
        return o
    e = a0 - 1; pq = P[("QX", 0)]
    fill[e - 4] += [Op(f"s_lshl_b32 s6, s{S_QB}, 2"), Op(f"v_mov_b32 v{VMX}, s6")]
    fill[e - 3].append(tab_read(pq, VT0, VMX))
    fill[e - 1] += [need([pq, pq+1], [("fl", pq, VT0)]), Op(f"v_add_u32 v{VQW}, v{VT0}, v{VQW}"), Op(f"v_add_u32 v{VQR}, v{VT0}, v{VQR}")]
    qx = [Op("; HOLD")]
    def qpack(f):
        r = OA + 8*f; d = OA + 4*f
        return [Op(f"v_pk_mul_f32 v[{r+k}:{r+k+1}], v[{r+k}:{r+k+1}], v[{VL0}:{VL1}]") for k in (0, 2, 4, 6)] + \
               [Op(f"v_cvt_pk_bf16_f32 v{d+k}, v{r+2*k}, v{r+2*k+1}") for k in range(4)] + \
               [Op(f"ds_write_b128 v{VQW}, v[{d}:{d+3}] offset:{f*1024}", kind="lds", prod=("wq",))]
    for f in range(8): qx += qpack(f)
    tailf[e] += qx + [Op("s_nop 0")]
    g2 = read_gap(a0 + 8)
    bi = [i for i, o in enumerate(post[g2]) if o.text == "s_barrier"][0]
    post[g2].insert(bi, Op("; wq done", kind="use", cons=[("wq",)]))
    post[g2].insert(bi + 2, Op("; BOOST"))
    qr = [Op(f"ds_read_b128 a[{QF+4*s}:{QF+4*s+3}], v{VQR if s >= 8 else VQW} offset:{(s%8)*1024}", kind="lds", prod=("Q", s)) for s in list(range(8, 16)) + list(range(8))]
    post[g2] += qr[:2]
    for k in range(2, 16): fill[g2 + k // 2].append(qr[k])
    spread([Op(f"v_mov_b64 v[{r}:{r+1}], 0") for r in range(96, 128, 2)], a0, a0 + 4)
    spread([Op(f"v_mov_b64 v[{r}:{r+1}], 0") for r in range(64, 96, 2)], a0 + 8, a0 + 16)
    tailf[a0 + 15] += [Op("; q all", kind="use", cons=[("Q", s) for s in range(16)]), release(pq), release(pq + 1)]
    im = ["s_nop 7"] + max_cb(S0, NM, NM+4) + xlane("v_max_f32", (NM, NM+4), (VL0, VL1))
    im += [f"v_sub_f32 v{S0+r}, v{S0+r}, v{NM + 4*(r//8)}" for r in range(16)]
    im += [f"v_sub_f32 v{NM+4*cb+k}, 0, v{NM+4*cb}" for cb in range(2) for k in (3, 2, 1, 0)] + [f"v_mov_b32 v{VL0}, 0", f"v_mov_b32 v{VL1}, 0"]
    for j in range(15):
        pvs = start[("V", j, 0)]
        tailf[pvs + 15] += [Op(f"s_cbranch_vccnz L_rb_@{j}@"), Op(f"L_rbb_@{j}@:"), Op(f"; STEP {j+1}")]
    e = o0 - 1; po = P[("OX", 0)]
    pv = start[("V", 15, 0)]
    T = S1 + 8; WA, RA, FO = 49, 50, 52
    KP = OA + 64
    tailf[pv - 1] += []
    pre_ml = [Op(x) for x in xlane("v_add_f32", (VL0, VL1), (T, T+1))]
    pre_ml += [Op(f"v_mbcnt_lo_u32_b32 v{T+2}, -1, 0"), Op(f"v_mbcnt_hi_u32_b32 v{T+2}, -1, v{T+2}"), Op(f"v_mov_b32 v54, v{NM}"), Op(f"v_lshlrev_b32 v51, 4, v{T+2}"),
               Op(f"s_lshl_b32 s6, s{S_W}, 10"), Op(f"s_add_u32 s6, s6, {MLX}"), Op(f"v_add_u32 v{T+3}, s6, v51"), Op("; HOLD"),
               Op(f"ds_write_b128 v{T+3}, v[54:57]", kind="lds", prod=("wm",)),
               Op(f"s_xor_b32 s7, s{S_W}, 2"), Op("s_lshl_b32 s7, s7, 10"), Op(f"s_add_u32 s7, s7, {MLX}"), Op(f"v_add_u32 v{T+3}, s7, v51"),
               Op(f"s_lshl_b32 s6, s{S_QB}, 2"), Op(f"v_mov_b32 v{WA}, s6"), Op(f"ds_read_b32 v{WA}, v{WA} offset:{po*4}", kind="lds", prod=("fl", po, WA))]
    spread(pre_ml, pv, pv + 3)
    spread([Op(f"v_bfe_u32 v{T}, v{T+2}, 2, 3"), Op(f"v_mul_u32_u24 v{VWO}, {ST}, v{T}"), Op(f"v_lshrrev_b32 v{T}, 5, v{T+2}"), Op(f"v_lshl_add_u32 v{VWO}, v{T}, 7, v{VWO}"),
            Op(f"v_and_b32 v{T}, 3, v{T+2}"), Op(f"v_lshl_add_u32 v{VWO}, v{T}, 3, v{VWO}"), Op(f"s_lshl_b32 s6, s{S_KH}, 6"), Op(f"v_add_u32 v{VWO}, s6, v{VWO}")], pv + 3, pv + 4)
    g1 = read_gap(pv + 8)
    bi = [i for i, o in enumerate(post[g1]) if o.text == "s_barrier"][0]
    post[g1].insert(bi, Op("; wm done", kind="use", cons=[("wm",)]))
    post[g1] += [Op(f"ds_read_b128 v[{T+4}:{T+7}], v{T+3}", kind="lds", prod=("ml",)), Op(f"v_mov_b32 v{VST}, v51")]
    fac = [need([po, po+1], [("fl", po, WA)]), Op(f"s_lshl_b32 s6, s{S_KH}, 13"), Op("s_xor_b32 s7, s6, 0x2000"),
           Op(f"v_add3_u32 v{RA}, v{WA}, v{VST}, s7"), Op(f"v_add3_u32 v{WA}, v{WA}, v{VST}, s6")]
    for cb in range(2):
        fo = T + cb
        fac += [Op(f"v_min_f32 v{T+2}, v{T+4+cb}, v{54+cb}", kind="use", cons=[("ml",)]), Op(f"v_sub_f32 v{fo}, v{T+2}, v{54+cb}"), Op(f"v_sub_f32 v{T+4+cb}, v{T+2}, v{T+4+cb}"),
                Op(f"v_exp_f32 v{fo}, v{fo}"), Op(f"v_exp_f32 v{T+4+cb}, v{T+4+cb}"), Op("s_nop 0"),
                Op(f"v_mul_f32 v{T+2}, v{VL0+cb}, v{fo}"), Op(f"v_fmac_f32 v{T+2}, v{T+6+cb}, v{T+4+cb}"), Op(f"v_rcp_f32 v{T+2}, v{T+2}"), Op("s_nop 0"),
                Op(f"v_mul_f32 v{fo}, v{fo}, v{T+2}")]
    fac += [Op(f"v_mov_b32 v54, v{T}"), Op(f"v_mov_b32 v56, v{T+1}"), Op(f"s_lshl_b32 s6, s{S_KH}, 2"), Op(f"v_mov_b32 v{VTA}, s6"), Op(f"v_xor_b32 v{VTB}, 4, v{VTA}")]
    spread(fac, g1 + 2, pv + 9)
    snd = [Op("; HOLD")]
    for f in range(8):
        r = OA + 8*f; d = OA + 4*f; cb = f & 1
        snd += [Op(f"v_mul_f32 v{r+k}, v{r+k}, v{54+2*cb}") for k in range(8)] + [Op(f"v_cvt_pk_bf16_f32 v{d+k}, v{r+2*k}, v{r+2*k+1}") for k in range(4)]
        snd.append(Op(f"ds_write_b128 v{WA}, v[{d}:{d+3}] offset:{f*1024}", kind="lds", prod=("w",)))
    spread(snd, pv + 9, e + 1)
    ox = [Op("v_mov_b32 v51, 0"), Op(f"global_load_dword v{VMX}, v51, s[0:1] sc1"), Op(f"s_mov_b32 s{S_G}, s{S_ROT}")] + cbar() + [Op("; BOOST1")]
    RC = OA + 32
    for f in range(8):
        ox.append(Op(f"ds_read_b128 v[{RC+4*f}:{RC+4*f+3}], v{RA} offset:{f*1024}", kind="lds", prod=("o", f)))
    ox2 = []
    for f in range(8):
        cb = f & 1; r = KP + 8*f
        for k in range(4):
            t_ = S0 + 2*((4*f + k) % 8)
            ox2 += [Op(f"v_lshlrev_b32 v{t_}, 16, v{RC+4*f+k}", kind="use", cons=[("o", f)]), Op(f"v_and_b32 v{t_+1}, 0xffff0000, v{RC+4*f+k}")]
        for k in range(4):
            t_ = S0 + 2*((4*f + k) % 8)
            ox2.append(Op(f"v_pk_fma_f32 v[{r+2*k}:{r+2*k+1}], v[{r+2*k}:{r+2*k+1}], v[{54+2*cb}:{55+2*cb}], v[{t_}:{t_+1}] op_sel_hi:[1,0,1]"))
        ox2 += [Op(f"v_cvt_pk_bf16_f32 v{OA+4*f+k}, v{r+2*k}, v{r+2*k+1}") for k in range(4)]
        ox2.append(Op(f"ds_write_b128 v{RA}, v[{OA+4*f}:{OA+4*f+3}] offset:{f*1024}", kind="lds", prod=("w2",)))
    ox2 += [Op("s_nop 1")]
    pre[e] = tailf[e] + fill[e] + ox; fill[e] = ox2; tailf[e] = []
    g2 = read_gap(o0 + 8)
    bi = [i for i, o in enumerate(post[g2]) if o.text == "s_barrier"][0]
    post[g2].insert(bi, Op("; w2", kind="use", cons=[("w2",)]))
    post[g2] += [Op(f"ds_read_b128 a[{4*s}:{4*s+3}], v{WA} offset:{s*1024}", kind="lds", prod=("Of", s)) for s in range(8)] + [Op(f"v_mov_b32 v{VSP}, 0")]
    fill[o0 + 9] += [release(po), release(po + 1)]
    def Y(c_, cb, nt): return OA + 64 + 16 * (c_ & 1) + 8*cb + 4*nt
    nst = [1]
    stq = []
    def flag_ops(c_):
        if cfg.two == 1 and c_ not in (3, 6): return []
        if cfg.two == 2 and c_ != 6: return []
        k = len(stq) - 1 - max(i for i, x in enumerate(stq) if x == c_)
        stq.append("f")
        return [Op(f"s_add_u32 s46, s{S_LC}, {c_ << (2 + max(7, 4 + cfg.fsh))}"), Op(f"s_waitcnt vmcnt({k})"), Op(f"buffer_store_dword v{VMX}, v{VSP}, {srd(SRD_WS)}, s46 offen sc1")]
    TG = 32 << 20
    def ystore(c_):
        if c_ >= cfg.tagc:
            d = S0 + 12 * (c_ & 1) if False else (96 + 12 * (c_ & 1))
            y = Y(c_, 0, 0); parts = []
            for gi in range(3):
                seq = []
                for k in range(3):
                    w_ = 3*gi + k
                    if w_ < 8: seq.append(Op(f"v_cvt_pk_bf16_f32 v{d+4*gi+k}, v{y+2*w_}, v{y+2*w_+1}"))
                if gi == 0: seq.append(Op(f"s_add_u32 s{S_T2}, s45, {(c_ - cfg.tagc) << 18}"))
                seq.append(Op(f"buffer_store_dwordx4 v[{d+4*gi}:{d+4*gi+3}], v{VST}, {srd(SRD_WS)}, s{S_T2} offen offset:{gi*1024} sc1")); stq.append(c_)
                parts.append(seq)
            parts.append([Op(f"buffer_store_dword v{VMX}, v{VSP}, {srd(SRD_WS)}, s{S_LC} offen offset:{c_*512} sc1")]); stq.append("f")
            return parts, []
        parts = []
        for cb in range(2):
            seq = [Op(f"s_lshl_b32 s{S_T2}, s{S_G}, 16"), Op(f"s_add_u32 s{S_T2}, s{S_T2}, s{S_YB}")] if cb == 0 else [Op(f"s_add_u32 s{S_T2}, s{S_T2}, 16384")]
            d = S1 + 4 * cb + 8 * (c_ & 1); y = Y(c_, cb, 0)
            for i in range(4): seq.append(Op(f"v_cvt_pk_bf16_f32 v{d+i}, v{y+2*i}, v{y+2*i+1}"))
            if cfg.halfst and cb == 1: seq.append(Op(f"buffer_store_dword v{d}, v{VSP}, {srd(SRD_WS)}, s{S_T2} offen sc1"))
            else: seq.append(Op(f"buffer_store_dwordx4 v[{d}:{d+3}], v{VST}, {srd(SRD_WS)}, s{S_T2} offen {cfg.stfl.replace('_', ' ')}"))
            stq.append(c_)
            parts.append(seq)
        return parts, [Op(f"s_add_u32 s{S_G}, s{S_G}, 1"), Op(f"s_cmp_eq_u32 s{S_G}, 7"), Op(f"s_cselect_b32 s{S_G}, 0, s{S_G}")]
    sigd = 0
    tl = []; tag_loop(tl.append, "c")
    tailf[o0 + 14] += [Op(f"s_lshl_b32 s{S_LC}, s{S_W}, {max(7, 4 + cfg.fsh)}"), Op(f"s_lshl_b32 s7, s{S_H}, {cfg.fsh}"), Op(f"s_add_u32 s{S_LC}, s{S_LC}, s7"), Op(f"s_add_u32 s{S_LC}, s{S_LC}, s{S_FB}"), Op("s_waitcnt vmcnt(0)")] + [Op(x) for x in tl]
    spread([Op(f"v_mov_b32 v{96+4*g_+3}, v{VMX}") for g_ in range(6)] +
           [Op(f"s_sub_u32 s45, s{S_FB}, {FLAG_BASE}"), Op("s_lshl_b32 s45, s45, 8"), Op(f"s_lshl_b32 s7, s{S_W}, 16"), Op("s_add_u32 s45, s45, s7"), Op(f"s_lshl_b32 s7, s{S_H}, 12"), Op("s_add_u32 s45, s45, s7"), Op(f"s_add_u32 s45, s45, {TG}")], o0 + 21, o0 + 27)
    for c_ in range(7):
        parts, inc = ystore(c_)
        if c_ < 6:
            st = start[("WO", c_+1, 0)]
            if cfg.stpos == 0: spread([o for p_ in parts for o in p_], st + 3, st + 10)
            else:
                spread(parts[0][:-1], st + 2, st + 4); tailf[st + 3].append(parts[0][-1])
                rest = [o for p_ in parts[1:] for o in p_[:-1]]
                spread(rest, st + 5, st + 10); tailf[st + 11] += [p_[-1] for p_ in parts[1:]]
            fill[st + 13] += inc
            if 0 <= c_ - cfg.sigl < cfg.tagc:
                tailf[st + 11] += flag_ops(c_ - cfg.sigl); sigd = c_ - cfg.sigl + 1
        else:
            tailf[N-1] += [Op("s_nop 7")] + [o for p_ in parts for o in p_]
            for c2 in range(sigd, min(7, cfg.tagc)): tailf[N-1] += flag_ops(c2)

    def reads_for(n):
        m = M[n]; ops = []; fr = freg(n)
        if m["ph"] == "QK":
            return [Op(f"ds_read_b128 v[{fr}:{fr+3}], v{VA} offset:{m['kt']*256 + m['k4']*64}", kind="lds", prod=("F", n))]
        for hh in range(2):
            if m["ph"] == "Q": off = hh*512 + (m["dt"] >> 1)*64 + (m["dt"] & 1)*8
            elif m["ph"] == "PV": off = hh*512 + m["dt"]*32
            else: off = (m["k4"] >> 1)*8*ST + ((m["k4"] & 1)*4 + 2*hh)*128 + m["nt"]*32
            ops.append(Op(f"ds_read_b64_tr_b16 v[{fr+2*hh}:{fr+2*hh+1}], v{VA} offset:{off}", kind="lds", prod=("F", n)))
        return ops
    def mfma(n, cb):
        m = M[n]; fr = freg(n); cons = [("F", n)]; z = False
        if m["ph"] == "Q":
            d = acc(m["dt"] >> 1, cb, m["dt"] & 1); xn = 2*m["tt"] + cb; cons.append(("X", xn)); b = f"a[{xr(xn)}:{xr(xn)+3}]"; z = m["tt"] == 0
        elif m["ph"] == "QK":
            d = Sreg(m["j"]) + 8*cb + 4*m["kt"]; f = (4*m["half"] + m["k4"])*2 + cb; cons.append(("Q", f)); b = f"a[{QF+4*f}:{QF+4*f+3}]"; z = m["half"] == 0 and m["k4"] == 0
            if m["j"] == 0 and m["half"] == 0: b = f"v[{OA+4*f}:{OA+4*f+3}]"; cons.pop()
            if z and m["j"] > 0: z = f"v[{NM+4*cb}:{NM+4*cb+3}]"
        elif m["ph"] == "PV":
            d = acc(4*m["half"] + (m["dt"] >> 1), cb, m["dt"] & 1); p = Sreg(m["j"]) + 4*cb; b = f"v[{p}:{p+3}]"
        else:
            d = Y(m["c"], cb, m["nt"]); f = m["k4"]*2 + cb; z = m["hh"] == 0 and m["k4"] == 0
            if m["hh"] == 0: b = f"v[{OA+4*f}:{OA+4*f+3}]"
            else: b = f"a[{4*f}:{4*f+3}]"; cons.append(("Of", f))
        if cfg.w2 and cb == 0 and n % 2 == 0 and n + 1 < N and read_gap(n + 1) < n: cons.append(("F", n + 1))
        dd = f"v[{d}:{d+3}]"
        return Op(f"v_mfma_f32_16x16x32_bf16 {dd}, v[{fr}:{fr+3}], {b}, {z if isinstance(z, str) else ('0' if z else dd)}", kind="use", cons=cons)
    rd = {}
    for n in range(N): rd.setdefault(read_gap(n), []).append(n)
    stamp_at = [-1, 0, 64, 110, 111, a0+15, None, None, None, o0-2, o0-1, N-2, N-1] if cfg.fold else [-1, 0, 64, 110, 111, a0+15, a0+16+128, a0+16+256, a0+16+384, o0-2, o0-1, N-2, N-1]
    def wt(o): return 0 if o.text.startswith((";", "L_")) else (2 if o.text.startswith("v_exp") else 1)
    def haswait(n): return not (cfg.w2 and n % 2 == 1 and read_gap(n) < n - 1)
    half = {}
    carry = []
    for g in range(-1, N):
        r_ = [o for n in rd.get(g, []) for o in reads_for(n)]
        if g < 0 or pre[g]:
            half[2*g] = carry; half[2*g+1] = pre[g] + post[g] + r_ + fill[g]; carry = []; continue
        h0 = carry + post[g]; h1 = r_[:(len(r_)+1)//2]; carry = r_[(len(r_)+1)//2:]
        if g == a0 - 1: h1 += carry; carry = []
        w1 = (1 if g + 1 < N and haswait(g + 1) else 0) + sum(wt(o) for o in tailf[g])
        fl_ = list(fill[g]); tot = sum(wt(o) for o in h0 + h1 + fl_) + w1
        while fl_ and sum(wt(o) for o in h0) + wt(fl_[0]) <= (tot + 1) // 2: h0.append(fl_.pop(0))
        half[2*g] = h0; half[2*g+1] = h1 + fl_
    def fixed(h):
        w = sum(wt(o) for o in half[h])
        if h & 1: w += sum(wt(o) for o in tailf[h >> 1]) + (1 if haswait((h >> 1) + 1) else 0)
        return w
    def sched(L_, a, b, dl):
        fx = [fixed(h) for h in range(a, b)]
        late = [k for k, (o, d) in enumerate(L_) if o.text.startswith("v_add") and int(o.text.split("v")[-1]) % 16 >= cfg.defer]
        free = sum(max(0, 2 - f) for f in fx[:dl]); tot = sum(wt(o) for k, (o, _) in enumerate(L_) if k not in late)
        over = max(0, tot - free)
        done = {}; asg = []; used_over = 0.0; lastop = None
        for hi, f in enumerate(fx):
            cap = 2 - f
            budget = over * (hi + 1) / dl * cfg.ovf - used_over
            while True:
                rdy = [k for k, (o, d) in enumerate(L_) if k not in done and all(x in done for x in d) and not (lastop in d and L_[lastop][0].text.startswith("v_exp") and done[lastop] == hi)]
                if hi < dl: rdy = [k for k in rdy if k not in late]
                fit = [k for k in rdy if wt(L_[k][0]) <= cap]
                if fit:
                    k = max(fit, key=lambda k: (wt(L_[k][0]), -k))
                else:
                    fit = [k for k in rdy if (wt(L_[k][0]) - max(cap, 0) <= budget + 1e-9 and cap > -1) or cap == 1]
                    if not fit: break
                    k = min(fit, key=lambda k: (wt(L_[k][0]) - max(cap, 0), -wt(L_[k][0]), k))
                    o_ = wt(L_[k][0]) - max(cap, 0); used_over += o_; budget -= o_
                cap -= wt(L_[k][0]); done[k] = hi; asg.append((k, hi)); lastop = k
        rest = [k for k in range(len(L_)) if k not in done]
        assert all(k in late for k in rest), rest
        assert all(h < dl for k, h in asg if k not in late)
        asg += [(k, b - a - 1) for k in rest]
        SCHED["info"] = (tot, free, over, len(rest), [f + sum(wt(L_[k][0]) for k, h in asg if h == hi) for hi, f in enumerate(fx)])
        return asg
    pv4 = start[("V", 4, 0)]
    A0 = 3
    asg = sched(step_ops(5), 2*pv4 + A0, 2*pv4 + A0 + 64, 64 - A0 - 2)
    bnd = 32 - A0
    for j in range(16):
        L_ = step_ops(j)
        a = 2*(start[("V", j-1, 0)] if j > 0 else a0) + A0
        early0 = []
        for k, r in asg:
            o = L_[k][0]
            if j == 0 and r < bnd:
                if k >= 10: early0.append(o)
            elif j == 15 and r >= bnd: early0.append(o)
            else:
                assert not (j == 0 and k < 10)
                half[a + r].append(o)
        early0 = [o for o in early0 if o.text.startswith("v_exp")] + [Op("s_nop 0")] + [o for o in early0 if not o.text.startswith("v_exp")]
        if j == 15: tailf[start[("V", 15, 0)] - 1] += early0
        if j == 0: tailf[a0 + 15] += [Op(x) for x in im] + early0 + [Op("s_nop 1"), Op("; STEP 0")]
    tailf[start[("V", 15, 0)] - 1].append(Op("s_nop 1"))
    ops = []
    for g in range(-1, N):
        if g >= 0: ops += [mfma(g, 0)] + half[2*g] + [mfma(g, 1)] + half[2*g+1]
        else: ops += half[2*g+1]
        if cfg.stamps and g in stamp_at:
            tl_ = [Op(stamp(cfg, 1 + stamp_at.index(g))), Op("s_waitcnt lgkmcnt(0)")]
            if g == a0 + 15: ops += tl_ + tailf[g]
            else: ops += tailf[g] + tl_
        else: ops += tailf[g]
    nb = 0; relbar = {}; chkbar = {}; hold = set(); boost = {}
    for o in ops:
        if o.text == "; need":
            for p_ in o.prod: chkbar.setdefault(p_, nb)
        if o.kind == "rel": relbar[o.prod] = nb + 1
        if o.text == "; HOLD": hold.add(nb)
        if o.text == "; BOOST": boost.update({nb + i_: int(x) for i_, x in enumerate(cfg.bst.split("_"))})
        if o.text == "; BOOST1": boost[nb] = 2
        if o.text == "s_barrier": nb += 1
    SCHED.update(rel=relbar, chk=chkbar, nbar=nb, hold=hold, boost=boost)
    txt = []; q = []
    for o in ops:
        if o.kind == "lds":
            if len(q) >= 15:
                txt.append("s_waitcnt lgkmcnt(10)"); q = q[-10:]
            q.append(o.prod)
        elif o.kind == "use":
            last = max((i for i, t in enumerate(q) if t in o.cons), default=-1)
            if last >= 0:
                txt.append(f"s_waitcnt lgkmcnt({len(q) - 1 - last})"); q = q[last+1:]
        elif o.kind == "drain": q = []
        if not o.text.startswith(";") or o.text.startswith("; STEP"): txt.append(o.text)
    A(f"s_mov_b32 s{S_T}, {f32(cfg.thr):#x}")
    js = list(range(15))
    def fin(lines, toff=0): return [re.sub(r"@(\d+)@", r"\1", re.sub(r"@T(\d+)@", lambda m_: str(int(m_.group(1)) - toff), x)) for x in lines]
    if cfg.fold:
        pos = {int(x.split()[2]): i for i, x in enumerate(txt) if x.startswith("; STEP")}
        def norm(a, b, it):
            o = []
            for x in txt[pos[a]+1:pos[b]]:
                if x.startswith("; STEP"): continue
                x = re.sub(r"@T(\d+)@", lambda m_: "@T%d@" % (int(m_.group(1)) - 32*it), x)
                x = re.sub(r"_@(\d+)@", lambda m_: "_@%d@" % (int(m_.group(1)) - 2*it), x)
                o.append(x)
            return o
        f0 = cfg.f0; nit = (14 - f0) // 2
        body = norm(f0, f0 + 2, 0)
        for it in range(1, nit):
            b2 = norm(f0 + 2*it, f0 + 2*it + 2, it)
            assert b2 == body, (it, [(x, y) for x, y in zip(body, b2) if x != y][:5])
        for x in fin(txt[:pos[f0]]): A(x)
        A(f"s_mov_b32 s{S_LC}, {nit}")
        A(".p2align 6")
        A("L_attn:")
        lt = max(i for i, x in enumerate(body) if "@T" in x)
        body = body[:lt+1] + [f"v_add_u32 v{VLA}, 32, v{VLA}"] + body[lt+1:]
        dr = tuple(d.replace("-", "_") for d in cfg.drop.split("_") if d)
        if dr:
            body = [x for x in body if not x.startswith(dr)]; body = ["s_mov_b64 vcc, 0" if x.startswith("s_or_b64") else x for x in body]
        for x in fin(body): A(x)
        A(f"s_sub_u32 s{S_LC}, s{S_LC}, 1"); A(f"s_cmp_lg_u32 s{S_LC}, 0"); A("s_cbranch_scc1 L_attn")
        for x in fin(txt[pos[f0 + 2*nit]:], 32*nit): A(x)
        js = list(range(f0 + 2)) + list(range(f0 + 2*nit, 15))
    else:
        for x in fin(txt): A(x)
    A(f"s_add_u32 s{S_G}, s{S_W}, 4"); A(f"s_cmp_eq_u32 s{S_W}, 3"); A("s_cbranch_scc1 L_fin")
    if cfg.tagc < 7:
        assert cfg.tagc == 4
        gen_reduce_tagged(A, cfg)
    gen_reduce(A, cfg)
    for j in js:
        A(f"L_ra_{j}:"); A(f"s_call_b64 s[{S_RET}:{S_RET+1}], L_resa{j % 2}"); A(f"s_branch L_rab_{j}")
        A(f"L_rb_{j}:"); A(f"s_call_b64 s[{S_RET}:{S_RET+1}], L_resb{j % 2}"); A(f"s_branch L_rbb_{j}")
    for par in range(2):
        sn = Sreg(par + 1); t0 = Sreg(par) + 8
        A(f"L_resa{par}:")
        for x in max_cb(sn, t0, t0+1) + xlane("v_max_f32", (t0, t0+1), (t0+2, t0+3)): A(x)
        for cb in range(2):
            A(f"v_max_f32 v{t0+cb}, 0, v{t0+cb}")
            for r in range(8): A(f"v_sub_f32 v{sn+8*cb+r}, v{sn+8*cb+r}, v{t0+cb}")
            for k in range(4): A(f"v_sub_f32 v{NM+4*cb+k}, v{NM+4*cb+k}, v{t0+cb}")
            A(f"v_exp_f32 v{t0+cb}, -v{t0+cb}"); A("s_nop 0"); A(f"v_mul_f32 v{VL0+cb}, v{VL0+cb}, v{t0+cb}")
        A(f"s_setpc_b64 s[{S_RET}:{S_RET+1}]")
        A(f"L_resb{par}:")
        A("s_nop 7")
        for r in range(128): A(f"v_mul_f32 v{OA+r}, v{OA+r}, v{t0 + ((r >> 3) & 1)}")
        A("s_nop 1"); A(f"s_setpc_b64 s[{S_RET}:{S_RET+1}]")
    return L

def gen(cfg):
    comp = build_compute(cfg)
    out = [HEADER.rstrip()]; A = out.append
    A("; @launch grid=(256,1,1) block=(512,1,1) lds=163840")
    A('.amdgcn_target "amdgcn-amd-amdhsa--gfx950"'); A(".text")
    A(f".globl {KNAME}"); A(".p2align 8"); A(f".type {KNAME},@function"); A(f"{KNAME}:")
    gen_entry(A, cfg); gen_loader(A, cfg)
    A(".p2align 6")
    out += comp
    A(".p2align 8"); A(".type L_table,@object"); A("L_table:")
    for j in range(4):
        t = [0] * 128
        for e in make_table(j, cfg): t[e["p"]] = SLOT0 + e["slot"]*SLOTSZ
        for i in range(0, 128, 8): A(".long " + ", ".join(f"{x:#x}" for x in t[i:i+8]))
    A('.section .rodata,"a"'); A(".p2align 6")
    A(f""".amdhsa_kernel {KNAME}
  .amdhsa_next_free_vgpr 256
  .amdhsa_next_free_sgpr 102
  .amdhsa_accum_offset 192
  .amdhsa_group_segment_fixed_size 0
  .amdhsa_kernarg_size 64
  .amdhsa_user_sgpr_count 2
  .amdhsa_user_sgpr_kernarg_segment_ptr 1
  .amdhsa_system_sgpr_workgroup_id_x 1
.end_amdhsa_kernel""")
    return "\n".join(out) + "\n"

if __name__ == "__main__":
    cfg = Cfg()
    for a in sys.argv[2:]:
        k, v = a.split("=")
        setattr(cfg, k, int(v) if v.lstrip("-").isdigit() else (v if "_" in v else float(v)))
    open(sys.argv[1], "w").write(gen(cfg))
```

```python
import math, sys, struct, re

KNAME = "standalone__gqa_block_cached__near_ridge_kernel"
HEADER = open("standalone__gqa_block_cached__near_ridge.s.ref").read().split("; Override launch")[0]

class Cfg:
    LA = 4
    FA = 5
    shift = 8
    first = 4
    la2 = 5
    hold = 1
    maxper = 2
    stamps = 0
    nodma = 0
    lprio = 0
    prio = 0
    early = 20
    wopf = 58
    fold = 1
    f0 = 0
    sigl = 2
    thr = 8.0
    w2 = 1
    drop = '_'
    trace = 0
    ovf = 1.0
    emu = 0
    oxd = 5
    qxd = 2
    tagc = 7
    tlb = 0
    kvt = 0
    rsleep = 8
    pp = 0
    two = 1
    iirot = 1
    b1 = 0
    woe = 0
    la2o = 5
    lsl = 0
    fsh = 2
    halfst = 0
    stfl = 'sc1_'
    cpf = 1
    wown = 6
    xm = 69
    xmask = 1023
    pfk = '_'
    la2q = 5
    bst = '2_1_2'
    stpos = 1
    fbar = 1
    pf = 0
    pfd = 12
    pf0 = 3
    defer = 12
    pause = 0
    minla = 2
    pairl = 0
    pat = '4_4_4_4_4_4_4_4'

S0, S1 = 0, 16
FR, NF = 32, 4
NM = 48
VL0, VL1, VF, VKB, VVB, VA, VLA = 56, 57, 58, 60, 61, 62, 63
VMX, VT0, VSP = 48, 49, 50
OA = 64
QF = 0
ST = 1056
MLX = 1024
SLOT0, SLOTSZ, NSLOT = 7168, 17408, 9
STQ = 1088
SRD_X, SRD_K, SRD_V, SRD_WQ, SRD_WO, SRD_WS, SRD_OUT = 8, 12, 16, 20, 24, 28, 96
S_W, S_B, S_H, S_QH, S_J = 3, 32, 33, 34, 35
S_QB, S_KH, S_C, S_YB, S_LC, S_BUD, S_T, S_T2, S_ROT = 36, 37, 38, 39, 40, 41, 42, 43, 44
S_RET = 8
S_G, S_FB = 62, 63
FLAG_BASE = 16 << 20
def srd(n): return f"s[{n}:{n+3}]"
def f32(x): return struct.unpack('<I', struct.pack('<f', x))[0]

class Op:
    def __init__(self, text, kind="x", prod=None, cons=None):
        self.text, self.kind, self.prod, self.cons = text, kind, prod, cons

ITEMS = []
for i in range(4):
    ITEMS.append(("X", i))
    ITEMS += [("WQ", t) for t in range(4*i, min(4*i+4, 14))]
ITEMS += [("QX", 0), ("QX", 1)]
ATT = [("K", 0)]
for j in range(16):
    if j < 15: ATT.append(("K", j+1))
    ATT.append(("V", j))
for t in ATT: ITEMS += [t + (0,), t + (1,)]
ITEMS += [("OX", i) for i in range(2)]
ITEMS += [("WO", c, hh) for c in range(7) for hh in range(2)]
P = {t: i for i, t in enumerate(ITEMS)}
NSTATIC = 3
SCHED = {}

def pfk(cfg): return [int(x) for x in str(cfg.pfk).split('_') if x]
def make_table(j, cfg):
    relbar, chkbar = SCHED["rel"], SCHED["chk"]
    key = {}
    for p, t in enumerate(ITEMS):
        k = float(p)
        if t[0] == "X" and t[1] > 0: k -= 2.5
        if not cfg.pf and t[0] in ("K", "V") and (ATT.index(t[:2]) & 3) == j and ATT.index(t[:2]) // 4 >= len(pfk(cfg)): k = P[t[:2] + (0,)] - cfg.shift - 0.5 + 0.01 * t[2]
        if t[0] == "OX": k = P[("OX", 1)] + cfg.oxd + 0.5 + 0.01 * t[1]
        if t[0] == "QX": k = P[("QX", 1)] + cfg.qxd + 0.45 + 0.01 * t[1]
        key[t] = max(k, NSTATIC - 0.5 + 0.001 * p) if p >= NSTATIC else k
    order = sorted(ITEMS, key=lambda t: key[t])
    assert order[:NSTATIC] == ITEMS[:NSTATIC]
    occ = [None] * NSLOT
    ent = []
    for t in order:
        free = [s for s in range(NSLOT) if occ[s] is None]
        if free: s = free[0]; early = 0
        else:
            s = min(range(NSLOT), key=lambda s: relbar[P[occ[s]]]); early = relbar[P[occ[s]]]
        occ[s] = t
        ent.append(dict(t=t, slot=s, early=early, p=P[t], late=chkbar[P[t]]))
    for a in range(1, len(ent)): ent[a]["early"] = max(ent[a]["early"], ent[a-1]["early"])
    late = 10**9
    for e in reversed(ent):
        lim = e["late"] - (0 if e["t"][0] in ("QX", "OX") else 1)
        assert e["early"] <= lim, ("deadlock", j, e)
        late = min(late, e["late"]); e["late"] = late
    return ent

def mk_srd(A, n, lo, size, bias=0):
    if bias:
        A(f"s_sub_u32 s{n}, s{lo}, {bias}"); A(f"s_subb_u32 s{n+1}, s{lo+1}, 0"); A(f"s_and_b32 s{n+1}, s{n+1}, 0xffff")
    else:
        A(f"s_mov_b32 s{n}, s{lo}"); A(f"s_and_b32 s{n+1}, s{lo+1}, 0xffff")
    A(f"s_mov_b32 s{n+2}, {size+bias:#x}"); A(f"s_mov_b32 s{n+3}, 0x20000")

def stamp(cfg, k): return f"{'s_memrealtime' if cfg.stamps == 1 else 's_memtime'} s[{64+2*k}:{65+2*k}]"

def stamp_tail(A, cfg):
    if not cfg.stamps: return
    A("s_waitcnt vmcnt(0)"); A(stamp(cfg, 15)); A("s_waitcnt lgkmcnt(0)")
    A(f"s_lshl_b32 s{S_T}, s2, 3"); A(f"s_add_u32 s{S_T}, s{S_T}, s{S_W}"); A(f"s_lshl_b32 s{S_T}, s{S_T}, 7"); A(f"s_add_u32 s{S_T}, s{S_T}, {64<<20}")
    A("s_mov_b64 exec, -1")
    for i in range(32): A(f"v_mov_b32 v{64+i}, s{64+i}")
    A("v_mov_b32 v1, 0"); A("s_mov_b64 exec, 1")
    for i in range(8): A(f"buffer_store_dwordx4 v[{64+4*i}:{67+4*i}], v1, {srd(SRD_WS)}, s{S_T} offen offset:{16*i}")

def tag_loop(A, lab):
    A(f"L_tag_{lab}:")
    A(f"v_cmp_ne_u32 vcc, 0, v{VMX}"); A(f"s_sub_u32 s{S_BUD}, s{S_BUD}, 1"); A(f"s_cbranch_scc1 L_tagok_{lab}"); A("s_nop 2"); A(f"s_cbranch_vccnz L_tagok_{lab}")
    A(f"v_mov_b32 v{VSP}, 0"); A(f"global_load_dword v{VMX}, v{VSP}, s[0:1] sc1"); A("s_waitcnt vmcnt(0)"); A(f"s_branch L_tag_{lab}")
    A(f"L_tagok_{lab}:")

def mod7(A, r, n=1):
    for _ in range(n):
        A(f"s_sub_u32 s7, s{r}, 7"); A(f"s_cmp_ge_u32 s{r}, 7"); A(f"s_cselect_b32 s{r}, s7, s{r}")

def gen_reduce(A, cfg):
    A("L_reduce:")
    A("v_mbcnt_lo_u32_b32 v2, -1, 0"); A("v_mbcnt_hi_u32_b32 v2, -1, v2")
    A(f"s_lshr_b32 s4, s{S_H}, 3"); A(f"s_bfe_u32 s5, s{S_H}, 0x10002"); A(f"s_bfe_u32 s6, s{S_H}, 0x10001"); A(f"s_and_b32 s52, s{S_H}, 1")
    A("s_lshl_b32 s45, s5, 1"); A("s_add_u32 s45, s45, s4"); A(f"s_lshl_b32 s46, s{S_G}, 2")
    if cfg.two == 1: A(f"s_cmp_lt_u32 s{S_G}, 4"); A("s_cselect_b32 s46, 12, 24")
    if cfg.two == 2: A("s_mov_b32 s46, 24")
    A("s_add_u32 s45, s45, s46"); A(f"s_lshl_b32 s45, s45, {max(7, 4 + cfg.fsh)}"); A(f"s_add_u32 s45, s45, s{S_FB}")
    A(f"s_add_u32 s46, s{S_G}, s{S_ROT}"); mod7(A, 46)
    A(f"s_lshl_b32 s47, s{S_B}, 1"); A(f"s_add_u32 s47, s47, s{S_QH}"); A("s_lshl_b32 s47, s47, 1"); A("s_add_u32 s47, s47, s4")
    A("s_lshl_b32 s46, s46, 1"); A("s_add_u32 s46, s46, s5")
    A("s_lshl_b32 s53, s46, 1"); A("s_add_u32 s53, s53, s6")
    A("s_mul_i32 s48, s47, 28"); A("s_add_u32 s48, s48, s53"); A("s_lshl_b32 s48, s48, 14"); A("s_lshl_b32 s49, s52, 9"); A("s_add_u32 s48, s48, s49")
    A("s_lshl_b32 s50, s47, 1"); A("s_add_u32 s50, s50, s6"); A(f"s_mul_i32 s50, s50, {16*896}"); A("s_lshl_b32 s46, s46, 6"); A("s_add_u32 s50, s50, s46"); A("s_lshl_b32 s49, s52, 4"); A("s_add_u32 s50, s50, s49")
    A("v_and_b32 v3, 15, v2"); A(f"v_lshlrev_b32 v5, {cfg.fsh}, v3")
    A("v_and_b32 v6, 31, v2"); A("v_lshrrev_b32 v7, 5, v2"); A("v_lshlrev_b32 v8, 4, v6"); A("v_lshl_add_u32 v8, v7, 13, v8")
    A("v_mul_u32_u24 v9, 896, v3"); A("v_bfe_u32 v7, v2, 4, 1"); A("v_lshl_add_u32 v9, v7, 3, v9")
    A("s_add_u32 s49, s48, 4096")
    tag_loop(A, "r")
    A(f"v_mov_b32 v4, v{VMX}")
    if cfg.pp:
        for k in range(cfg.pp - 1):
            A(f"buffer_load_dword v{12+k}, v5, {srd(SRD_WS)}, s45 offen sc1"); A(f"s_sleep {cfg.rsleep}")
        A("L_rpoll:")
        for k in range(cfg.pp):
            A(f"buffer_load_dword v{12 + (k + cfg.pp - 1) % cfg.pp}, v5, {srd(SRD_WS)}, s45 offen sc1")
            A(f"s_waitcnt vmcnt({cfg.pp - 1})")
            A(f"v_cmp_ne_u32 vcc, v{12+k}, v4"); A(f"s_sleep {cfg.rsleep}")
            A("s_cbranch_vccz L_rgo")
        A(f"s_sub_u32 s{S_BUD}, s{S_BUD}, 1"); A("s_cbranch_scc0 L_rpoll")
    else:
        A("L_rpoll:")
        A(f"buffer_load_dword v10, v5, {srd(SRD_WS)}, s45 offen sc1")
        A(f"s_sub_u32 s{S_BUD}, s{S_BUD}, 1")
        A("s_waitcnt vmcnt(0)")
        A("v_cmp_ne_u32 vcc, v10, v4")
        A("s_cbranch_scc1 L_rgo"); A("s_nop 2")
        A("s_cbranch_vccz L_rgo")
        if cfg.rsleep: A(f"s_sleep {cfg.rsleep}")
        if cfg.lsl:
            A(f"s_cmp_lt_u32 s{S_W}, 4"); A("s_cbranch_scc1 L_rpoll"); A(f"s_sleep {cfg.lsl}")
        A("s_branch L_rpoll")
    A("L_rgo:")
    if cfg.stamps: A(stamp(cfg, 14))
    for p in range(8):
        A(f"buffer_load_dwordx4 v[{16+4*p}:{19+4*p}], v8, {srd(SRD_WS)}, s{48 + p//4} offen offset:{(p%4)*1024} sc1")
    for p in range(8):
        A(f"s_waitcnt vmcnt({7-p})")
        for i in range(4):
            if p == 0:
                A(f"v_lshlrev_b32 v{48+2*i}, 16, v{16+i}"); A(f"v_and_b32 v{49+2*i}, 0xffff0000, v{16+i}")
            else:
                A(f"v_lshlrev_b32 v10, 16, v{16+4*p+i}"); A(f"v_and_b32 v11, 0xffff0000, v{16+4*p+i}")
                A(f"v_add_f32 v{48+2*i}, v{48+2*i}, v10"); A(f"v_add_f32 v{49+2*i}, v{49+2*i}, v11")
    for i in range(8): A(f"v_mov_b32 v{56+i}, v{48+i}")
    A("s_nop 1")
    for i in range(8): A(f"v_permlane32_swap_b32 v{48+i}, v{56+i}")
    A("s_nop 1")
    for i in range(8): A(f"v_add_f32 v{48+i}, v{48+i}, v{56+i}")
    for i in range(4): A(f"v_cvt_pk_bf16_f32 v{16+i}, v{48+2*i}, v{49+2*i}")
    A("s_mov_b32 exec_hi, 0")
    A(f"buffer_store_dwordx2 v[16:17], v9, {srd(SRD_OUT)}, s50 offen")
    A(f"buffer_store_dwordx2 v[18:19], v9, {srd(SRD_OUT)}, s50 offen offset:32")
    A("L_fin:")
    stamp_tail(A, cfg)
    A("s_endpgm")

def gen_reduce_tagged(A, cfg):
    A("v_mbcnt_lo_u32_b32 v2, -1, 0"); A("v_mbcnt_hi_u32_b32 v2, -1, v2")
    A(f"s_sub_u32 s48, s{S_FB}, {FLAG_BASE}"); A("s_lshl_b32 s48, s48, 8"); A(f"s_lshl_b32 s7, s{S_W}, 18"); A("s_add_u32 s48, s48, s7")
    A(f"s_lshr_b32 s4, s{S_H}, 2"); A("s_lshl_b32 s7, s4, 16"); A("s_add_u32 s48, s48, s7"); A(f"s_and_b32 s5, s{S_H}, 3"); A("s_lshl_b32 s7, s5, 8"); A("s_add_u32 s48, s48, s7"); A(f"s_add_u32 s48, s48, {32 << 20}")
    for i in range(1, 4): A(f"s_add_u32 s{48+i}, s48, {i*16384}")
    A("v_and_b32 v3, 15, v2"); A("v_lshrrev_b32 v5, 4, v2"); A("v_lshlrev_b32 v8, 4, v3"); A("v_lshl_add_u32 v8, v5, 12, v8")
    A(f"v_mov_b32 v4, v{VMX}")
    A(f"s_lshl_b32 s45, s{S_G}, 2"); A("s_add_u32 s45, s45, s4"); A("s_lshl_b32 s45, s45, 7"); A(f"s_add_u32 s45, s45, s{S_FB}"); A("v_lshlrev_b32 v7, 2, v3")
    A("L_tf:")
    A(f"buffer_load_dword v10, v7, {srd(SRD_WS)}, s45 offen sc1")
    A(f"s_sub_u32 s{S_BUD}, s{S_BUD}, 1")
    A("s_waitcnt vmcnt(0)")
    A("v_cmp_ne_u32 vcc, v10, v4")
    A("s_cbranch_scc1 L_fin"); A("s_nop 2")
    A("s_cbranch_vccz L_tpoll")
    A("s_sleep 1"); A("s_branch L_tf")
    A("L_tpoll:")
    for i in range(4):
        for gi in range(3):
            r = 64 + 12*i + 4*gi
            A(f"buffer_load_dwordx4 v[{r}:{r+3}], v8, {srd(SRD_WS)}, s{48+i} offen offset:{gi*1024} sc1")
    A(f"s_add_u32 s46, s{S_G}, s{S_ROT}"); mod7(A, 46)
    A(f"s_lshl_b32 s47, s{S_B}, 1"); A(f"s_add_u32 s47, s47, s{S_QH}"); A("s_lshl_b32 s47, s47, 1"); A("s_and_b32 s7, s4, 1"); A("s_add_u32 s47, s47, s7"); A(f"s_mul_i32 s47, s47, {32*896}")
    A("s_lshl_b32 s46, s46, 7"); A("s_add_u32 s47, s47, s46"); A("s_lshr_b32 s7, s4, 1"); A("s_lshl_b32 s7, s7, 6"); A("s_add_u32 s47, s47, s7"); A("s_lshl_b32 s7, s5, 3"); A("s_add_u32 s47, s47, s7")
    A("v_lshrrev_b32 v6, 1, v5"); A("v_lshl_add_u32 v6, v6, 4, v3"); A("v_mul_u32_u24 v9, 896, v6"); A("v_and_b32 v6, 1, v5"); A("v_lshl_add_u32 v9, v6, 5, v9")
    A(f"s_sub_u32 s{S_BUD}, s{S_BUD}, 1"); A("s_cselect_b32 s52, 1, 0")
    A("s_waitcnt vmcnt(0)")
    A("v_xor_b32 v10, v4, v67")
    for n in range(1, 12):
        A(f"v_xor_b32 v11, v4, v{67+4*n}"); A("v_or_b32 v10, v10, v11")
    A("v_cmp_ne_u32 vcc, 0, v10"); A("s_cmp_eq_u32 s52, 1"); A("s_cbranch_scc1 L_tgo"); A("s_nop 1"); A("s_cbranch_vccnz L_tpoll")
    A("L_tgo:")
    if cfg.stamps: A(stamp(cfg, 14))
    for w_ in range(8):
        for i in range(4):
            r = 64 + 12*i + 4*(w_//3) + w_ % 3
            if i == 0: A(f"v_lshlrev_b32 v{16+2*w_}, 16, v{r}"); A(f"v_and_b32 v{17+2*w_}, 0xffff0000, v{r}")
            else:
                A(f"v_lshlrev_b32 v10, 16, v{r}"); A(f"v_and_b32 v11, 0xffff0000, v{r}")
                A(f"v_add_f32 v{16+2*w_}, v{16+2*w_}, v10"); A(f"v_add_f32 v{17+2*w_}, v{17+2*w_}, v11")
    A("s_nop 1")
    for k in range(8): A(f"v_permlane32_swap_b32 v{16+k}, v{24+k}")
    A("s_nop 1")
    for k in range(8): A(f"v_add_f32 v{16+k}, v{16+k}, v{24+k}")
    A("s_nop 1")
    for k in range(4): A(f"v_permlane16_swap_b32 v{16+k}, v{20+k}")
    A("s_nop 1")
    for k in range(4): A(f"v_add_f32 v{16+k}, v{16+k}, v{20+k}")
    A("v_cvt_pk_bf16_f32 v16, v16, v17"); A("v_cvt_pk_bf16_f32 v17, v18, v19")
    A(f"buffer_store_dwordx2 v[16:17], v9, {srd(SRD_OUT)}, s47 offen")
    A("s_branch L_fin")

LW, XB, WQB, WOB, LM4, KB_, VB0, VB1, RQ = 45, 46, 47, 60, 61, 81, 82, 83, 84
VOX, VOWQ, VOK, VOV, VOWO, VOK2 = 12, 16, 20, 24, 28, 32
def ld_emit(A, cfg, e, j=0):
    t = e["t"]; sl = SLOT0 + e["slot"] * SLOTSZ; ty = t[0]
    if ty in ("QX", "OX"): return 0
    idx = t[1]; half = t[2] if len(t) > 2 else 0
    if ty == "X":
        A(f"s_cmp_ge_u32 s{LW}, 2"); A(f"s_cselect_b32 s6, s{RQ+2*idx+1}, s{RQ+2*idx}"); A("s_lshl_b32 s6, s6, 7"); A(f"s_add_u32 m0, s{LM4}, {sl}"); A(f"s_add_u32 s6, s6, s{XB}")
        vo, sr = VOX, SRD_X
    elif ty == "WQ":
        A(f"s_lshl_b32 s6, s{RQ+(idx>>1)}, 19"); A(f"s_add_u32 m0, s{VB1}, {sl}"); A(f"s_add_u32 s6, s6, s{WQB}")
        if idx & 1: A(f"s_add_u32 s6, s6, {1 << 18}")
        vo, sr = VOWQ, SRD_WQ
    elif ty == "K":
        A(f"s_add_u32 m0, s{LM4}, {sl}"); A(f"s_xor_b32 s6, s{KB_}, {idx*32768}"); vo, sr = (VOK if half == 0 else VOK2), SRD_K
    elif ty == "V":
        A(f"s_add_u32 m0, s{LM4}, {sl}"); A(f"s_xor_b32 s6, s{VB0}, {idx*32768 + half*256}"); vo, sr = VOV, SRD_V
    else:
        A(f"s_lshl_b32 s6, s{RQ+idx}, 7"); A(f"s_add_u32 m0, s{LM4}, {sl}"); A(f"s_add_u32 s6, s6, s{WOB}")
        if half: A(f"s_add_u32 s6, s6, {128*896}")
        vo, sr = VOWO, SRD_WO
    if cfg.nodma and ty in ("K", "V", "WO"): return 0
    if cfg.emu and ty in ("K", "V"):
        for ii in ((0, 1) if j < 2 else (2, 3)):
            A(f"buffer_load_dwordx4 v{vo+ii}, {srd(sr)}, s6 offen offset:{ii*ST} lds")
        return 2
    for i_ in range(4):
        ii = (i_ + j) % 4 if cfg.iirot else i_
        A(f"buffer_load_dwordx4 v{vo+ii}, {srd(sr)}, s6 offen offset:{ii*(STQ if ty == 'WQ' else ST)} lds")
    return 4
def rot_table(A, lo, hi):
    for g in range(lo, hi):
        A(f"s_add_u32 s{RQ+g}, s{RQ+g-1}, 1"); A(f"s_cmp_eq_u32 s{RQ+g}, 7"); A(f"s_cselect_b32 s{RQ+g}, 0, s{RQ+g}")
def voff4(A, vo, ds, st=ST):
    for ii in (3, 2, 1, 0): A(f"v_add_u32 v{vo+ii}, {4096 + ii*(ds-st)}, v{vo}")

def gen_entry(A, cfg):
    A("s_cmp_lt_u32 s2, 256"); A("s_cbranch_scc1 L_main_go"); A("s_endpgm"); A("L_main_go:")
    if cfg.stamps: A(stamp(cfg, 0))
    A("s_load_dwordx8 s[48:55], s[0:1], 0")
    A("s_load_dwordx4 s[56:59], s[0:1], 32")
    A("s_load_dwordx4 s[92:95], s[0:1], 48")
    A("v_lshrrev_b32 v1, 6, v0"); A("v_and_b32 v2, 63, v0")
    A(f"v_readfirstlane_b32 s{S_W}, v1")
    A("s_and_b32 s4, s2, 7"); A("s_lshr_b32 s5, s2, 3")
    A(f"s_lshr_b32 s{S_B}, s5, 2"); A(f"s_and_b32 s{S_J}, s5, 3")
    A(f"s_and_b32 s6, s{S_J}, 1"); A(f"s_lshl_b32 s{S_H}, s4, 1"); A(f"s_add_u32 s{S_H}, s{S_H}, s6")
    A(f"s_lshr_b32 s{S_QH}, s{S_J}, 1")
    A(f"s_lshr_b32 s{S_ROT}, s5, 1")
    A(f"s_cmp_lt_u32 s{S_W}, 4"); A("s_cbranch_scc1 L_compute")
    A(f"s_sub_u32 s{LW}, s{S_W}, 4")
    A("s_lshl_b32 s6, s6, 2"); A(f"s_add_u32 s{RQ}, s{S_ROT}, s6"); A(f"s_mul_i32 s7, s{RQ}, 37"); A("s_lshr_b32 s7, s7, 8"); A("s_mul_i32 s7, s7, 7"); A(f"s_sub_u32 s{RQ}, s{RQ}, s7")
    rot_table(A, 1, 2)
    A("v_lshrrev_b32 v5, 3, v2"); A("v_and_b32 v6, 7, v2"); A("v_lshlrev_b32 v6, 4, v6")
    A("v_and_b32 v8, 1, v5"); A("v_lshrrev_b32 v7, 4, v2"); A("v_lshl_add_u32 v8, v7, 4, v8"); A(f"v_mul_u32_u24 v{VOX}, 896, v8"); A(f"v_add_u32 v{VOX}, v{VOX}, v6")
    voff4(A, VOX, 1792)
    A(f"s_lshl_b32 s{XB}, s{S_ROT}, 3"); A(f"s_and_b32 s6, s{LW}, 1"); A(f"s_add_u32 s{XB}, s{XB}, s6"); A(f"s_mul_i32 s{XB}, s{XB}, {8*896}")
    A(f"s_mul_i32 s{LM4}, s{LW}, {4*ST}"); A(f"s_mul_i32 s{VB1}, s{LW}, {4*STQ}"); A("s_lshl_b32 s6, s6, 3"); A(f"s_add_u32 s{VB1}, s{VB1}, s6")
    A("v_lshrrev_b32 v3, 5, v2"); A("v_and_b32 v4, 31, v2"); A("v_lshlrev_b32 v8, 4, v4"); A(f"v_lshl_add_u32 v{VOWQ}, v3, 15, v8")
    voff4(A, VOWQ, 8192, STQ)
    A(f"s_lshl_b32 s{WQB}, s{LW}, 16"); A(f"s_lshl_b32 s6, s{S_H}, 9"); A(f"s_add_u32 s{WQB}, s{WQB}, s6")
    A("s_getpc_b64 s[74:75]"); A("L_pc:"); A("s_add_u32 s74, s74, L_table-L_pc"); A("s_addc_u32 s75, s75, 0")
    A(f"s_lshl_b32 s6, s{S_J}, 9"); A("v_add_u32 v9, s6, v8")
    A("s_mov_b32 m0, 0"); A("s_mov_b32 exec_hi, 0"); A("global_load_lds_dwordx4 v9, s[74:75]"); A("s_mov_b32 exec_hi, -1")
    if cfg.stamps == 1: A(stamp(cfg, 2))
    A("s_waitcnt lgkmcnt(0)")
    mk_srd(A, SRD_X, 48, 8*128*448*2, 4096)
    t0 = make_table(0, cfg)
    ld_emit(A, cfg, t0[0])
    mk_srd(A, SRD_WQ, 54, 448*4096*2, 4096)
    ld_emit(A, cfg, t0[1]); ld_emit(A, cfg, t0[2])
    if cfg.stamps == 1: A(stamp(cfg, 3))
    if cfg.fbar:
        rot_table(A, 2, 4); ld_emit(A, cfg, t0[3])
        A("s_waitcnt vmcnt(8)")
        if cfg.stamps == 1: A(stamp(cfg, 1))
        A("s_barrier")
        ld_emit(A, cfg, t0[4])

def common_tail_setup(A, cfg):
    A("s_mov_b32 s0, s92"); A("s_mov_b32 s1, s93")
    mk_srd(A, SRD_WS, 94, 256 << 20); mk_srd(A, SRD_OUT, 58, 8*128*448*2)
    A(f"s_lshl_b32 s{S_FB}, s{S_ROT}, {max(12, 9 + cfg.fsh)}"); A(f"s_add_u32 s{S_FB}, s{S_FB}, {FLAG_BASE}")
    A(f"s_mov_b32 s{S_BUD}, 0x20000")

def gen_loader(A, cfg):
    NB = SCHED["nbar"]
    if cfg.lprio: A(f"s_setprio {cfg.lprio}")
    rot_table(A, 4 if cfg.fbar else 2, 8)
    A(f"s_lshl_b32 s80, s{S_B}, 3"); A("s_add_u32 s80, s80, s4"); A(f"s_mul_i32 s5, s80, {cfg.xm}"); A(f"s_and_b32 s5, s5, {cfg.xmask}"); A("s_lshl_b32 s80, s80, 19")
    A("s_lshr_b32 s6, s5, 6"); A("s_lshl_b32 s6, s6, 15"); A(f"s_or_b32 s{KB_}, s80, s6"); A("s_and_b32 s5, s5, 63")
    A(f"s_and_b32 s78, s{LW}, 1"); A("s_lshl_b32 s78, s78, 2"); A(f"s_lshr_b32 s79, s{LW}, 1")
    A("s_xor_b32 s6, s79, 1"); A("s_lshl_b32 s6, s6, 8"); A(f"s_or_b32 s{VB0}, s{KB_}, s6")
    A(f"s_lshl_b32 s{WOB}, s{S_H}, 8"); A("s_lshl_b32 s6, s79, 6"); A(f"s_add_u32 s{WOB}, s{WOB}, s6"); A(f"s_add_u32 s{WOB}, s{WOB}, s78"); A(f"s_mul_i32 s{WOB}, s{WOB}, 896")
    A("v_and_b32 v8, 15, v2"); A("v_lshlrev_b32 v8, 4, v8")
    A(f"s_lshl_b32 s6, s{LW}, 2"); A("s_xor_b32 s6, s6, s5"); A("v_lshlrev_b32 v41, 4, v7"); A("v_xor_b32 v41, s6, v41")
    A("s_lshl_b32 s6, s79, 5"); A("s_add_u32 s6, s6, s78"); A("s_xor_b32 s6, s6, s5"); A("v_lshlrev_b32 v42, 3, v7"); A("v_xor_b32 v42, s6, v42")
    for vo, src in ((VOK, 41), (VOV, 42)):
        for ii in range(4):
            A(f"v_xor_b32 v{vo+ii}, {ii}, v{src}"); A(f"v_lshl_add_u32 v{vo+ii}, v{vo+ii}, 9, v8"); A(f"v_add_u32 v{vo+ii}, {4096 - ii*ST}, v{vo+ii}")
    A("v_lshlrev_b32 v41, 8, v3"); A("v_xor_b32 v42, 0x100, v41")
    for ii in range(4):
        A(f"v_add_u32 v{VOK2+ii}, v42, v{VOK+ii}"); A(f"v_add_u32 v{VOK+ii}, v41, v{VOK+ii}")
    A(f"v_mul_u32_u24 v{VOWO}, {8*896}, v5"); A(f"v_add_u32 v{VOWO}, v{VOWO}, v6")
    voff4(A, VOWO, 896)
    mk_srd(A, SRD_K, 50, 32 << 20, 4096); mk_srd(A, SRD_V, 52, 32 << 20, 4096); mk_srd(A, SRD_WO, 56, 4096*448*2, 4096)
    A(f"s_lshl_b32 s76, s{S_ROT}, 2"); A(f"s_add_u32 s76, s76, s{LW}"); A(f"s_mul_i32 s76, s76, {28*128}"); A(f"s_mul_i32 s6, s{S_H}, {256*896}"); A("s_add_u32 s76, s76, s6")
    A("v_min_u32 v10, 27, v2"); A("v_lshlrev_b32 v10, 7, v10"); A("v_add_u32 v10, 4096, v10")
    A(f"s_lshl_b32 s77, s{LW}, 13"); A(f"s_add_u32 s77, s77, s{KB_}"); A("v_lshlrev_b32 v40, 7, v2"); A("v_add_u32 v40, 4096, v40")
    if cfg.kvt:
        A("v_mov_b32 v46, 4096"); A(f"buffer_load_dword v11, v46, {srd(SRD_K)}, s77 offen"); A(f"buffer_load_dword v11, v46, {srd(SRD_V)}, s77 offen")
    if cfg.cpf:
        A(f"s_sub_u32 s72, s74, L_table-{KNAME}"); A("s_subb_u32 s73, s75, 0")
        A("s_lshr_b32 s6, s2, 3"); A("s_lshl_b32 s6, s6, 2"); A(f"s_add_u32 s6, s6, s{LW}"); A("s_lshl_b32 s6, s6, 7")
        A("v_lshlrev_b32 v45, 14, v2"); A("v_add_u32 v45, s6, v45"); A(f"v_min_u32 v45, L_table-{KNAME}, v45")
        A("global_load_dword v11, v45, s[72:73]")
    common_tail_setup(A, cfg)
    A(f"s_mul_i32 s6, s{S_ROT}, {56*16384}"); A(f"s_lshl_b32 s7, s{S_H}, 10"); A("s_add_u32 s6, s6, s7"); A(f"s_mul_i32 s7, s{LW}, {14*16384}"); A("s_add_u32 s6, s6, s7")
    A("v_min_u32 v43, 13, v2"); A("v_lshlrev_b32 v43, 14, v43"); A("v_add_u32 v43, s6, v43")
    A(f"s_add_u32 s6, s{S_FB}, 3968"); A("v_mov_b32 v44, s6"); A("v_cmp_lt_u32 vcc, 31, v2"); A("s_nop 1"); A("v_cndmask_b32 v43, v43, v44, vcc")
    mod7(A, S_ROT, 2)
    for j in range(1, 4):
        A(f"s_cmp_eq_u32 s{S_J}, {j}"); A(f"s_cbranch_scc1 L_ld{j}")
    chk = SCHED["chk"]
    for j in range(4):
        A(f"L_ld{j}:")
        tab = make_table(j, cfg); pos = NSTATIC
        q = ["tab"] + [e["p"] for e in tab[:NSTATIC] for _ in range(4)]
        if cfg.fbar:
            assert [e["t"] for e in tab[:5]] == [e["t"] for e in make_table(0, cfg)[:5]]
            pos = 5; q = [e["p"] for e in tab[2:5] for _ in range(4)] + (["pf"] if cfg.cpf else []) + (["pf", "pf"] if cfg.kvt else [])
        rot_done = False; lastl = -100
        for k in range(1 if cfg.fbar else 0, NB):
            n = NSTATIC if k == 0 else (1 if (cfg.fbar and k == 1) else 0)
            def own(e): return not cfg.pf and e["t"][0] in ("K", "V") and (ATT.index(e["t"][:2]) & 3) == j
            while pos < len(tab) and tab[pos]["early"] <= k and (n < (cfg.first if k == 0 else 1) or (n < cfg.maxper and tab[pos]["late"] - k <= (cfg.la2q if k < 15 else (cfg.la2 if k < 78 else cfg.la2o))) or n < SCHED["boost"].get(k, 0) or tab[pos]["late"] <= k + 1):
                if cfg.hold and k in SCHED["hold"] and tab[pos]["late"] > k + 1 and tab[pos]["t"][0] not in ("QX", "OX"): break
                if not own(tab[pos]) and k <= lastl + cfg.pause and tab[pos]["late"] > k + cfg.minla: break
                if cfg.pairl and own(tab[pos]) and tab[pos]["t"][2] == 0 and tab[pos+1]["early"] > k and tab[pos]["late"] > k + cfg.minla + 1: break
                if own(tab[pos]): lastl = k
                if tab[pos]["t"][0] == "WO" and not rot_done:
                    A(f"s_mov_b32 s{RQ}, s{S_ROT}"); rot_table(A, 1, 7); rot_done = True
                if tab[pos]["t"] == ATT[4*cfg.wown + j] + (0,):
                    A(f"buffer_load_dword v11, v10, {srd(SRD_WO)}, s76 offen"); q.append("pf")
                    A(f"v_mov_b32 v{VSP}, 0"); A(f"global_load_dword v{VMX}, v{VSP}, s[0:1] sc1"); q.append("pf")
                    if cfg.cpf:
                        A("global_load_dword v11, v45, s[72:73]"); q.append("pf")
                    if cfg.tlb:
                        A(f"buffer_load_dword v11, v43, {srd(SRD_WS)}, 0 offen"); q.append("pf")
                        A(f"buffer_load_dword v11, v{VSP}, {srd(SRD_OUT)}, s{XB} offen"); q.append("pf")
                c = ld_emit(A, cfg, tab[pos], j); q += [tab[pos]["p"]] * c; pos += 1
                if c: n += 1
            if cfg.pf:
                for ai, t in enumerate(ATT):
                    if (ai & 3) == j and max(chk[P[t + (0,)]] - cfg.pfd, cfg.pf0 + (ai & 3) * cfg.pf) == k:
                        A(f"s_xor_b32 s6, s77, {t[1]*32768}"); A(f"buffer_load_dword v11, v40, {srd(SRD_K if t[0] == 'K' else SRD_V)}, s6 offen"); q.append("pf")
            for i_, kk_ in enumerate(pfk(cfg)):
                if kk_ == k:
                    t = ATT[4*i_ + j]
                    A(f"s_xor_b32 s6, s77, {t[1]*32768}"); A(f"buffer_load_dword v11, v40, {srd(SRD_K if t[0] == 'K' else SRD_V)}, s6 offen"); q.append("pf")
            need = [p for p in chk if chk[p] == k + 1] + (["tab"] if k == 0 else [])
            for p in need: assert p == "tab" or ITEMS[p][0] in ("QX", "OX") or p in [e["p"] for e in tab[:pos]], (j, k, p)
            last = max((i for i, t in enumerate(q) if t in need), default=-1)
            if cfg.stamps == 1 and k == 0: A(stamp(cfg, 4))
            if last >= 0:
                kk = len(q) - 1 - last; assert kk <= 63
                A(f"s_waitcnt vmcnt({kk})"); del q[:last+1]
            pass
            if cfg.trace:
                A("s_memtime s[66:67]"); A("s_waitcnt lgkmcnt(0)"); A(f"v_writelane_b32 v{100 + k//64}, s66, {k % 64}")
            A("s_barrier")
            if cfg.trace:
                A("s_memtime s[66:67]"); A("s_waitcnt lgkmcnt(0)"); A(f"v_writelane_b32 v{102 + k//64}, s66, {k % 64}")
        assert pos == len(tab)
        if cfg.trace:
            A(f"s_lshl_b32 s6, s2, 2"); A(f"s_add_u32 s6, s6, s{LW}"); A("s_lshl_b32 s6, s6, 10"); A(f"s_add_u32 s6, s6, {66<<20}"); A("v_lshlrev_b32 v104, 2, v2")
            for i in range(4): A(f"buffer_store_dword v{100+i}, v104, {srd(SRD_WS)}, s6 offen offset:{i*256}")
        A(f"s_mov_b32 s{S_G}, s{LW}")
        A("s_branch L_reduce")

def build_compute(cfg):
    L = []; A = L.append
    A("L_compute:")
    A(f"s_and_b32 s{S_QB}, s{S_W}, 1"); A(f"s_lshr_b32 s{S_KH}, s{S_W}, 1")
    A(f"s_mov_b32 s{S_C}, {f32(math.log2(math.e) / 16.0):#x}")
    A(f"s_lshl_b32 s{S_YB}, s{S_ROT}, 1"); A(f"s_add_u32 s{S_YB}, s{S_YB}, s{S_QB}")
    A(f"s_mul_i32 s{S_YB}, s{S_YB}, 28"); A(f"s_lshl_b32 s6, s{S_KH}, 1"); A(f"s_add_u32 s{S_YB}, s{S_YB}, s6"); A(f"s_lshl_b32 s{S_YB}, s{S_YB}, 4")
    A(f"s_add_u32 s{S_YB}, s{S_YB}, s{S_H}"); A(f"s_lshl_b32 s{S_YB}, s{S_YB}, 10")
    A("v_and_b32 v3, 15, v2"); A("v_lshrrev_b32 v4, 4, v2"); A("v_bfe_u32 v5, v2, 2, 2"); A("v_and_b32 v6, 3, v2"); A("v_lshlrev_b32 v6, 3, v6")
    VWQ, VXB, VQW, VQR = 51, 52, 53, 54
    A("v_lshrrev_b32 v7, 2, v2"); A(f"v_mul_u32_u24 v{VWQ}, {STQ}, v7"); A(f"s_lshl_b32 s6, s{S_KH}, 8"); A(f"v_lshl_add_u32 v{VWQ}, v6, 1, v{VWQ}"); A("v_and_b32 v9, 1, v4"); A(f"v_lshl_add_u32 v{VWQ}, v9, 3, v{VWQ}"); A(f"v_add_u32 v{VWQ}, s6, v{VWQ}")
    A("v_and_b32 v7, 7, v7"); A(f"v_mul_u32_u24 v{VVB}, {ST}, v7"); A("v_lshrrev_b32 v8, 5, v2"); A(f"v_lshl_add_u32 v{VVB}, v8, 8, v{VVB}")
    A(f"s_mul_i32 s6, s{S_KH}, {8*ST}"); A(f"v_add3_u32 v{VVB}, v{VVB}, v6, s6")
    A(f"v_mul_u32_u24 v{VKB}, {ST}, v3"); A(f"v_lshl_add_u32 v{VKB}, v4, 4, v{VKB}"); A(f"s_lshl_b32 s6, s{S_KH}, 9"); A(f"v_add_u32 v{VKB}, s6, v{VKB}")
    A("v_lshrrev_b32 v9, 1, v3"); A(f"v_mul_u32_u24 v{VXB}, {ST}, v9"); A("v_and_b32 v9, 1, v2"); A(f"v_lshl_add_u32 v{VXB}, v9, 7, v{VXB}"); A(f"v_lshl_add_u32 v{VXB}, v4, 4, v{VXB}")
    A(f"s_lshl_b32 s6, s{S_QB}, 9"); A(f"v_add_u32 v{VXB}, s6, v{VXB}")
    A(f"s_lshl_b32 s6, s{S_KH}, 13"); A(f"v_lshlrev_b32 v{VQW}, 4, v2"); A(f"v_add_u32 v{VQW}, s6, v{VQW}"); A(f"v_xor_b32 v{VQR}, 0x2000, v{VQW}")
    for r in range(128, 192, 2): A(f"v_mov_b64 v[{r}:{r+1}], 0")
    A(f"v_mov_b32 v{VLA}, 0"); A(f"v_mov_b32 v{VL0}, s{S_C}"); A(f"v_mov_b32 v{VL1}, s{S_C}")
    A("s_waitcnt lgkmcnt(0)")
    common_tail_setup(A, cfg)
    mod7(A, S_ROT, 2)
    A(f"s_add_u32 s6, s2, s{S_W}"); A("s_cmp_lg_u32 s6, 0"); A("s_cbranch_scc1 L_notag")
    A("s_memrealtime s[6:7]"); A("s_waitcnt lgkmcnt(0)"); A("s_or_b32 s6, s6, 1"); A("v_mov_b32 v9, s6")
    A(f"global_store_dword v{VLA}, v9, s[0:1] sc1")
    A("L_notag:")
    if cfg.prio: A(f"s_setprio {cfg.prio}")

    def xr(n): return 4 * (n % 16)
    def acc(ks, cb, u): return OA + ((ks*2 + cb)*2 + u) * 4
    M = []
    for tt in range(14):
        for dt in range(8): M.append(dict(ph="Q", tt=tt, dt=dt, item=("WQ", tt)))
    for t_ in ATT:
        for half in range(2):
            if t_[0] == "K":
                for k4 in range(4):
                    for kt in range(2): M.append(dict(ph="QK", j=t_[1], k4=k4, kt=kt, half=half, item=t_ + (half,)))
            else:
                for dt in range(8): M.append(dict(ph="PV", j=t_[1], dt=dt, half=half, item=t_ + (half,)))
    for c_ in range(7):
        for hh in range(2):
            for k4 in range(4):
                for nt in range(2): M.append(dict(ph="O", c=c_, hh=hh, k4=k4, nt=nt, item=("WO", c_, hh)))
    N = len(M); assert N == 736
    start = {}
    for n, m in enumerate(M): start.setdefault(m["item"], n)
    LA, FA = cfg.LA, cfg.FA
    fill = {n: [] for n in range(-1, N)}
    pre = {n: [] for n in range(-1, N)}
    post = {n: [] for n in range(-1, N)}
    tailf = {n: [] for n in range(-1, N)}
    a0 = start[("K", 0, 0)]; o0 = start[("WO", 0, 0)]
    hard = {0, o0}
    VWO, VST, VTA, VTB = VKB, VVB, 52, 53
    def tab_read(p, dst=VF, ar=VLA): return Op(f"ds_read_b32 v{dst}, v{ar} offset:@T{p*4}@", kind="lds", prod=("fl", p, dst))
    def need(ps, cons): return Op(f"; need", kind="use", cons=cons, prod=list(ps))
    def release(p): return Op(f"; free", kind="rel", prod=p)
    def cbar(): return [Op("s_waitcnt lgkmcnt(0)", kind="drain"), Op("s_barrier")]
    basereg = {"WQ": VWQ, "K": VKB, "V": VVB, "WO": VWO}
    pat = []
    for ln in cfg.pat.split("_"): pat += list(range(int(ln)))
    assert len(pat) == 32
    buf = [pat[(n - a0 - 16) % 32] for n in range(N)]
    xbuf = {}
    for k in range(4):
        xbuf[a0 + 4 + k] = S1 + 4*k; xbuf[o0 - 4 + k] = S0 + 4*k
        buf[a0 + 4 + k] = 10 + k; buf[o0 - 4 + k] = 20 + k
    def freg(n): return xbuf.get(n, FR + 4 * buf[n])
    prevu = {}
    lastu = {}
    for n in range(N):
        prevu[n] = lastu.get(buf[n], -10); lastu[buf[n]] = n
    def lo_gap(n): return max(h for h in hard if h <= n) - 1
    def read_gap(n):
        lo = lo_gap(n)
        return max(n - (8 if n in xbuf else LA), lo, prevu[n])
    for t in ITEMS:
        if t not in start: continue
        s = start[t]; g = read_gap(s); gf = max(g - FA, lo_gap(s) + (0 if s in hard else 1)); p = P[t]
        nd = [p]; rl = [p]; vf = VF
        if t[0] == "WO":
            p0 = P[("WO", t[1], 0)]
            tr = tab_read(p0, VF, VTA if t[2] == 0 else VTB); tr.prod = ("fl", p, VF); tr.text = tr.text.replace("@T", "").replace("@", "")
            nd = [p0, p0 + 1] if t[2] == 0 else []
            rl = [p0, p0 + 1] if t[2] == 1 else []
        elif t[0] in ("K", "V"):
            assert P[t[:2] + (0,)] % 2 == 0
            if t[2] == 0: tr = Op(f"ds_read_b64 v[{VF}:{VF+1}], v{VLA} offset:@T{p*4}@", kind="lds", prod=("fl", p, VF))
            else: tr = None; vf = VF + 1
        else: tr = tab_read(p)
        if tr: (post if gf == g else fill)[gf].append(tr)
        post[g] += ([] if s in hard else [Op("s_barrier")]) + [need(nd, [("fl", p, VF)]), Op(f"v_add_u32 v{VA}, v{vf}, v{basereg[t[0]]}")]
        tailf[s + 7] += [release(x) for x in rl]
    for i in range(4):
        s = start[("WQ", 4*i)]; p = P[("X", i)]
        ops = [tab_read(p, VT0), need([p], [("fl", p, VT0)]), Op(f"v_add_u32 v{VT0}, v{VT0}, v{VXB}")]
        rds = []
        for k in range(8 if i < 3 else 4):
            tl, cb = k >> 1, k & 1
            r = xr(8*i + k)
            rds.append(Op(f"ds_read_b128 a[{r}:{r+3}], v{VT0} offset:{(tl>>1)*8*ST + cb*256 + (tl&1)*64}", kind="lds", prod=("X", 8*i+k)))
        if i == 0:
            pre[-1] += [Op("s_barrier")] + ops + rds[:2]
            fill[-1] += rds[2:]
            fill[5].append(release(p))
        else:
            fill[s - 15].append(ops[0]); fill[s - 12] += ops[1:]
            for k, r in enumerate(rds): fill[s - 12 + k // 2].append(r)
            fill[s - 2].append(release(p))
    def Sreg(j): return S0 if j % 2 == 0 else S1
    def spread(ops, a, b):
        k = b - a
        w = [2 if o.text.startswith("v_exp") else 1 for o in ops]; tot = sum(w); c = 0
        for o, wi in zip(ops, w):
            fill[a + (c * k) // tot].append(o); c += wi
    def max_cb(s, r0, r1):
        o = []
        for k in range(4):
            for cb, r in ((0, r0), (1, r1)):
                b = s + 8*cb
                o.append([f"v_max3_f32 v{r}, v{b}, v{b+1}, v{b+2}", f"v_max3_f32 v{r}, v{r}, v{b+3}, v{b+4}", f"v_max3_f32 v{r}, v{r}, v{b+5}, v{b+6}", f"v_max_f32 v{r}, v{r}, v{b+7}"][k])
        return o
    def step_ops(j):
        s = Sreg(j); t0 = Sreg(j+1) + 8; t1 = t0 + 1; L_ = []
        def add(txt, deps): L_.append((Op(txt), deps)); return len(L_) - 1
        a = add(f"v_max3_f32 v{t0}, v{s}, v{s+1}, v{s+2}", []); b = add(f"v_max3_f32 v{t1}, v{s+8}, v{s+9}, v{s+10}", [a])
        a = add(f"v_max3_f32 v{t0}, v{t0}, v{s+3}, v{s+11}", [b]); b = add(f"v_max3_f32 v{t1}, v{t1}, v{s+4}, v{s+5}", [a])
        a = add(f"v_max3_f32 v{t0}, v{t0}, v{s+6}, v{s+7}", [b]); b = add(f"v_max3_f32 v{t1}, v{t1}, v{s+12}, v{s+13}", [a])
        a = add(f"v_max3_f32 v{t0}, v{t0}, v{s+14}, v{s+15}", [b]); a = add(f"v_max_f32 v{t0}, v{t0}, v{t1}", [a])
        a = add(f"v_cmp_lt_f32 vcc, s{S_T}, v{t0}", [a]); br = add(f"s_cbranch_vccnz L_ra_@{j-1}@\nL_rab_@{j-1}@:", [a])
        ex = {}; ad = {}; cv = {}
        for r in range(16): ex[r] = add(f"v_exp_f32 v{s+r}, v{s+r}", [br] + ([ex[r-1]] if r else []))
        for r in range(16):
            ad[r] = add(f"v_add_f32 v{VL0 + r//8}, v{VL0 + r//8}, v{s+r}", [ex[r]] + ([ad[r-1]] if r else []))
            if r % 2: cv[r//2] = add(f"v_cvt_pk_bf16_f32 v{s + r//2}, v{s+r-1}, v{s+r}", [ex[r], ad[r//2]] + ([cv[r//2-1]] if r > 1 else []))
        return L_
    def xlane(op, regs, tmp):
        o = []
        for sw in ("v_permlane16_swap_b32", "v_permlane32_swap_b32"):
            for r, t in zip(regs, tmp): o.append(f"v_mov_b32 v{t}, v{r}")
            o.append("s_nop 1")
            for r, t in zip(regs, tmp): o.append(f"{sw} v{t}, v{r}")
            o.append("s_nop 1")
            for r, t in zip(regs, tmp): o.append(f"{op} v{r}, v{r}, v{t}")
        return o
    e = a0 - 1; pq = P[("QX", 0)]
    fill[e - 4] += [Op(f"s_lshl_b32 s6, s{S_QB}, 2"), Op(f"v_mov_b32 v{VMX}, s6")]
    fill[e - 3].append(tab_read(pq, VT0, VMX))
    fill[e - 1] += [need([pq, pq+1], [("fl", pq, VT0)]), Op(f"v_add_u32 v{VQW}, v{VT0}, v{VQW}"), Op(f"v_add_u32 v{VQR}, v{VT0}, v{VQR}")]
    qx = [Op("; HOLD")]
    def qpack(f):
        r = OA + 8*f; d = OA + 4*f
        return [Op(f"v_pk_mul_f32 v[{r+k}:{r+k+1}], v[{r+k}:{r+k+1}], v[{VL0}:{VL1}]") for k in (0, 2, 4, 6)] + \
               [Op(f"v_cvt_pk_bf16_f32 v{d+k}, v{r+2*k}, v{r+2*k+1}") for k in range(4)] + \
               [Op(f"ds_write_b128 v{VQW}, v[{d}:{d+3}] offset:{f*1024}", kind="lds", prod=("wq",))]
    for f in range(8): qx += qpack(f)
    tailf[e] += qx + [Op("s_nop 0")]
    g2 = read_gap(a0 + 8)
    bi = [i for i, o in enumerate(post[g2]) if o.text == "s_barrier"][0]
    post[g2].insert(bi, Op("; wq done", kind="use", cons=[("wq",)]))
    post[g2].insert(bi + 2, Op("; BOOST"))
    qr = [Op(f"ds_read_b128 a[{QF+4*s}:{QF+4*s+3}], v{VQR if s >= 8 else VQW} offset:{(s%8)*1024}", kind="lds", prod=("Q", s)) for s in list(range(8, 16)) + list(range(8))]
    post[g2] += qr[:2]
    for k in range(2, 16): fill[g2 + k // 2].append(qr[k])
    spread([Op(f"v_mov_b64 v[{r}:{r+1}], 0") for r in range(96, 128, 2)], a0, a0 + 4)
    spread([Op(f"v_mov_b64 v[{r}:{r+1}], 0") for r in range(64, 96, 2)], a0 + 8, a0 + 16)
    tailf[a0 + 15] += [Op("; q all", kind="use", cons=[("Q", s) for s in range(16)]), release(pq), release(pq + 1)]
    im = ["s_nop 7"] + max_cb(S0, NM, NM+4) + xlane("v_max_f32", (NM, NM+4), (VL0, VL1))
    im += [f"v_sub_f32 v{S0+r}, v{S0+r}, v{NM + 4*(r//8)}" for r in range(16)]
    im += [f"v_sub_f32 v{NM+4*cb+k}, 0, v{NM+4*cb}" for cb in range(2) for k in (3, 2, 1, 0)] + [f"v_mov_b32 v{VL0}, 0", f"v_mov_b32 v{VL1}, 0"]
    for j in range(15):
        pvs = start[("V", j, 0)]
        tailf[pvs + 15] += [Op(f"s_cbranch_vccnz L_rb_@{j}@"), Op(f"L_rbb_@{j}@:"), Op(f"; STEP {j+1}")]
    e = o0 - 1; po = P[("OX", 0)]
    pv = start[("V", 15, 0)]
    T = S1 + 8; WA, RA, FO = 49, 50, 52
    KP = OA + 64
    tailf[pv - 1] += []
    pre_ml = [Op(x) for x in xlane("v_add_f32", (VL0, VL1), (T, T+1))]
    pre_ml += [Op(f"v_mbcnt_lo_u32_b32 v{T+2}, -1, 0"), Op(f"v_mbcnt_hi_u32_b32 v{T+2}, -1, v{T+2}"), Op(f"v_mov_b32 v54, v{NM}"), Op(f"v_lshlrev_b32 v51, 4, v{T+2}"),
               Op(f"s_lshl_b32 s6, s{S_W}, 10"), Op(f"s_add_u32 s6, s6, {MLX}"), Op(f"v_add_u32 v{T+3}, s6, v51"), Op("; HOLD"),
               Op(f"ds_write_b128 v{T+3}, v[54:57]", kind="lds", prod=("wm",)),
               Op(f"s_xor_b32 s7, s{S_W}, 2"), Op("s_lshl_b32 s7, s7, 10"), Op(f"s_add_u32 s7, s7, {MLX}"), Op(f"v_add_u32 v{T+3}, s7, v51"),
               Op(f"s_lshl_b32 s6, s{S_QB}, 2"), Op(f"v_mov_b32 v{WA}, s6"), Op(f"ds_read_b32 v{WA}, v{WA} offset:{po*4}", kind="lds", prod=("fl", po, WA))]
    spread(pre_ml, pv, pv + 3)
    spread([Op(f"v_bfe_u32 v{T}, v{T+2}, 2, 3"), Op(f"v_mul_u32_u24 v{VWO}, {ST}, v{T}"), Op(f"v_lshrrev_b32 v{T}, 5, v{T+2}"), Op(f"v_lshl_add_u32 v{VWO}, v{T}, 7, v{VWO}"),
            Op(f"v_and_b32 v{T}, 3, v{T+2}"), Op(f"v_lshl_add_u32 v{VWO}, v{T}, 3, v{VWO}"), Op(f"s_lshl_b32 s6, s{S_KH}, 6"), Op(f"v_add_u32 v{VWO}, s6, v{VWO}")], pv + 3, pv + 4)
    g1 = read_gap(pv + 8)
    bi = [i for i, o in enumerate(post[g1]) if o.text == "s_barrier"][0]
    post[g1].insert(bi, Op("; wm done", kind="use", cons=[("wm",)]))
    post[g1] += [Op(f"ds_read_b128 v[{T+4}:{T+7}], v{T+3}", kind="lds", prod=("ml",)), Op(f"v_mov_b32 v{VST}, v51")]
    fac = [need([po, po+1], [("fl", po, WA)]), Op(f"s_lshl_b32 s6, s{S_KH}, 13"), Op("s_xor_b32 s7, s6, 0x2000"),
           Op(f"v_add3_u32 v{RA}, v{WA}, v{VST}, s7"), Op(f"v_add3_u32 v{WA}, v{WA}, v{VST}, s6")]
    for cb in range(2):
        fo = T + cb
        fac += [Op(f"v_min_f32 v{T+2}, v{T+4+cb}, v{54+cb}", kind="use", cons=[("ml",)]), Op(f"v_sub_f32 v{fo}, v{T+2}, v{54+cb}"), Op(f"v_sub_f32 v{T+4+cb}, v{T+2}, v{T+4+cb}"),
                Op(f"v_exp_f32 v{fo}, v{fo}"), Op(f"v_exp_f32 v{T+4+cb}, v{T+4+cb}"), Op("s_nop 0"),
                Op(f"v_mul_f32 v{T+2}, v{VL0+cb}, v{fo}"), Op(f"v_fmac_f32 v{T+2}, v{T+6+cb}, v{T+4+cb}"), Op(f"v_rcp_f32 v{T+2}, v{T+2}"), Op("s_nop 0"),
                Op(f"v_mul_f32 v{fo}, v{fo}, v{T+2}")]
    fac += [Op(f"v_mov_b32 v54, v{T}"), Op(f"v_mov_b32 v56, v{T+1}"), Op(f"s_lshl_b32 s6, s{S_KH}, 2"), Op(f"v_mov_b32 v{VTA}, s6"), Op(f"v_xor_b32 v{VTB}, 4, v{VTA}")]
    spread(fac, g1 + 2, pv + 9)
    snd = [Op("; HOLD")]
    for f in range(8):
        r = OA + 8*f; d = OA + 4*f; cb = f & 1
        snd += [Op(f"v_mul_f32 v{r+k}, v{r+k}, v{54+2*cb}") for k in range(8)] + [Op(f"v_cvt_pk_bf16_f32 v{d+k}, v{r+2*k}, v{r+2*k+1}") for k in range(4)]
        snd.append(Op(f"ds_write_b128 v{WA}, v[{d}:{d+3}] offset:{f*1024}", kind="lds", prod=("w",)))
    spread(snd, pv + 9, e + 1)
    ox = [Op("v_mov_b32 v51, 0"), Op(f"global_load_dword v{VMX}, v51, s[0:1] sc1"), Op(f"s_mov_b32 s{S_G}, s{S_ROT}")] + cbar() + [Op("; BOOST1")]
    RC = OA + 32
    for f in range(8):
        ox.append(Op(f"ds_read_b128 v[{RC+4*f}:{RC+4*f+3}], v{RA} offset:{f*1024}", kind="lds", prod=("o", f)))
    ox2 = []
    for f in range(8):
        cb = f & 1; r = KP + 8*f
        for k in range(4):
            t_ = S0 + 2*((4*f + k) % 8)
            ox2 += [Op(f"v_lshlrev_b32 v{t_}, 16, v{RC+4*f+k}", kind="use", cons=[("o", f)]), Op(f"v_and_b32 v{t_+1}, 0xffff0000, v{RC+4*f+k}")]
        for k in range(4):
            t_ = S0 + 2*((4*f + k) % 8)
            ox2.append(Op(f"v_pk_fma_f32 v[{r+2*k}:{r+2*k+1}], v[{r+2*k}:{r+2*k+1}], v[{54+2*cb}:{55+2*cb}], v[{t_}:{t_+1}] op_sel_hi:[1,0,1]"))
        ox2 += [Op(f"v_cvt_pk_bf16_f32 v{OA+4*f+k}, v{r+2*k}, v{r+2*k+1}") for k in range(4)]
        ox2.append(Op(f"ds_write_b128 v{RA}, v[{OA+4*f}:{OA+4*f+3}] offset:{f*1024}", kind="lds", prod=("w2",)))
    ox2 += [Op("s_nop 1")]
    pre[e] = tailf[e] + fill[e] + ox; fill[e] = ox2; tailf[e] = []
    g2 = read_gap(o0 + 8)
    bi = [i for i, o in enumerate(post[g2]) if o.text == "s_barrier"][0]
    post[g2].insert(bi, Op("; w2", kind="use", cons=[("w2",)]))
    post[g2] += [Op(f"ds_read_b128 a[{4*s}:{4*s+3}], v{WA} offset:{s*1024}", kind="lds", prod=("Of", s)) for s in range(8)] + [Op(f"v_mov_b32 v{VSP}, 0")]
    fill[o0 + 9] += [release(po), release(po + 1)]
    def Y(c_, cb, nt): return OA + 64 + 16 * (c_ & 1) + 8*cb + 4*nt
    nst = [1]
    stq = []
    def flag_ops(c_):
        if cfg.two == 1 and c_ not in (3, 6): return []
        if cfg.two == 2 and c_ != 6: return []
        k = len(stq) - 1 - max(i for i, x in enumerate(stq) if x == c_)
        stq.append("f")
        return [Op(f"s_add_u32 s46, s{S_LC}, {c_ << (2 + max(7, 4 + cfg.fsh))}"), Op(f"s_waitcnt vmcnt({k})"), Op(f"buffer_store_dword v{VMX}, v{VSP}, {srd(SRD_WS)}, s46 offen sc1")]
    TG = 32 << 20
    def ystore(c_):
        if c_ >= cfg.tagc:
            d = S0 + 12 * (c_ & 1) if False else (96 + 12 * (c_ & 1))
            y = Y(c_, 0, 0); parts = []
            for gi in range(3):
                seq = []
                for k in range(3):
                    w_ = 3*gi + k
                    if w_ < 8: seq.append(Op(f"v_cvt_pk_bf16_f32 v{d+4*gi+k}, v{y+2*w_}, v{y+2*w_+1}"))
                if gi == 0: seq.append(Op(f"s_add_u32 s{S_T2}, s45, {(c_ - cfg.tagc) << 18}"))
                seq.append(Op(f"buffer_store_dwordx4 v[{d+4*gi}:{d+4*gi+3}], v{VST}, {srd(SRD_WS)}, s{S_T2} offen offset:{gi*1024} sc1")); stq.append(c_)
                parts.append(seq)
            parts.append([Op(f"buffer_store_dword v{VMX}, v{VSP}, {srd(SRD_WS)}, s{S_LC} offen offset:{c_*512} sc1")]); stq.append("f")
            return parts, []
        parts = []
        for cb in range(2):
            seq = [Op(f"s_lshl_b32 s{S_T2}, s{S_G}, 16"), Op(f"s_add_u32 s{S_T2}, s{S_T2}, s{S_YB}")] if cb == 0 else [Op(f"s_add_u32 s{S_T2}, s{S_T2}, 16384")]
            d = S1 + 4 * cb + 8 * (c_ & 1); y = Y(c_, cb, 0)
            for i in range(4): seq.append(Op(f"v_cvt_pk_bf16_f32 v{d+i}, v{y+2*i}, v{y+2*i+1}"))
            if cfg.halfst and cb == 1: seq.append(Op(f"buffer_store_dword v{d}, v{VSP}, {srd(SRD_WS)}, s{S_T2} offen sc1"))
            else: seq.append(Op(f"buffer_store_dwordx4 v[{d}:{d+3}], v{VST}, {srd(SRD_WS)}, s{S_T2} offen {cfg.stfl.replace('_', ' ')}"))
            stq.append(c_)
            parts.append(seq)
        return parts, [Op(f"s_add_u32 s{S_G}, s{S_G}, 1"), Op(f"s_cmp_eq_u32 s{S_G}, 7"), Op(f"s_cselect_b32 s{S_G}, 0, s{S_G}")]
    sigd = 0
    tl = []; tag_loop(tl.append, "c")
    tailf[o0 + 14] += [Op(f"s_lshl_b32 s{S_LC}, s{S_W}, {max(7, 4 + cfg.fsh)}"), Op(f"s_lshl_b32 s7, s{S_H}, {cfg.fsh}"), Op(f"s_add_u32 s{S_LC}, s{S_LC}, s7"), Op(f"s_add_u32 s{S_LC}, s{S_LC}, s{S_FB}"), Op("s_waitcnt vmcnt(0)")] + [Op(x) for x in tl]
    spread([Op(f"v_mov_b32 v{96+4*g_+3}, v{VMX}") for g_ in range(6)] +
           [Op(f"s_sub_u32 s45, s{S_FB}, {FLAG_BASE}"), Op("s_lshl_b32 s45, s45, 8"), Op(f"s_lshl_b32 s7, s{S_W}, 16"), Op("s_add_u32 s45, s45, s7"), Op(f"s_lshl_b32 s7, s{S_H}, 12"), Op("s_add_u32 s45, s45, s7"), Op(f"s_add_u32 s45, s45, {TG}")], o0 + 21, o0 + 27)
    for c_ in range(7):
        parts, inc = ystore(c_)
        if c_ < 6:
            st = start[("WO", c_+1, 0)]
            if cfg.stpos == 0: spread([o for p_ in parts for o in p_], st + 3, st + 10)
            else:
                spread(parts[0][:-1], st + 2, st + 4); tailf[st + 3].append(parts[0][-1])
                rest = [o for p_ in parts[1:] for o in p_[:-1]]
                spread(rest, st + 5, st + 10); tailf[st + 11] += [p_[-1] for p_ in parts[1:]]
            fill[st + 13] += inc
            if 0 <= c_ - cfg.sigl < cfg.tagc:
                tailf[st + 11] += flag_ops(c_ - cfg.sigl); sigd = c_ - cfg.sigl + 1
        else:
            tailf[N-1] += [Op("s_nop 7")] + [o for p_ in parts for o in p_]
            for c2 in range(sigd, min(7, cfg.tagc)): tailf[N-1] += flag_ops(c2)

    def reads_for(n):
        m = M[n]; ops = []; fr = freg(n)
        if m["ph"] == "QK":
            return [Op(f"ds_read_b128 v[{fr}:{fr+3}], v{VA} offset:{m['kt']*256 + m['k4']*64}", kind="lds", prod=("F", n))]
        for hh in range(2):
            if m["ph"] == "Q": off = hh*512 + (m["dt"] >> 1)*64 + (m["dt"] & 1)*8
            elif m["ph"] == "PV": off = hh*512 + m["dt"]*32
            else: off = (m["k4"] >> 1)*8*ST + ((m["k4"] & 1)*4 + 2*hh)*128 + m["nt"]*32
            ops.append(Op(f"ds_read_b64_tr_b16 v[{fr+2*hh}:{fr+2*hh+1}], v{VA} offset:{off}", kind="lds", prod=("F", n)))
        return ops
    def mfma(n, cb):
        m = M[n]; fr = freg(n); cons = [("F", n)]; z = False
        if m["ph"] == "Q":
            d = acc(m["dt"] >> 1, cb, m["dt"] & 1); xn = 2*m["tt"] + cb; cons.append(("X", xn)); b = f"a[{xr(xn)}:{xr(xn)+3}]"; z = m["tt"] == 0
        elif m["ph"] == "QK":
            d = Sreg(m["j"]) + 8*cb + 4*m["kt"]; f = (4*m["half"] + m["k4"])*2 + cb; cons.append(("Q", f)); b = f"a[{QF+4*f}:{QF+4*f+3}]"; z = m["half"] == 0 and m["k4"] == 0
            if m["j"] == 0 and m["half"] == 0: b = f"v[{OA+4*f}:{OA+4*f+3}]"; cons.pop()
            if z and m["j"] > 0: z = f"v[{NM+4*cb}:{NM+4*cb+3}]"
        elif m["ph"] == "PV":
            d = acc(4*m["half"] + (m["dt"] >> 1), cb, m["dt"] & 1); p = Sreg(m["j"]) + 4*cb; b = f"v[{p}:{p+3}]"
        else:
            d = Y(m["c"], cb, m["nt"]); f = m["k4"]*2 + cb; z = m["hh"] == 0 and m["k4"] == 0
            if m["hh"] == 0: b = f"v[{OA+4*f}:{OA+4*f+3}]"
            else: b = f"a[{4*f}:{4*f+3}]"; cons.append(("Of", f))
        if cfg.w2 and cb == 0 and n % 2 == 0 and n + 1 < N and read_gap(n + 1) < n: cons.append(("F", n + 1))
        dd = f"v[{d}:{d+3}]"
        return Op(f"v_mfma_f32_16x16x32_bf16 {dd}, v[{fr}:{fr+3}], {b}, {z if isinstance(z, str) else ('0' if z else dd)}", kind="use", cons=cons)
    rd = {}
    for n in range(N): rd.setdefault(read_gap(n), []).append(n)
    stamp_at = [-1, 0, 64, 110, 111, a0+15, None, None, None, o0-2, o0-1, N-2, N-1] if cfg.fold else [-1, 0, 64, 110, 111, a0+15, a0+16+128, a0+16+256, a0+16+384, o0-2, o0-1, N-2, N-1]
    def wt(o): return 0 if o.text.startswith((";", "L_")) else (2 if o.text.startswith("v_exp") else 1)
    def haswait(n): return not (cfg.w2 and n % 2 == 1 and read_gap(n) < n - 1)
    half = {}
    carry = []
    for g in range(-1, N):
        r_ = [o for n in rd.get(g, []) for o in reads_for(n)]
        if g == o0 - 1 and cfg.woe:
            half[2*(g-3)+1].append(post[g][0])
            half[2*g] = carry + post[g][1:] + r_; half[2*g+1] = pre[g] + fill[g]; carry = []; continue
        if g < 0 or pre[g]:
            half[2*g] = carry; half[2*g+1] = pre[g] + post[g] + r_ + fill[g]; carry = []; continue
        h0 = carry + post[g]; h1 = r_[:(len(r_)+1)//2]; carry = r_[(len(r_)+1)//2:]
        if g == a0 - 1: h1 += carry; carry = []
        w1 = (1 if g + 1 < N and haswait(g + 1) else 0) + sum(wt(o) for o in tailf[g])
        fl_ = list(fill[g]); tot = sum(wt(o) for o in h0 + h1 + fl_) + w1
        while fl_ and sum(wt(o) for o in h0) + wt(fl_[0]) <= (tot + 1) // 2: h0.append(fl_.pop(0))
        half[2*g] = h0; half[2*g+1] = h1 + fl_
    def fixed(h):
        w = sum(wt(o) for o in half[h])
        if h & 1: w += sum(wt(o) for o in tailf[h >> 1]) + (1 if haswait((h >> 1) + 1) else 0)
        return w
    def sched(L_, a, b, dl):
        fx = [fixed(h) for h in range(a, b)]
        late = [k for k, (o, d) in enumerate(L_) if o.text.startswith("v_add") and int(o.text.split("v")[-1]) % 16 >= cfg.defer]
        free = sum(max(0, 2 - f) for f in fx[:dl]); tot = sum(wt(o) for k, (o, _) in enumerate(L_) if k not in late)
        over = max(0, tot - free)
        done = {}; asg = []; used_over = 0.0; lastop = None
        for hi, f in enumerate(fx):
            cap = 2 - f
            budget = over * (hi + 1) / dl * cfg.ovf - used_over
            while True:
                rdy = [k for k, (o, d) in enumerate(L_) if k not in done and all(x in done for x in d) and not (lastop in d and L_[lastop][0].text.startswith("v_exp") and done[lastop] == hi)]
                if hi < dl: rdy = [k for k in rdy if k not in late]
                fit = [k for k in rdy if wt(L_[k][0]) <= cap]
                if fit:
                    k = max(fit, key=lambda k: (wt(L_[k][0]), -k))
                else:
                    fit = [k for k in rdy if (wt(L_[k][0]) - max(cap, 0) <= budget + 1e-9 and cap > -1) or cap == 1]
                    if not fit: break
                    k = min(fit, key=lambda k: (wt(L_[k][0]) - max(cap, 0), -wt(L_[k][0]), k))
                    o_ = wt(L_[k][0]) - max(cap, 0); used_over += o_; budget -= o_
                cap -= wt(L_[k][0]); done[k] = hi; asg.append((k, hi)); lastop = k
        rest = [k for k in range(len(L_)) if k not in done]
        assert all(k in late for k in rest), rest
        assert all(h < dl for k, h in asg if k not in late)
        asg += [(k, b - a - 1) for k in rest]
        SCHED["info"] = (tot, free, over, len(rest), [f + sum(wt(L_[k][0]) for k, h in asg if h == hi) for hi, f in enumerate(fx)])
        return asg
    pv4 = start[("V", 4, 0)]
    A0 = 3
    asg = sched(step_ops(5), 2*pv4 + A0, 2*pv4 + A0 + 64, 64 - A0 - 2)
    bnd = 32 - A0
    for j in range(16):
        L_ = step_ops(j)
        a = 2*(start[("V", j-1, 0)] if j > 0 else a0) + A0
        early0 = []
        for k, r in asg:
            o = L_[k][0]
            if j == 0 and r < bnd:
                if k >= 10: early0.append(o)
            elif j == 15 and r >= bnd: early0.append(o)
            else:
                assert not (j == 0 and k < 10)
                half[a + r].append(o)
        early0 = [o for o in early0 if o.text.startswith("v_exp")] + [Op("s_nop 0")] + [o for o in early0 if not o.text.startswith("v_exp")]
        if j == 15: tailf[start[("V", 15, 0)] - 1] += early0
        if j == 0: tailf[a0 + 15] += [Op(x) for x in im] + early0 + [Op("s_nop 1"), Op("; STEP 0")]
    tailf[start[("V", 15, 0)] - 1].append(Op("s_nop 1"))
    ops = []
    for g in range(-1, N):
        if g >= 0: ops += [mfma(g, 0)] + half[2*g] + [mfma(g, 1)] + half[2*g+1]
        else: ops += half[2*g+1]
        if cfg.stamps and g in stamp_at:
            tl_ = [Op(stamp(cfg, 1 + stamp_at.index(g))), Op("s_waitcnt lgkmcnt(0)")]
            if g == a0 + 15: ops += tl_ + tailf[g]
            else: ops += tailf[g] + tl_
        else: ops += tailf[g]
    nb = 0; relbar = {}; chkbar = {}; hold = set(); boost = {}
    for o in ops:
        if o.text == "; need":
            for p_ in o.prod: chkbar.setdefault(p_, nb)
        if o.kind == "rel": relbar[o.prod] = nb + 1
        if o.text == "; HOLD": hold.add(nb)
        if o.text == "; BOOST": boost.update({nb + i_: int(x) for i_, x in enumerate(cfg.bst.split("_"))})
        if o.text == "; BOOST1":
            boost[nb] = cfg.b1
            if cfg.b1 == 0: hold.add(nb)
        if o.text == "s_barrier": nb += 1
    SCHED.update(rel=relbar, chk=chkbar, nbar=nb, hold=hold, boost=boost)
    txt = []; q = []
    for o in ops:
        if o.kind == "lds":
            if len(q) >= 15:
                txt.append("s_waitcnt lgkmcnt(10)"); q = q[-10:]
            q.append(o.prod)
        elif o.kind == "use":
            last = max((i for i, t in enumerate(q) if t in o.cons), default=-1)
            if last >= 0:
                txt.append(f"s_waitcnt lgkmcnt({len(q) - 1 - last})"); q = q[last+1:]
        elif o.kind == "drain": q = []
        if not o.text.startswith(";") or o.text.startswith("; STEP"): txt.append(o.text)
    A(f"s_mov_b32 s{S_T}, {f32(cfg.thr):#x}")
    js = list(range(15))
    def fin(lines, toff=0): return [re.sub(r"@(\d+)@", r"\1", re.sub(r"@T(\d+)@", lambda m_: str(int(m_.group(1)) - toff), x)) for x in lines]
    if cfg.fold:
        pos = {int(x.split()[2]): i for i, x in enumerate(txt) if x.startswith("; STEP")}
        def norm(a, b, it):
            o = []
            for x in txt[pos[a]+1:pos[b]]:
                if x.startswith("; STEP"): continue
                x = re.sub(r"@T(\d+)@", lambda m_: "@T%d@" % (int(m_.group(1)) - 32*it), x)
                x = re.sub(r"_@(\d+)@", lambda m_: "_@%d@" % (int(m_.group(1)) - 2*it), x)
                o.append(x)
            return o
        f0 = cfg.f0; nit = (14 - f0) // 2
        body = norm(f0, f0 + 2, 0)
        for it in range(1, nit):
            b2 = norm(f0 + 2*it, f0 + 2*it + 2, it)
            assert b2 == body, (it, [(x, y) for x, y in zip(body, b2) if x != y][:5])
        for x in fin(txt[:pos[f0]]): A(x)
        A(f"s_mov_b32 s{S_LC}, {nit}")
        A(".p2align 6")
        A("L_attn:")
        lt = max(i for i, x in enumerate(body) if "@T" in x)
        body = body[:lt+1] + [f"v_add_u32 v{VLA}, 32, v{VLA}"] + body[lt+1:]
        dr = tuple(d.replace("-", "_") for d in cfg.drop.split("_") if d)
        if dr:
            body = [x for x in body if not x.startswith(dr)]; body = ["s_mov_b64 vcc, 0" if x.startswith("s_or_b64") else x for x in body]
        for x in fin(body): A(x)
        A(f"s_sub_u32 s{S_LC}, s{S_LC}, 1"); A(f"s_cmp_lg_u32 s{S_LC}, 0"); A("s_cbranch_scc1 L_attn")
        for x in fin(txt[pos[f0 + 2*nit]:], 32*nit): A(x)
        js = list(range(f0 + 2)) + list(range(f0 + 2*nit, 15))
    else:
        for x in fin(txt): A(x)
    A(f"s_add_u32 s{S_G}, s{S_W}, 4"); A(f"s_cmp_eq_u32 s{S_W}, 3"); A("s_cbranch_scc1 L_fin")
    if cfg.tagc < 7:
        assert cfg.tagc == 4
        gen_reduce_tagged(A, cfg)
    gen_reduce(A, cfg)
    for j in js:
        A(f"L_ra_{j}:"); A(f"s_call_b64 s[{S_RET}:{S_RET+1}], L_resa{j % 2}"); A(f"s_branch L_rab_{j}")
        A(f"L_rb_{j}:"); A(f"s_call_b64 s[{S_RET}:{S_RET+1}], L_resb{j % 2}"); A(f"s_branch L_rbb_{j}")
    for par in range(2):
        sn = Sreg(par + 1); t0 = Sreg(par) + 8
        A(f"L_resa{par}:")
        for x in max_cb(sn, t0, t0+1) + xlane("v_max_f32", (t0, t0+1), (t0+2, t0+3)): A(x)
        for cb in range(2):
            A(f"v_max_f32 v{t0+cb}, 0, v{t0+cb}")
            for r in range(8): A(f"v_sub_f32 v{sn+8*cb+r}, v{sn+8*cb+r}, v{t0+cb}")
            for k in range(4): A(f"v_sub_f32 v{NM+4*cb+k}, v{NM+4*cb+k}, v{t0+cb}")
            A(f"v_exp_f32 v{t0+cb}, -v{t0+cb}"); A("s_nop 0"); A(f"v_mul_f32 v{VL0+cb}, v{VL0+cb}, v{t0+cb}")
        A(f"s_setpc_b64 s[{S_RET}:{S_RET+1}]")
        A(f"L_resb{par}:")
        A("s_nop 7")
        for r in range(128): A(f"v_mul_f32 v{OA+r}, v{OA+r}, v{t0 + ((r >> 3) & 1)}")
        A("s_nop 1"); A(f"s_setpc_b64 s[{S_RET}:{S_RET+1}]")
    return L

def gen(cfg):
    comp = build_compute(cfg)
    out = [HEADER.rstrip()]; A = out.append
    A("; @launch grid=(256,1,1) block=(512,1,1) lds=163840")
    A('.amdgcn_target "amdgcn-amd-amdhsa--gfx950"'); A(".text")
    A(f".globl {KNAME}"); A(".p2align 8"); A(f".type {KNAME},@function"); A(f"{KNAME}:")
    gen_entry(A, cfg); gen_loader(A, cfg)
    A(".p2align 6")
    out += comp
    A(".p2align 8"); A(".type L_table,@object"); A("L_table:")
    for j in range(4):
        t = [0] * 128
        for e in make_table(j, cfg): t[e["p"]] = SLOT0 + e["slot"]*SLOTSZ
        for i in range(0, 128, 8): A(".long " + ", ".join(f"{x:#x}" for x in t[i:i+8]))
    A('.section .rodata,"a"'); A(".p2align 6")
    A(f""".amdhsa_kernel {KNAME}
  .amdhsa_next_free_vgpr 256
  .amdhsa_next_free_sgpr 102
  .amdhsa_accum_offset 192
  .amdhsa_group_segment_fixed_size 0
  .amdhsa_kernarg_size 64
  .amdhsa_user_sgpr_count 2
  .amdhsa_user_sgpr_kernarg_segment_ptr 1
  .amdhsa_system_sgpr_workgroup_id_x 1
.end_amdhsa_kernel""")
    return "\n".join(out) + "\n"

if __name__ == "__main__":
    cfg = Cfg()
    for a in sys.argv[2:]:
        k, v = a.split("=")
        setattr(cfg, k, int(v) if v.lstrip("-").isdigit() else (v if "_" in v else float(v)))
    open(sys.argv[1], "w").write(gen(cfg))
```

```python
import math, sys, struct, re

KNAME = "standalone__gqa_block_cached__near_ridge_kernel"
HEADER = open("standalone__gqa_block_cached__near_ridge.s.ref").read().split("; Override launch")[0]

class Cfg:
    LA = 4
    FA = 5
    shift = 8
    first = 4
    la2 = 5
    hold = 1
    maxper = 2
    stamps = 0
    nodma = 0
    lprio = 0
    prio = 0
    early = 20
    wopf = 58
    fold = 1
    f0 = 0
    sigl = 2
    thr = 8.0
    w2 = 1
    drop = '_'
    trace = 0
    ovf = 1.0
    emu = 0
    oxd = 5
    qxd = 2
    tagc = 7
    tlb = 0
    kvt = 0
    rsleep = 8
    pp = 0
    two = 1
    iirot = 1
    b1 = 0
    woe = 0
    la2o = 2
    lsl = 0
    fsh = 2
    halfst = 0
    stfl = 'sc1_'
    cpf = 1
    wown = 6
    xm = 69
    xmask = 1023
    pfk = '_'
    la2q = 5
    bst = '2_1_2'
    stpos = 1
    fbar = 1
    pf = 0
    pfd = 12
    pf0 = 3
    defer = 12
    pause = 0
    minla = 2
    pairl = 0
    pat = '4_4_4_4_4_4_4_4'

S0, S1 = 0, 16
FR, NF = 32, 4
NM = 48
VL0, VL1, VF, VKB, VVB, VA, VLA = 56, 57, 58, 60, 61, 62, 63
VMX, VT0, VSP = 48, 49, 50
OA = 64
QF = 0
ST = 1056
MLX = 1024
SLOT0, SLOTSZ, NSLOT = 7168, 17408, 9
STQ = 1088
SRD_X, SRD_K, SRD_V, SRD_WQ, SRD_WO, SRD_WS, SRD_OUT = 8, 12, 16, 20, 24, 28, 96
S_W, S_B, S_H, S_QH, S_J = 3, 32, 33, 34, 35
S_QB, S_KH, S_C, S_YB, S_LC, S_BUD, S_T, S_T2, S_ROT = 36, 37, 38, 39, 40, 41, 42, 43, 44
S_RET = 8
S_G, S_FB = 62, 63
FLAG_BASE = 16 << 20
def srd(n): return f"s[{n}:{n+3}]"
def f32(x): return struct.unpack('<I', struct.pack('<f', x))[0]

class Op:
    def __init__(self, text, kind="x", prod=None, cons=None):
        self.text, self.kind, self.prod, self.cons = text, kind, prod, cons

ITEMS = []
for i in range(4):
    ITEMS.append(("X", i))
    ITEMS += [("WQ", t) for t in range(4*i, min(4*i+4, 14))]
ITEMS += [("QX", 0), ("QX", 1)]
ATT = [("K", 0)]
for j in range(16):
    if j < 15: ATT.append(("K", j+1))
    ATT.append(("V", j))
for t in ATT: ITEMS += [t + (0,), t + (1,)]
ITEMS += [("OX", i) for i in range(2)]
ITEMS += [("WO", c, hh) for c in range(7) for hh in range(2)]
P = {t: i for i, t in enumerate(ITEMS)}
NSTATIC = 3
SCHED = {}

def pfk(cfg): return [int(x) for x in str(cfg.pfk).split('_') if x]
def make_table(j, cfg):
    relbar, chkbar = SCHED["rel"], SCHED["chk"]
    key = {}
    for p, t in enumerate(ITEMS):
        k = float(p)
        if t[0] == "X" and t[1] > 0: k -= 2.5
        if not cfg.pf and t[0] in ("K", "V") and (ATT.index(t[:2]) & 3) == j and ATT.index(t[:2]) // 4 >= len(pfk(cfg)): k = P[t[:2] + (0,)] - cfg.shift - 0.5 + 0.01 * t[2]
        if t[0] == "OX": k = P[("OX", 1)] + cfg.oxd + 0.5 + 0.01 * t[1]
        if t[0] == "QX": k = P[("QX", 1)] + cfg.qxd + 0.45 + 0.01 * t[1]
        key[t] = max(k, NSTATIC - 0.5 + 0.001 * p) if p >= NSTATIC else k
    order = sorted(ITEMS, key=lambda t: key[t])
    assert order[:NSTATIC] == ITEMS[:NSTATIC]
    occ = [None] * NSLOT
    ent = []
    for t in order:
        free = [s for s in range(NSLOT) if occ[s] is None]
        if free: s = free[0]; early = 0
        else:
            s = min(range(NSLOT), key=lambda s: relbar[P[occ[s]]]); early = relbar[P[occ[s]]]
        occ[s] = t
        ent.append(dict(t=t, slot=s, early=early, p=P[t], late=chkbar[P[t]]))
    for a in range(1, len(ent)): ent[a]["early"] = max(ent[a]["early"], ent[a-1]["early"])
    late = 10**9
    for e in reversed(ent):
        lim = e["late"] - (0 if e["t"][0] in ("QX", "OX") else 1)
        assert e["early"] <= lim, ("deadlock", j, e)
        late = min(late, e["late"]); e["late"] = late
    return ent

def mk_srd(A, n, lo, size, bias=0):
    if bias:
        A(f"s_sub_u32 s{n}, s{lo}, {bias}"); A(f"s_subb_u32 s{n+1}, s{lo+1}, 0"); A(f"s_and_b32 s{n+1}, s{n+1}, 0xffff")
    else:
        A(f"s_mov_b32 s{n}, s{lo}"); A(f"s_and_b32 s{n+1}, s{lo+1}, 0xffff")
    A(f"s_mov_b32 s{n+2}, {size+bias:#x}"); A(f"s_mov_b32 s{n+3}, 0x20000")

def stamp(cfg, k): return f"{'s_memrealtime' if cfg.stamps == 1 else 's_memtime'} s[{64+2*k}:{65+2*k}]"

def stamp_tail(A, cfg):
    if not cfg.stamps: return
    A("s_waitcnt vmcnt(0)"); A(stamp(cfg, 15)); A("s_waitcnt lgkmcnt(0)")
    A(f"s_lshl_b32 s{S_T}, s2, 3"); A(f"s_add_u32 s{S_T}, s{S_T}, s{S_W}"); A(f"s_lshl_b32 s{S_T}, s{S_T}, 7"); A(f"s_add_u32 s{S_T}, s{S_T}, {64<<20}")
    A("s_mov_b64 exec, -1")
    for i in range(32): A(f"v_mov_b32 v{64+i}, s{64+i}")
    A("v_mov_b32 v1, 0"); A("s_mov_b64 exec, 1")
    for i in range(8): A(f"buffer_store_dwordx4 v[{64+4*i}:{67+4*i}], v1, {srd(SRD_WS)}, s{S_T} offen offset:{16*i}")

def tag_loop(A, lab):
    A(f"L_tag_{lab}:")
    A(f"v_cmp_ne_u32 vcc, 0, v{VMX}"); A(f"s_sub_u32 s{S_BUD}, s{S_BUD}, 1"); A(f"s_cbranch_scc1 L_tagok_{lab}"); A("s_nop 2"); A(f"s_cbranch_vccnz L_tagok_{lab}")
    A(f"v_mov_b32 v{VSP}, 0"); A(f"global_load_dword v{VMX}, v{VSP}, s[0:1] sc1"); A("s_waitcnt vmcnt(0)"); A(f"s_branch L_tag_{lab}")
    A(f"L_tagok_{lab}:")

def mod7(A, r, n=1):
    for _ in range(n):
        A(f"s_sub_u32 s7, s{r}, 7"); A(f"s_cmp_ge_u32 s{r}, 7"); A(f"s_cselect_b32 s{r}, s7, s{r}")

def gen_reduce(A, cfg):
    A("L_reduce:")
    A("v_mbcnt_lo_u32_b32 v2, -1, 0"); A("v_mbcnt_hi_u32_b32 v2, -1, v2")
    A(f"s_lshr_b32 s4, s{S_H}, 3"); A(f"s_bfe_u32 s5, s{S_H}, 0x10002"); A(f"s_bfe_u32 s6, s{S_H}, 0x10001"); A(f"s_and_b32 s52, s{S_H}, 1")
    A("s_lshl_b32 s45, s5, 1"); A("s_add_u32 s45, s45, s4"); A(f"s_lshl_b32 s46, s{S_G}, 2")
    if cfg.two == 1: A(f"s_cmp_lt_u32 s{S_G}, 4"); A("s_cselect_b32 s46, 12, 24")
    if cfg.two == 2: A("s_mov_b32 s46, 24")
    A("s_add_u32 s45, s45, s46"); A(f"s_lshl_b32 s45, s45, {max(7, 4 + cfg.fsh)}"); A(f"s_add_u32 s45, s45, s{S_FB}")
    A(f"s_add_u32 s46, s{S_G}, s{S_ROT}"); mod7(A, 46)
    A(f"s_lshl_b32 s47, s{S_B}, 1"); A(f"s_add_u32 s47, s47, s{S_QH}"); A("s_lshl_b32 s47, s47, 1"); A("s_add_u32 s47, s47, s4")
    A("s_lshl_b32 s46, s46, 1"); A("s_add_u32 s46, s46, s5")
    A("s_lshl_b32 s53, s46, 1"); A("s_add_u32 s53, s53, s6")
    A("s_mul_i32 s48, s47, 28"); A("s_add_u32 s48, s48, s53"); A("s_lshl_b32 s48, s48, 14"); A("s_lshl_b32 s49, s52, 9"); A("s_add_u32 s48, s48, s49")
    A("s_lshl_b32 s50, s47, 1"); A("s_add_u32 s50, s50, s6"); A(f"s_mul_i32 s50, s50, {16*896}"); A("s_lshl_b32 s46, s46, 6"); A("s_add_u32 s50, s50, s46"); A("s_lshl_b32 s49, s52, 4"); A("s_add_u32 s50, s50, s49")
    A("v_and_b32 v3, 15, v2"); A(f"v_lshlrev_b32 v5, {cfg.fsh}, v3")
    A("v_and_b32 v6, 31, v2"); A("v_lshrrev_b32 v7, 5, v2"); A("v_lshlrev_b32 v8, 4, v6"); A("v_lshl_add_u32 v8, v7, 13, v8")
    A("v_mul_u32_u24 v9, 896, v3"); A("v_bfe_u32 v7, v2, 4, 1"); A("v_lshl_add_u32 v9, v7, 3, v9")
    A("s_add_u32 s49, s48, 4096")
    tag_loop(A, "r")
    A(f"v_mov_b32 v4, v{VMX}")
    if cfg.pp:
        for k in range(cfg.pp - 1):
            A(f"buffer_load_dword v{12+k}, v5, {srd(SRD_WS)}, s45 offen sc1"); A(f"s_sleep {cfg.rsleep}")
        A("L_rpoll:")
        for k in range(cfg.pp):
            A(f"buffer_load_dword v{12 + (k + cfg.pp - 1) % cfg.pp}, v5, {srd(SRD_WS)}, s45 offen sc1")
            A(f"s_waitcnt vmcnt({cfg.pp - 1})")
            A(f"v_cmp_ne_u32 vcc, v{12+k}, v4"); A(f"s_sleep {cfg.rsleep}")
            A("s_cbranch_vccz L_rgo")
        A(f"s_sub_u32 s{S_BUD}, s{S_BUD}, 1"); A("s_cbranch_scc0 L_rpoll")
    else:
        A("L_rpoll:")
        A(f"buffer_load_dword v10, v5, {srd(SRD_WS)}, s45 offen sc1")
        A(f"s_sub_u32 s{S_BUD}, s{S_BUD}, 1")
        A("s_waitcnt vmcnt(0)")
        A("v_cmp_ne_u32 vcc, v10, v4")
        A("s_cbranch_scc1 L_rgo"); A("s_nop 2")
        A("s_cbranch_vccz L_rgo")
        if cfg.rsleep: A(f"s_sleep {cfg.rsleep}")
        if cfg.lsl:
            A(f"s_cmp_lt_u32 s{S_W}, 4"); A("s_cbranch_scc1 L_rpoll"); A(f"s_sleep {cfg.lsl}")
        A("s_branch L_rpoll")
    A("L_rgo:")
    if cfg.stamps: A(stamp(cfg, 14))
    for p in range(8):
        A(f"buffer_load_dwordx4 v[{16+4*p}:{19+4*p}], v8, {srd(SRD_WS)}, s{48 + p//4} offen offset:{(p%4)*1024} sc1")
    for p in range(8):
        A(f"s_waitcnt vmcnt({7-p})")
        for i in range(4):
            if p == 0:
                A(f"v_lshlrev_b32 v{48+2*i}, 16, v{16+i}"); A(f"v_and_b32 v{49+2*i}, 0xffff0000, v{16+i}")
            else:
                A(f"v_lshlrev_b32 v10, 16, v{16+4*p+i}"); A(f"v_and_b32 v11, 0xffff0000, v{16+4*p+i}")
                A(f"v_add_f32 v{48+2*i}, v{48+2*i}, v10"); A(f"v_add_f32 v{49+2*i}, v{49+2*i}, v11")
    for i in range(8): A(f"v_mov_b32 v{56+i}, v{48+i}")
    A("s_nop 1")
    for i in range(8): A(f"v_permlane32_swap_b32 v{48+i}, v{56+i}")
    A("s_nop 1")
    for i in range(8): A(f"v_add_f32 v{48+i}, v{48+i}, v{56+i}")
    for i in range(4): A(f"v_cvt_pk_bf16_f32 v{16+i}, v{48+2*i}, v{49+2*i}")
    A("s_mov_b32 exec_hi, 0")
    A(f"buffer_store_dwordx2 v[16:17], v9, {srd(SRD_OUT)}, s50 offen")
    A(f"buffer_store_dwordx2 v[18:19], v9, {srd(SRD_OUT)}, s50 offen offset:32")
    A("L_fin:")
    stamp_tail(A, cfg)
    A("s_endpgm")

def gen_reduce_tagged(A, cfg):
    A("v_mbcnt_lo_u32_b32 v2, -1, 0"); A("v_mbcnt_hi_u32_b32 v2, -1, v2")
    A(f"s_sub_u32 s48, s{S_FB}, {FLAG_BASE}"); A("s_lshl_b32 s48, s48, 8"); A(f"s_lshl_b32 s7, s{S_W}, 18"); A("s_add_u32 s48, s48, s7")
    A(f"s_lshr_b32 s4, s{S_H}, 2"); A("s_lshl_b32 s7, s4, 16"); A("s_add_u32 s48, s48, s7"); A(f"s_and_b32 s5, s{S_H}, 3"); A("s_lshl_b32 s7, s5, 8"); A("s_add_u32 s48, s48, s7"); A(f"s_add_u32 s48, s48, {32 << 20}")
    for i in range(1, 4): A(f"s_add_u32 s{48+i}, s48, {i*16384}")
    A("v_and_b32 v3, 15, v2"); A("v_lshrrev_b32 v5, 4, v2"); A("v_lshlrev_b32 v8, 4, v3"); A("v_lshl_add_u32 v8, v5, 12, v8")
    A(f"v_mov_b32 v4, v{VMX}")
    A(f"s_lshl_b32 s45, s{S_G}, 2"); A("s_add_u32 s45, s45, s4"); A("s_lshl_b32 s45, s45, 7"); A(f"s_add_u32 s45, s45, s{S_FB}"); A("v_lshlrev_b32 v7, 2, v3")
    A("L_tf:")
    A(f"buffer_load_dword v10, v7, {srd(SRD_WS)}, s45 offen sc1")
    A(f"s_sub_u32 s{S_BUD}, s{S_BUD}, 1")
    A("s_waitcnt vmcnt(0)")
    A("v_cmp_ne_u32 vcc, v10, v4")
    A("s_cbranch_scc1 L_fin"); A("s_nop 2")
    A("s_cbranch_vccz L_tpoll")
    A("s_sleep 1"); A("s_branch L_tf")
    A("L_tpoll:")
    for i in range(4):
        for gi in range(3):
            r = 64 + 12*i + 4*gi
            A(f"buffer_load_dwordx4 v[{r}:{r+3}], v8, {srd(SRD_WS)}, s{48+i} offen offset:{gi*1024} sc1")
    A(f"s_add_u32 s46, s{S_G}, s{S_ROT}"); mod7(A, 46)
    A(f"s_lshl_b32 s47, s{S_B}, 1"); A(f"s_add_u32 s47, s47, s{S_QH}"); A("s_lshl_b32 s47, s47, 1"); A("s_and_b32 s7, s4, 1"); A("s_add_u32 s47, s47, s7"); A(f"s_mul_i32 s47, s47, {32*896}")
    A("s_lshl_b32 s46, s46, 7"); A("s_add_u32 s47, s47, s46"); A("s_lshr_b32 s7, s4, 1"); A("s_lshl_b32 s7, s7, 6"); A("s_add_u32 s47, s47, s7"); A("s_lshl_b32 s7, s5, 3"); A("s_add_u32 s47, s47, s7")
    A("v_lshrrev_b32 v6, 1, v5"); A("v_lshl_add_u32 v6, v6, 4, v3"); A("v_mul_u32_u24 v9, 896, v6"); A("v_and_b32 v6, 1, v5"); A("v_lshl_add_u32 v9, v6, 5, v9")
    A(f"s_sub_u32 s{S_BUD}, s{S_BUD}, 1"); A("s_cselect_b32 s52, 1, 0")
    A("s_waitcnt vmcnt(0)")
    A("v_xor_b32 v10, v4, v67")
    for n in range(1, 12):
        A(f"v_xor_b32 v11, v4, v{67+4*n}"); A("v_or_b32 v10, v10, v11")
    A("v_cmp_ne_u32 vcc, 0, v10"); A("s_cmp_eq_u32 s52, 1"); A("s_cbranch_scc1 L_tgo"); A("s_nop 1"); A("s_cbranch_vccnz L_tpoll")
    A("L_tgo:")
    if cfg.stamps: A(stamp(cfg, 14))
    for w_ in range(8):
        for i in range(4):
            r = 64 + 12*i + 4*(w_//3) + w_ % 3
            if i == 0: A(f"v_lshlrev_b32 v{16+2*w_}, 16, v{r}"); A(f"v_and_b32 v{17+2*w_}, 0xffff0000, v{r}")
            else:
                A(f"v_lshlrev_b32 v10, 16, v{r}"); A(f"v_and_b32 v11, 0xffff0000, v{r}")
                A(f"v_add_f32 v{16+2*w_}, v{16+2*w_}, v10"); A(f"v_add_f32 v{17+2*w_}, v{17+2*w_}, v11")
    A("s_nop 1")
    for k in range(8): A(f"v_permlane32_swap_b32 v{16+k}, v{24+k}")
    A("s_nop 1")
    for k in range(8): A(f"v_add_f32 v{16+k}, v{16+k}, v{24+k}")
    A("s_nop 1")
    for k in range(4): A(f"v_permlane16_swap_b32 v{16+k}, v{20+k}")
    A("s_nop 1")
    for k in range(4): A(f"v_add_f32 v{16+k}, v{16+k}, v{20+k}")
    A("v_cvt_pk_bf16_f32 v16, v16, v17"); A("v_cvt_pk_bf16_f32 v17, v18, v19")
    A(f"buffer_store_dwordx2 v[16:17], v9, {srd(SRD_OUT)}, s47 offen")
    A("s_branch L_fin")

LW, XB, WQB, WOB, LM4, KB_, VB0, VB1, RQ = 45, 46, 47, 60, 61, 81, 82, 83, 84
VOX, VOWQ, VOK, VOV, VOWO, VOK2 = 12, 16, 20, 24, 28, 32
def ld_emit(A, cfg, e, j=0):
    t = e["t"]; sl = SLOT0 + e["slot"] * SLOTSZ; ty = t[0]
    if ty in ("QX", "OX"): return 0
    idx = t[1]; half = t[2] if len(t) > 2 else 0
    if ty == "X":
        A(f"s_cmp_ge_u32 s{LW}, 2"); A(f"s_cselect_b32 s6, s{RQ+2*idx+1}, s{RQ+2*idx}"); A("s_lshl_b32 s6, s6, 7"); A(f"s_add_u32 m0, s{LM4}, {sl}"); A(f"s_add_u32 s6, s6, s{XB}")
        vo, sr = VOX, SRD_X
    elif ty == "WQ":
        A(f"s_lshl_b32 s6, s{RQ+(idx>>1)}, 19"); A(f"s_add_u32 m0, s{VB1}, {sl}"); A(f"s_add_u32 s6, s6, s{WQB}")
        if idx & 1: A(f"s_add_u32 s6, s6, {1 << 18}")
        vo, sr = VOWQ, SRD_WQ
    elif ty == "K":
        A(f"s_add_u32 m0, s{LM4}, {sl}"); A(f"s_xor_b32 s6, s{KB_}, {idx*32768}"); vo, sr = (VOK if half == 0 else VOK2), SRD_K
    elif ty == "V":
        A(f"s_add_u32 m0, s{LM4}, {sl}"); A(f"s_xor_b32 s6, s{VB0}, {idx*32768 + half*256}"); vo, sr = VOV, SRD_V
    else:
        A(f"s_lshl_b32 s6, s{RQ+idx}, 7"); A(f"s_add_u32 m0, s{LM4}, {sl}"); A(f"s_add_u32 s6, s6, s{WOB}")
        if half: A(f"s_add_u32 s6, s6, {128*896}")
        vo, sr = VOWO, SRD_WO
    if cfg.nodma and ty in ("K", "V", "WO"): return 0
    if cfg.emu and ty in ("K", "V"):
        for ii in ((0, 1) if j < 2 else (2, 3)):
            A(f"buffer_load_dwordx4 v{vo+ii}, {srd(sr)}, s6 offen offset:{ii*ST} lds")
        return 2
    for i_ in range(4):
        ii = (i_ + j) % 4 if cfg.iirot else i_
        A(f"buffer_load_dwordx4 v{vo+ii}, {srd(sr)}, s6 offen offset:{ii*(STQ if ty == 'WQ' else ST)} lds")
    return 4
def rot_table(A, lo, hi):
    for g in range(lo, hi):
        A(f"s_add_u32 s{RQ+g}, s{RQ+g-1}, 1"); A(f"s_cmp_eq_u32 s{RQ+g}, 7"); A(f"s_cselect_b32 s{RQ+g}, 0, s{RQ+g}")
def voff4(A, vo, ds, st=ST):
    for ii in (3, 2, 1, 0): A(f"v_add_u32 v{vo+ii}, {4096 + ii*(ds-st)}, v{vo}")

def gen_entry(A, cfg):
    A("s_cmp_lt_u32 s2, 256"); A("s_cbranch_scc1 L_main_go"); A("s_endpgm"); A("L_main_go:")
    if cfg.stamps: A(stamp(cfg, 0))
    A("s_load_dwordx8 s[48:55], s[0:1], 0")
    A("s_load_dwordx4 s[56:59], s[0:1], 32")
    A("s_load_dwordx4 s[92:95], s[0:1], 48")
    A("v_lshrrev_b32 v1, 6, v0"); A("v_and_b32 v2, 63, v0")
    A(f"v_readfirstlane_b32 s{S_W}, v1")
    A("s_and_b32 s4, s2, 7"); A("s_lshr_b32 s5, s2, 3")
    A(f"s_lshr_b32 s{S_B}, s5, 2"); A(f"s_and_b32 s{S_J}, s5, 3")
    A(f"s_and_b32 s6, s{S_J}, 1"); A(f"s_lshl_b32 s{S_H}, s4, 1"); A(f"s_add_u32 s{S_H}, s{S_H}, s6")
    A(f"s_lshr_b32 s{S_QH}, s{S_J}, 1")
    A(f"s_lshr_b32 s{S_ROT}, s5, 1")
    A(f"s_cmp_lt_u32 s{S_W}, 4"); A("s_cbranch_scc1 L_compute")
    A(f"s_sub_u32 s{LW}, s{S_W}, 4")
    A("s_lshl_b32 s6, s6, 2"); A(f"s_add_u32 s{RQ}, s{S_ROT}, s6"); A(f"s_mul_i32 s7, s{RQ}, 37"); A("s_lshr_b32 s7, s7, 8"); A("s_mul_i32 s7, s7, 7"); A(f"s_sub_u32 s{RQ}, s{RQ}, s7")
    rot_table(A, 1, 2)
    A("v_lshrrev_b32 v5, 3, v2"); A("v_and_b32 v6, 7, v2"); A("v_lshlrev_b32 v6, 4, v6")
    A("v_and_b32 v8, 1, v5"); A("v_lshrrev_b32 v7, 4, v2"); A("v_lshl_add_u32 v8, v7, 4, v8"); A(f"v_mul_u32_u24 v{VOX}, 896, v8"); A(f"v_add_u32 v{VOX}, v{VOX}, v6")
    voff4(A, VOX, 1792)
    A(f"s_lshl_b32 s{XB}, s{S_ROT}, 3"); A(f"s_and_b32 s6, s{LW}, 1"); A(f"s_add_u32 s{XB}, s{XB}, s6"); A(f"s_mul_i32 s{XB}, s{XB}, {8*896}")
    A(f"s_mul_i32 s{LM4}, s{LW}, {4*ST}"); A(f"s_mul_i32 s{VB1}, s{LW}, {4*STQ}"); A("s_lshl_b32 s6, s6, 3"); A(f"s_add_u32 s{VB1}, s{VB1}, s6")
    A("v_lshrrev_b32 v3, 5, v2"); A("v_and_b32 v4, 31, v2"); A("v_lshlrev_b32 v8, 4, v4"); A(f"v_lshl_add_u32 v{VOWQ}, v3, 15, v8")
    voff4(A, VOWQ, 8192, STQ)
    A(f"s_lshl_b32 s{WQB}, s{LW}, 16"); A(f"s_lshl_b32 s6, s{S_H}, 9"); A(f"s_add_u32 s{WQB}, s{WQB}, s6")
    A("s_getpc_b64 s[74:75]"); A("L_pc:"); A("s_add_u32 s74, s74, L_table-L_pc"); A("s_addc_u32 s75, s75, 0")
    A(f"s_lshl_b32 s6, s{S_J}, 9"); A("v_add_u32 v9, s6, v8")
    A("s_mov_b32 m0, 0"); A("s_mov_b32 exec_hi, 0"); A("global_load_lds_dwordx4 v9, s[74:75]"); A("s_mov_b32 exec_hi, -1")
    if cfg.stamps == 1: A(stamp(cfg, 2))
    A("s_waitcnt lgkmcnt(0)")
    mk_srd(A, SRD_X, 48, 8*128*448*2, 4096)
    t0 = make_table(0, cfg)
    ld_emit(A, cfg, t0[0])
    mk_srd(A, SRD_WQ, 54, 448*4096*2, 4096)
    ld_emit(A, cfg, t0[1]); ld_emit(A, cfg, t0[2])
    if cfg.stamps == 1: A(stamp(cfg, 3))
    if cfg.fbar:
        rot_table(A, 2, 4); ld_emit(A, cfg, t0[3])
        A("s_waitcnt vmcnt(8)")
        if cfg.stamps == 1: A(stamp(cfg, 1))
        A("s_barrier")
        ld_emit(A, cfg, t0[4])

def common_tail_setup(A, cfg):
    A("s_mov_b32 s0, s92"); A("s_mov_b32 s1, s93")
    mk_srd(A, SRD_WS, 94, 256 << 20); mk_srd(A, SRD_OUT, 58, 8*128*448*2)
    A(f"s_lshl_b32 s{S_FB}, s{S_ROT}, {max(12, 9 + cfg.fsh)}"); A(f"s_add_u32 s{S_FB}, s{S_FB}, {FLAG_BASE}")
    A(f"s_mov_b32 s{S_BUD}, 0x20000")

def gen_loader(A, cfg):
    NB = SCHED["nbar"]
    if cfg.lprio: A(f"s_setprio {cfg.lprio}")
    rot_table(A, 4 if cfg.fbar else 2, 8)
    A(f"s_lshl_b32 s80, s{S_B}, 3"); A("s_add_u32 s80, s80, s4"); A(f"s_mul_i32 s5, s80, {cfg.xm}"); A(f"s_and_b32 s5, s5, {cfg.xmask}"); A("s_lshl_b32 s80, s80, 19")
    A("s_lshr_b32 s6, s5, 6"); A("s_lshl_b32 s6, s6, 15"); A(f"s_or_b32 s{KB_}, s80, s6"); A("s_and_b32 s5, s5, 63")
    A(f"s_and_b32 s78, s{LW}, 1"); A("s_lshl_b32 s78, s78, 2"); A(f"s_lshr_b32 s79, s{LW}, 1")
    A("s_xor_b32 s6, s79, 1"); A("s_lshl_b32 s6, s6, 8"); A(f"s_or_b32 s{VB0}, s{KB_}, s6")
    A(f"s_lshl_b32 s{WOB}, s{S_H}, 8"); A("s_lshl_b32 s6, s79, 6"); A(f"s_add_u32 s{WOB}, s{WOB}, s6"); A(f"s_add_u32 s{WOB}, s{WOB}, s78"); A(f"s_mul_i32 s{WOB}, s{WOB}, 896")
    A("v_and_b32 v8, 15, v2"); A("v_lshlrev_b32 v8, 4, v8")
    A(f"s_lshl_b32 s6, s{LW}, 2"); A("s_xor_b32 s6, s6, s5"); A("v_lshlrev_b32 v41, 4, v7"); A("v_xor_b32 v41, s6, v41")
    A("s_lshl_b32 s6, s79, 5"); A("s_add_u32 s6, s6, s78"); A("s_xor_b32 s6, s6, s5"); A("v_lshlrev_b32 v42, 3, v7"); A("v_xor_b32 v42, s6, v42")
    for vo, src in ((VOK, 41), (VOV, 42)):
        for ii in range(4):
            A(f"v_xor_b32 v{vo+ii}, {ii}, v{src}"); A(f"v_lshl_add_u32 v{vo+ii}, v{vo+ii}, 9, v8"); A(f"v_add_u32 v{vo+ii}, {4096 - ii*ST}, v{vo+ii}")
    A("v_lshlrev_b32 v41, 8, v3"); A("v_xor_b32 v42, 0x100, v41")
    for ii in range(4):
        A(f"v_add_u32 v{VOK2+ii}, v42, v{VOK+ii}"); A(f"v_add_u32 v{VOK+ii}, v41, v{VOK+ii}")
    A(f"v_mul_u32_u24 v{VOWO}, {8*896}, v5"); A(f"v_add_u32 v{VOWO}, v{VOWO}, v6")
    voff4(A, VOWO, 896)
    mk_srd(A, SRD_K, 50, 32 << 20, 4096); mk_srd(A, SRD_V, 52, 32 << 20, 4096); mk_srd(A, SRD_WO, 56, 4096*448*2, 4096)
    A(f"s_lshl_b32 s76, s{S_ROT}, 2"); A(f"s_add_u32 s76, s76, s{LW}"); A(f"s_mul_i32 s76, s76, {28*128}"); A(f"s_mul_i32 s6, s{S_H}, {256*896}"); A("s_add_u32 s76, s76, s6")
    A("v_min_u32 v10, 27, v2"); A("v_lshlrev_b32 v10, 7, v10"); A("v_add_u32 v10, 4096, v10")
    A(f"s_lshl_b32 s77, s{LW}, 13"); A(f"s_add_u32 s77, s77, s{KB_}"); A("v_lshlrev_b32 v40, 7, v2"); A("v_add_u32 v40, 4096, v40")
    if cfg.kvt:
        A("v_mov_b32 v46, 4096"); A(f"buffer_load_dword v11, v46, {srd(SRD_K)}, s77 offen"); A(f"buffer_load_dword v11, v46, {srd(SRD_V)}, s77 offen")
    if cfg.cpf:
        A(f"s_sub_u32 s72, s74, L_table-{KNAME}"); A("s_subb_u32 s73, s75, 0")
        A("s_lshr_b32 s6, s2, 3"); A("s_lshl_b32 s6, s6, 2"); A(f"s_add_u32 s6, s6, s{LW}"); A("s_lshl_b32 s6, s6, 7")
        A("v_lshlrev_b32 v45, 14, v2"); A("v_add_u32 v45, s6, v45"); A(f"v_min_u32 v45, L_table-{KNAME}, v45")
        A("global_load_dword v11, v45, s[72:73]")
    common_tail_setup(A, cfg)
    A(f"s_mul_i32 s6, s{S_ROT}, {56*16384}"); A(f"s_lshl_b32 s7, s{S_H}, 10"); A("s_add_u32 s6, s6, s7"); A(f"s_mul_i32 s7, s{LW}, {14*16384}"); A("s_add_u32 s6, s6, s7")
    A("v_min_u32 v43, 13, v2"); A("v_lshlrev_b32 v43, 14, v43"); A("v_add_u32 v43, s6, v43")
    A(f"s_add_u32 s6, s{S_FB}, 3968"); A("v_mov_b32 v44, s6"); A("v_cmp_lt_u32 vcc, 31, v2"); A("s_nop 1"); A("v_cndmask_b32 v43, v43, v44, vcc")
    mod7(A, S_ROT, 2)
    for j in range(1, 4):
        A(f"s_cmp_eq_u32 s{S_J}, {j}"); A(f"s_cbranch_scc1 L_ld{j}")
    chk = SCHED["chk"]
    for j in range(4):
        A(f"L_ld{j}:")
        tab = make_table(j, cfg); pos = NSTATIC
        q = ["tab"] + [e["p"] for e in tab[:NSTATIC] for _ in range(4)]
        if cfg.fbar:
            assert [e["t"] for e in tab[:5]] == [e["t"] for e in make_table(0, cfg)[:5]]
            pos = 5; q = [e["p"] for e in tab[2:5] for _ in range(4)] + (["pf"] if cfg.cpf else []) + (["pf", "pf"] if cfg.kvt else [])
        rot_done = False; lastl = -100
        for k in range(1 if cfg.fbar else 0, NB):
            n = NSTATIC if k == 0 else (1 if (cfg.fbar and k == 1) else 0)
            def own(e): return not cfg.pf and e["t"][0] in ("K", "V") and (ATT.index(e["t"][:2]) & 3) == j
            while pos < len(tab) and tab[pos]["early"] <= k and (n < (cfg.first if k == 0 else 1) or (n < cfg.maxper and tab[pos]["late"] - k <= (cfg.la2q if k < 15 else (cfg.la2 if k < 78 else cfg.la2o))) or n < SCHED["boost"].get(k, 0) or tab[pos]["late"] <= k + 1):
                if cfg.hold and k in SCHED["hold"] and tab[pos]["late"] > k + 1 and tab[pos]["t"][0] not in ("QX", "OX"): break
                if not own(tab[pos]) and k <= lastl + cfg.pause and tab[pos]["late"] > k + cfg.minla: break
                if cfg.pairl and own(tab[pos]) and tab[pos]["t"][2] == 0 and tab[pos+1]["early"] > k and tab[pos]["late"] > k + cfg.minla + 1: break
                if own(tab[pos]): lastl = k
                if tab[pos]["t"][0] == "WO" and not rot_done:
                    A(f"s_mov_b32 s{RQ}, s{S_ROT}"); rot_table(A, 1, 7); rot_done = True
                if tab[pos]["t"] == ATT[4*cfg.wown + j] + (0,):
                    A(f"buffer_load_dword v11, v10, {srd(SRD_WO)}, s76 offen"); q.append("pf")
                    A(f"v_mov_b32 v{VSP}, 0"); A(f"global_load_dword v{VMX}, v{VSP}, s[0:1] sc1"); q.append("pf")
                    if cfg.cpf:
                        A("global_load_dword v11, v45, s[72:73]"); q.append("pf")
                    if cfg.tlb:
                        A(f"buffer_load_dword v11, v43, {srd(SRD_WS)}, 0 offen"); q.append("pf")
                        A(f"buffer_load_dword v11, v{VSP}, {srd(SRD_OUT)}, s{XB} offen"); q.append("pf")
                c = ld_emit(A, cfg, tab[pos], j); q += [tab[pos]["p"]] * c; pos += 1
                if c: n += 1
            if cfg.pf:
                for ai, t in enumerate(ATT):
                    if (ai & 3) == j and max(chk[P[t + (0,)]] - cfg.pfd, cfg.pf0 + (ai & 3) * cfg.pf) == k:
                        A(f"s_xor_b32 s6, s77, {t[1]*32768}"); A(f"buffer_load_dword v11, v40, {srd(SRD_K if t[0] == 'K' else SRD_V)}, s6 offen"); q.append("pf")
            for i_, kk_ in enumerate(pfk(cfg)):
                if kk_ == k:
                    t = ATT[4*i_ + j]
                    A(f"s_xor_b32 s6, s77, {t[1]*32768}"); A(f"buffer_load_dword v11, v40, {srd(SRD_K if t[0] == 'K' else SRD_V)}, s6 offen"); q.append("pf")
            need = [p for p in chk if chk[p] == k + 1] + (["tab"] if k == 0 else [])
            for p in need: assert p == "tab" or ITEMS[p][0] in ("QX", "OX") or p in [e["p"] for e in tab[:pos]], (j, k, p)
            last = max((i for i, t in enumerate(q) if t in need), default=-1)
            if cfg.stamps == 1 and k == 0: A(stamp(cfg, 4))
            if last >= 0:
                kk = len(q) - 1 - last; assert kk <= 63
                A(f"s_waitcnt vmcnt({kk})"); del q[:last+1]
            pass
            if cfg.trace:
                A("s_memtime s[66:67]"); A("s_waitcnt lgkmcnt(0)"); A(f"v_writelane_b32 v{100 + k//64}, s66, {k % 64}")
            A("s_barrier")
            if cfg.trace:
                A("s_memtime s[66:67]"); A("s_waitcnt lgkmcnt(0)"); A(f"v_writelane_b32 v{102 + k//64}, s66, {k % 64}")
        assert pos == len(tab)
        if cfg.trace:
            A(f"s_lshl_b32 s6, s2, 2"); A(f"s_add_u32 s6, s6, s{LW}"); A("s_lshl_b32 s6, s6, 10"); A(f"s_add_u32 s6, s6, {66<<20}"); A("v_lshlrev_b32 v104, 2, v2")
            for i in range(4): A(f"buffer_store_dword v{100+i}, v104, {srd(SRD_WS)}, s6 offen offset:{i*256}")
        A(f"s_mov_b32 s{S_G}, s{LW}")
        A("s_branch L_reduce")

def build_compute(cfg):
    L = []; A = L.append
    A("L_compute:")
    A(f"s_and_b32 s{S_QB}, s{S_W}, 1"); A(f"s_lshr_b32 s{S_KH}, s{S_W}, 1")
    A(f"s_mov_b32 s{S_C}, {f32(math.log2(math.e) / 16.0):#x}")
    A(f"s_lshl_b32 s{S_YB}, s{S_ROT}, 1"); A(f"s_add_u32 s{S_YB}, s{S_YB}, s{S_QB}")
    A(f"s_mul_i32 s{S_YB}, s{S_YB}, 28"); A(f"s_lshl_b32 s6, s{S_KH}, 1"); A(f"s_add_u32 s{S_YB}, s{S_YB}, s6"); A(f"s_lshl_b32 s{S_YB}, s{S_YB}, 4")
    A(f"s_add_u32 s{S_YB}, s{S_YB}, s{S_H}"); A(f"s_lshl_b32 s{S_YB}, s{S_YB}, 10")
    A("v_and_b32 v3, 15, v2"); A("v_lshrrev_b32 v4, 4, v2"); A("v_bfe_u32 v5, v2, 2, 2"); A("v_and_b32 v6, 3, v2"); A("v_lshlrev_b32 v6, 3, v6")
    VWQ, VXB, VQW, VQR = 51, 52, 53, 54
    A("v_lshrrev_b32 v7, 2, v2"); A(f"v_mul_u32_u24 v{VWQ}, {STQ}, v7"); A(f"s_lshl_b32 s6, s{S_KH}, 8"); A(f"v_lshl_add_u32 v{VWQ}, v6, 1, v{VWQ}"); A("v_and_b32 v9, 1, v4"); A(f"v_lshl_add_u32 v{VWQ}, v9, 3, v{VWQ}"); A(f"v_add_u32 v{VWQ}, s6, v{VWQ}")
    A("v_and_b32 v7, 7, v7"); A(f"v_mul_u32_u24 v{VVB}, {ST}, v7"); A("v_lshrrev_b32 v8, 5, v2"); A(f"v_lshl_add_u32 v{VVB}, v8, 8, v{VVB}")
    A(f"s_mul_i32 s6, s{S_KH}, {8*ST}"); A(f"v_add3_u32 v{VVB}, v{VVB}, v6, s6")
    A(f"v_mul_u32_u24 v{VKB}, {ST}, v3"); A(f"v_lshl_add_u32 v{VKB}, v4, 4, v{VKB}"); A(f"s_lshl_b32 s6, s{S_KH}, 9"); A(f"v_add_u32 v{VKB}, s6, v{VKB}")
    A("v_lshrrev_b32 v9, 1, v3"); A(f"v_mul_u32_u24 v{VXB}, {ST}, v9"); A("v_and_b32 v9, 1, v2"); A(f"v_lshl_add_u32 v{VXB}, v9, 7, v{VXB}"); A(f"v_lshl_add_u32 v{VXB}, v4, 4, v{VXB}")
    A(f"s_lshl_b32 s6, s{S_QB}, 9"); A(f"v_add_u32 v{VXB}, s6, v{VXB}")
    A(f"s_lshl_b32 s6, s{S_KH}, 13"); A(f"v_lshlrev_b32 v{VQW}, 4, v2"); A(f"v_add_u32 v{VQW}, s6, v{VQW}"); A(f"v_xor_b32 v{VQR}, 0x2000, v{VQW}")
    for r in range(128, 192, 2): A(f"v_mov_b64 v[{r}:{r+1}], 0")
    A(f"v_mov_b32 v{VLA}, 0"); A(f"v_mov_b32 v{VL0}, s{S_C}"); A(f"v_mov_b32 v{VL1}, s{S_C}")
    A("s_waitcnt lgkmcnt(0)")
    common_tail_setup(A, cfg)
    mod7(A, S_ROT, 2)
    A(f"s_add_u32 s6, s2, s{S_W}"); A("s_cmp_lg_u32 s6, 0"); A("s_cbranch_scc1 L_notag")
    A("s_memrealtime s[6:7]"); A("s_waitcnt lgkmcnt(0)"); A("s_or_b32 s6, s6, 1"); A("v_mov_b32 v9, s6")
    A(f"global_store_dword v{VLA}, v9, s[0:1] sc1")
    A("L_notag:")
    if cfg.prio: A(f"s_setprio {cfg.prio}")

    def xr(n): return 4 * (n % 16)
    def acc(ks, cb, u): return OA + ((ks*2 + cb)*2 + u) * 4
    M = []
    for tt in range(14):
        for dt in range(8): M.append(dict(ph="Q", tt=tt, dt=dt, item=("WQ", tt)))
    for t_ in ATT:
        for half in range(2):
            if t_[0] == "K":
                for k4 in range(4):
                    for kt in range(2): M.append(dict(ph="QK", j=t_[1], k4=k4, kt=kt, half=half, item=t_ + (half,)))
            else:
                for dt in range(8): M.append(dict(ph="PV", j=t_[1], dt=dt, half=half, item=t_ + (half,)))
    for c_ in range(7):
        for hh in range(2):
            for k4 in range(4):
                for nt in range(2): M.append(dict(ph="O", c=c_, hh=hh, k4=k4, nt=nt, item=("WO", c_, hh)))
    N = len(M); assert N == 736
    start = {}
    for n, m in enumerate(M): start.setdefault(m["item"], n)
    LA, FA = cfg.LA, cfg.FA
    fill = {n: [] for n in range(-1, N)}
    pre = {n: [] for n in range(-1, N)}
    post = {n: [] for n in range(-1, N)}
    tailf = {n: [] for n in range(-1, N)}
    a0 = start[("K", 0, 0)]; o0 = start[("WO", 0, 0)]
    hard = {0, o0}
    VWO, VST, VTA, VTB = VKB, VVB, 52, 53
    def tab_read(p, dst=VF, ar=VLA): return Op(f"ds_read_b32 v{dst}, v{ar} offset:@T{p*4}@", kind="lds", prod=("fl", p, dst))
    def need(ps, cons): return Op(f"; need", kind="use", cons=cons, prod=list(ps))
    def release(p): return Op(f"; free", kind="rel", prod=p)
    def cbar(): return [Op("s_waitcnt lgkmcnt(0)", kind="drain"), Op("s_barrier")]
    basereg = {"WQ": VWQ, "K": VKB, "V": VVB, "WO": VWO}
    pat = []
    for ln in cfg.pat.split("_"): pat += list(range(int(ln)))
    assert len(pat) == 32
    buf = [pat[(n - a0 - 16) % 32] for n in range(N)]
    xbuf = {}
    for k in range(4):
        xbuf[a0 + 4 + k] = S1 + 4*k; xbuf[o0 - 4 + k] = S0 + 4*k
        buf[a0 + 4 + k] = 10 + k; buf[o0 - 4 + k] = 20 + k
    def freg(n): return xbuf.get(n, FR + 4 * buf[n])
    prevu = {}
    lastu = {}
    for n in range(N):
        prevu[n] = lastu.get(buf[n], -10); lastu[buf[n]] = n
    def lo_gap(n): return max(h for h in hard if h <= n) - 1
    def read_gap(n):
        lo = lo_gap(n)
        return max(n - (8 if n in xbuf else LA), lo, prevu[n])
    for t in ITEMS:
        if t not in start: continue
        s = start[t]; g = read_gap(s); gf = max(g - FA, lo_gap(s) + (0 if s in hard else 1)); p = P[t]
        nd = [p]; rl = [p]; vf = VF
        if t[0] == "WO":
            p0 = P[("WO", t[1], 0)]
            tr = tab_read(p0, VF, VTA if t[2] == 0 else VTB); tr.prod = ("fl", p, VF); tr.text = tr.text.replace("@T", "").replace("@", "")
            nd = [p0, p0 + 1] if t[2] == 0 else []
            rl = [p0, p0 + 1] if t[2] == 1 else []
        elif t[0] in ("K", "V"):
            assert P[t[:2] + (0,)] % 2 == 0
            if t[2] == 0: tr = Op(f"ds_read_b64 v[{VF}:{VF+1}], v{VLA} offset:@T{p*4}@", kind="lds", prod=("fl", p, VF))
            else: tr = None; vf = VF + 1
        else: tr = tab_read(p)
        if tr: (post if gf == g else fill)[gf].append(tr)
        post[g] += ([] if s in hard else [Op("s_barrier")]) + [need(nd, [("fl", p, VF)]), Op(f"v_add_u32 v{VA}, v{vf}, v{basereg[t[0]]}")]
        tailf[s + 7] += [release(x) for x in rl]
    for i in range(4):
        s = start[("WQ", 4*i)]; p = P[("X", i)]
        ops = [tab_read(p, VT0), need([p], [("fl", p, VT0)]), Op(f"v_add_u32 v{VT0}, v{VT0}, v{VXB}")]
        rds = []
        for k in range(8 if i < 3 else 4):
            tl, cb = k >> 1, k & 1
            r = xr(8*i + k)
            rds.append(Op(f"ds_read_b128 a[{r}:{r+3}], v{VT0} offset:{(tl>>1)*8*ST + cb*256 + (tl&1)*64}", kind="lds", prod=("X", 8*i+k)))
        if i == 0:
            pre[-1] += [Op("s_barrier")] + ops + rds[:2]
            fill[-1] += rds[2:]
            fill[5].append(release(p))
        else:
            fill[s - 15].append(ops[0]); fill[s - 12] += ops[1:]
            for k, r in enumerate(rds): fill[s - 12 + k // 2].append(r)
            fill[s - 2].append(release(p))
    def Sreg(j): return S0 if j % 2 == 0 else S1
    def spread(ops, a, b):
        k = b - a
        w = [2 if o.text.startswith("v_exp") else 1 for o in ops]; tot = sum(w); c = 0
        for o, wi in zip(ops, w):
            fill[a + (c * k) // tot].append(o); c += wi
    def max_cb(s, r0, r1):
        o = []
        for k in range(4):
            for cb, r in ((0, r0), (1, r1)):
                b = s + 8*cb
                o.append([f"v_max3_f32 v{r}, v{b}, v{b+1}, v{b+2}", f"v_max3_f32 v{r}, v{r}, v{b+3}, v{b+4}", f"v_max3_f32 v{r}, v{r}, v{b+5}, v{b+6}", f"v_max_f32 v{r}, v{r}, v{b+7}"][k])
        return o
    def step_ops(j):
        s = Sreg(j); t0 = Sreg(j+1) + 8; t1 = t0 + 1; L_ = []
        def add(txt, deps): L_.append((Op(txt), deps)); return len(L_) - 1
        a = add(f"v_max3_f32 v{t0}, v{s}, v{s+1}, v{s+2}", []); b = add(f"v_max3_f32 v{t1}, v{s+8}, v{s+9}, v{s+10}", [a])
        a = add(f"v_max3_f32 v{t0}, v{t0}, v{s+3}, v{s+11}", [b]); b = add(f"v_max3_f32 v{t1}, v{t1}, v{s+4}, v{s+5}", [a])
        a = add(f"v_max3_f32 v{t0}, v{t0}, v{s+6}, v{s+7}", [b]); b = add(f"v_max3_f32 v{t1}, v{t1}, v{s+12}, v{s+13}", [a])
        a = add(f"v_max3_f32 v{t0}, v{t0}, v{s+14}, v{s+15}", [b]); a = add(f"v_max_f32 v{t0}, v{t0}, v{t1}", [a])
        a = add(f"v_cmp_lt_f32 vcc, s{S_T}, v{t0}", [a]); br = add(f"s_cbranch_vccnz L_ra_@{j-1}@\nL_rab_@{j-1}@:", [a])
        ex = {}; ad = {}; cv = {}
        for r in range(16): ex[r] = add(f"v_exp_f32 v{s+r}, v{s+r}", [br] + ([ex[r-1]] if r else []))
        for r in range(16):
            ad[r] = add(f"v_add_f32 v{VL0 + r//8}, v{VL0 + r//8}, v{s+r}", [ex[r]] + ([ad[r-1]] if r else []))
            if r % 2: cv[r//2] = add(f"v_cvt_pk_bf16_f32 v{s + r//2}, v{s+r-1}, v{s+r}", [ex[r], ad[r//2]] + ([cv[r//2-1]] if r > 1 else []))
        return L_
    def xlane(op, regs, tmp):
        o = []
        for sw in ("v_permlane16_swap_b32", "v_permlane32_swap_b32"):
            for r, t in zip(regs, tmp): o.append(f"v_mov_b32 v{t}, v{r}")
            o.append("s_nop 1")
            for r, t in zip(regs, tmp): o.append(f"{sw} v{t}, v{r}")
            o.append("s_nop 1")
            for r, t in zip(regs, tmp): o.append(f"{op} v{r}, v{r}, v{t}")
        return o
    e = a0 - 1; pq = P[("QX", 0)]
    fill[e - 4] += [Op(f"s_lshl_b32 s6, s{S_QB}, 2"), Op(f"v_mov_b32 v{VMX}, s6")]
    fill[e - 3].append(tab_read(pq, VT0, VMX))
    fill[e - 1] += [need([pq, pq+1], [("fl", pq, VT0)]), Op(f"v_add_u32 v{VQW}, v{VT0}, v{VQW}"), Op(f"v_add_u32 v{VQR}, v{VT0}, v{VQR}")]
    qx = [Op("; HOLD")]
    def qpack(f):
        r = OA + 8*f; d = OA + 4*f
        return [Op(f"v_pk_mul_f32 v[{r+k}:{r+k+1}], v[{r+k}:{r+k+1}], v[{VL0}:{VL1}]") for k in (0, 2, 4, 6)] + \
               [Op(f"v_cvt_pk_bf16_f32 v{d+k}, v{r+2*k}, v{r+2*k+1}") for k in range(4)] + \
               [Op(f"ds_write_b128 v{VQW}, v[{d}:{d+3}] offset:{f*1024}", kind="lds", prod=("wq",))]
    for f in range(8): qx += qpack(f)
    tailf[e] += qx + [Op("s_nop 0")]
    g2 = read_gap(a0 + 8)
    bi = [i for i, o in enumerate(post[g2]) if o.text == "s_barrier"][0]
    post[g2].insert(bi, Op("; wq done", kind="use", cons=[("wq",)]))
    post[g2].insert(bi + 2, Op("; BOOST"))
    qr = [Op(f"ds_read_b128 a[{QF+4*s}:{QF+4*s+3}], v{VQR if s >= 8 else VQW} offset:{(s%8)*1024}", kind="lds", prod=("Q", s)) for s in list(range(8, 16)) + list(range(8))]
    post[g2] += qr[:2]
    for k in range(2, 16): fill[g2 + k // 2].append(qr[k])
    spread([Op(f"v_mov_b64 v[{r}:{r+1}], 0") for r in range(96, 128, 2)], a0, a0 + 4)
    spread([Op(f"v_mov_b64 v[{r}:{r+1}], 0") for r in range(64, 96, 2)], a0 + 8, a0 + 16)
    tailf[a0 + 15] += [Op("; q all", kind="use", cons=[("Q", s) for s in range(16)]), release(pq), release(pq + 1)]
    im = ["s_nop 7"] + max_cb(S0, NM, NM+4) + xlane("v_max_f32", (NM, NM+4), (VL0, VL1))
    im += [f"v_sub_f32 v{S0+r}, v{S0+r}, v{NM + 4*(r//8)}" for r in range(16)]
    im += [f"v_sub_f32 v{NM+4*cb+k}, 0, v{NM+4*cb}" for cb in range(2) for k in (3, 2, 1, 0)] + [f"v_mov_b32 v{VL0}, 0", f"v_mov_b32 v{VL1}, 0"]
    for j in range(15):
        pvs = start[("V", j, 0)]
        tailf[pvs + 15] += [Op(f"s_cbranch_vccnz L_rb_@{j}@"), Op(f"L_rbb_@{j}@:"), Op(f"; STEP {j+1}")]
    e = o0 - 1; po = P[("OX", 0)]
    pv = start[("V", 15, 0)]
    T = S1 + 8; WA, RA, FO = 49, 50, 52
    KP = OA + 64
    tailf[pv - 1] += []
    pre_ml = [Op(x) for x in xlane("v_add_f32", (VL0, VL1), (T, T+1))]
    pre_ml += [Op(f"v_mbcnt_lo_u32_b32 v{T+2}, -1, 0"), Op(f"v_mbcnt_hi_u32_b32 v{T+2}, -1, v{T+2}"), Op(f"v_mov_b32 v54, v{NM}"), Op(f"v_lshlrev_b32 v51, 4, v{T+2}"),
               Op(f"s_lshl_b32 s6, s{S_W}, 10"), Op(f"s_add_u32 s6, s6, {MLX}"), Op(f"v_add_u32 v{T+3}, s6, v51"), Op("; HOLD"),
               Op(f"ds_write_b128 v{T+3}, v[54:57]", kind="lds", prod=("wm",)),
               Op(f"s_xor_b32 s7, s{S_W}, 2"), Op("s_lshl_b32 s7, s7, 10"), Op(f"s_add_u32 s7, s7, {MLX}"), Op(f"v_add_u32 v{T+3}, s7, v51"),
               Op(f"s_lshl_b32 s6, s{S_QB}, 2"), Op(f"v_mov_b32 v{WA}, s6"), Op(f"ds_read_b32 v{WA}, v{WA} offset:{po*4}", kind="lds", prod=("fl", po, WA))]
    spread(pre_ml, pv, pv + 3)
    spread([Op(f"v_bfe_u32 v{T}, v{T+2}, 2, 3"), Op(f"v_mul_u32_u24 v{VWO}, {ST}, v{T}"), Op(f"v_lshrrev_b32 v{T}, 5, v{T+2}"), Op(f"v_lshl_add_u32 v{VWO}, v{T}, 7, v{VWO}"),
            Op(f"v_and_b32 v{T}, 3, v{T+2}"), Op(f"v_lshl_add_u32 v{VWO}, v{T}, 3, v{VWO}"), Op(f"s_lshl_b32 s6, s{S_KH}, 6"), Op(f"v_add_u32 v{VWO}, s6, v{VWO}")], pv + 3, pv + 4)
    g1 = read_gap(pv + 8)
    bi = [i for i, o in enumerate(post[g1]) if o.text == "s_barrier"][0]
    post[g1].insert(bi, Op("; wm done", kind="use", cons=[("wm",)]))
    post[g1] += [Op(f"ds_read_b128 v[{T+4}:{T+7}], v{T+3}", kind="lds", prod=("ml",)), Op(f"v_mov_b32 v{VST}, v51")]
    fac = [need([po, po+1], [("fl", po, WA)]), Op(f"s_lshl_b32 s6, s{S_KH}, 13"), Op("s_xor_b32 s7, s6, 0x2000"),
           Op(f"v_add3_u32 v{RA}, v{WA}, v{VST}, s7"), Op(f"v_add3_u32 v{WA}, v{WA}, v{VST}, s6")]
    for cb in range(2):
        fo = T + cb
        fac += [Op(f"v_min_f32 v{T+2}, v{T+4+cb}, v{54+cb}", kind="use", cons=[("ml",)]), Op(f"v_sub_f32 v{fo}, v{T+2}, v{54+cb}"), Op(f"v_sub_f32 v{T+4+cb}, v{T+2}, v{T+4+cb}"),
                Op(f"v_exp_f32 v{fo}, v{fo}"), Op(f"v_exp_f32 v{T+4+cb}, v{T+4+cb}"), Op("s_nop 0"),
                Op(f"v_mul_f32 v{T+2}, v{VL0+cb}, v{fo}"), Op(f"v_fmac_f32 v{T+2}, v{T+6+cb}, v{T+4+cb}"), Op(f"v_rcp_f32 v{T+2}, v{T+2}"), Op("s_nop 0"),
                Op(f"v_mul_f32 v{fo}, v{fo}, v{T+2}")]
    fac += [Op(f"v_mov_b32 v54, v{T}"), Op(f"v_mov_b32 v56, v{T+1}"), Op(f"s_lshl_b32 s6, s{S_KH}, 2"), Op(f"v_mov_b32 v{VTA}, s6"), Op(f"v_xor_b32 v{VTB}, 4, v{VTA}")]
    spread(fac, g1 + 2, pv + 9)
    snd = [Op("; HOLD")]
    for f in range(8):
        r = OA + 8*f; d = OA + 4*f; cb = f & 1
        snd += [Op(f"v_mul_f32 v{r+k}, v{r+k}, v{54+2*cb}") for k in range(8)] + [Op(f"v_cvt_pk_bf16_f32 v{d+k}, v{r+2*k}, v{r+2*k+1}") for k in range(4)]
        snd.append(Op(f"ds_write_b128 v{WA}, v[{d}:{d+3}] offset:{f*1024}", kind="lds", prod=("w",)))
    spread(snd, pv + 9, e + 1)
    ox = [Op("v_mov_b32 v51, 0"), Op(f"global_load_dword v{VMX}, v51, s[0:1] sc1"), Op(f"s_mov_b32 s{S_G}, s{S_ROT}")] + cbar() + [Op("; BOOST1")]
    RC = OA + 32
    for f in range(8):
        ox.append(Op(f"ds_read_b128 v[{RC+4*f}:{RC+4*f+3}], v{RA} offset:{f*1024}", kind="lds", prod=("o", f)))
    ox2 = []
    for f in range(8):
        cb = f & 1; r = KP + 8*f
        for k in range(4):
            t_ = S0 + 2*((4*f + k) % 8)
            ox2 += [Op(f"v_lshlrev_b32 v{t_}, 16, v{RC+4*f+k}", kind="use", cons=[("o", f)]), Op(f"v_and_b32 v{t_+1}, 0xffff0000, v{RC+4*f+k}")]
        for k in range(4):
            t_ = S0 + 2*((4*f + k) % 8)
            ox2.append(Op(f"v_pk_fma_f32 v[{r+2*k}:{r+2*k+1}], v[{r+2*k}:{r+2*k+1}], v[{54+2*cb}:{55+2*cb}], v[{t_}:{t_+1}] op_sel_hi:[1,0,1]"))
        ox2 += [Op(f"v_cvt_pk_bf16_f32 v{OA+4*f+k}, v{r+2*k}, v{r+2*k+1}") for k in range(4)]
        ox2.append(Op(f"ds_write_b128 v{RA}, v[{OA+4*f}:{OA+4*f+3}] offset:{f*1024}", kind="lds", prod=("w2",)))
    ox2 += [Op("s_nop 1")]
    pre[e] = tailf[e] + fill[e] + ox; fill[e] = ox2; tailf[e] = []
    g2 = read_gap(o0 + 8)
    bi = [i for i, o in enumerate(post[g2]) if o.text == "s_barrier"][0]
    post[g2].insert(bi, Op("; w2", kind="use", cons=[("w2",)]))
    post[g2] += [Op(f"ds_read_b128 a[{4*s}:{4*s+3}], v{WA} offset:{s*1024}", kind="lds", prod=("Of", s)) for s in range(8)] + [Op(f"v_mov_b32 v{VSP}, 0")]
    fill[o0 + 9] += [release(po), release(po + 1)]
    def Y(c_, cb, nt): return OA + 64 + 16 * (c_ & 1) + 8*cb + 4*nt
    nst = [1]
    stq = []
    def flag_ops(c_):
        if cfg.two == 1 and c_ not in (3, 6): return []
        if cfg.two == 2 and c_ != 6: return []
        k = len(stq) - 1 - max(i for i, x in enumerate(stq) if x == c_)
        stq.append("f")
        return [Op(f"s_add_u32 s46, s{S_LC}, {c_ << (2 + max(7, 4 + cfg.fsh))}"), Op(f"s_waitcnt vmcnt({k})"), Op(f"buffer_store_dword v{VMX}, v{VSP}, {srd(SRD_WS)}, s46 offen sc1")]
    TG = 32 << 20
    def ystore(c_):
        if c_ >= cfg.tagc:
            d = S0 + 12 * (c_ & 1) if False else (96 + 12 * (c_ & 1))
            y = Y(c_, 0, 0); parts = []
            for gi in range(3):
                seq = []
                for k in range(3):
                    w_ = 3*gi + k
                    if w_ < 8: seq.append(Op(f"v_cvt_pk_bf16_f32 v{d+4*gi+k}, v{y+2*w_}, v{y+2*w_+1}"))
                if gi == 0: seq.append(Op(f"s_add_u32 s{S_T2}, s45, {(c_ - cfg.tagc) << 18}"))
                seq.append(Op(f"buffer_store_dwordx4 v[{d+4*gi}:{d+4*gi+3}], v{VST}, {srd(SRD_WS)}, s{S_T2} offen offset:{gi*1024} sc1")); stq.append(c_)
                parts.append(seq)
            parts.append([Op(f"buffer_store_dword v{VMX}, v{VSP}, {srd(SRD_WS)}, s{S_LC} offen offset:{c_*512} sc1")]); stq.append("f")
            return parts, []
        parts = []
        for cb in range(2):
            seq = [Op(f"s_lshl_b32 s{S_T2}, s{S_G}, 16"), Op(f"s_add_u32 s{S_T2}, s{S_T2}, s{S_YB}")] if cb == 0 else [Op(f"s_add_u32 s{S_T2}, s{S_T2}, 16384")]
            d = S1 + 4 * cb + 8 * (c_ & 1); y = Y(c_, cb, 0)
            for i in range(4): seq.append(Op(f"v_cvt_pk_bf16_f32 v{d+i}, v{y+2*i}, v{y+2*i+1}"))
            if cfg.halfst and cb == 1: seq.append(Op(f"buffer_store_dword v{d}, v{VSP}, {srd(SRD_WS)}, s{S_T2} offen sc1"))
            else: seq.append(Op(f"buffer_store_dwordx4 v[{d}:{d+3}], v{VST}, {srd(SRD_WS)}, s{S_T2} offen {cfg.stfl.replace('_', ' ')}"))
            stq.append(c_)
            parts.append(seq)
        return parts, [Op(f"s_add_u32 s{S_G}, s{S_G}, 1"), Op(f"s_cmp_eq_u32 s{S_G}, 7"), Op(f"s_cselect_b32 s{S_G}, 0, s{S_G}")]
    sigd = 0
    tl = []; tag_loop(tl.append, "c")
    tailf[o0 + 14] += [Op(f"s_lshl_b32 s{S_LC}, s{S_W}, {max(7, 4 + cfg.fsh)}"), Op(f"s_lshl_b32 s7, s{S_H}, {cfg.fsh}"), Op(f"s_add_u32 s{S_LC}, s{S_LC}, s7"), Op(f"s_add_u32 s{S_LC}, s{S_LC}, s{S_FB}"), Op("s_waitcnt vmcnt(0)")] + [Op(x) for x in tl]
    spread([Op(f"v_mov_b32 v{96+4*g_+3}, v{VMX}") for g_ in range(6)] +
           [Op(f"s_sub_u32 s45, s{S_FB}, {FLAG_BASE}"), Op("s_lshl_b32 s45, s45, 8"), Op(f"s_lshl_b32 s7, s{S_W}, 16"), Op("s_add_u32 s45, s45, s7"), Op(f"s_lshl_b32 s7, s{S_H}, 12"), Op("s_add_u32 s45, s45, s7"), Op(f"s_add_u32 s45, s45, {TG}")], o0 + 21, o0 + 27)
    for c_ in range(7):
        parts, inc = ystore(c_)
        if c_ < 6:
            st = start[("WO", c_+1, 0)]
            if cfg.stpos == 0: spread([o for p_ in parts for o in p_], st + 3, st + 10)
            else:
                spread(parts[0][:-1], st + 2, st + 4); tailf[st + 3].append(parts[0][-1])
                rest = [o for p_ in parts[1:] for o in p_[:-1]]
                spread(rest, st + 5, st + 10); tailf[st + 11] += [p_[-1] for p_ in parts[1:]]
            fill[st + 13] += inc
            if 0 <= c_ - cfg.sigl < cfg.tagc:
                tailf[st + 11] += flag_ops(c_ - cfg.sigl); sigd = c_ - cfg.sigl + 1
        else:
            tailf[N-1] += [Op("s_nop 7")] + [o for p_ in parts for o in p_]
            for c2 in range(sigd, min(7, cfg.tagc)): tailf[N-1] += flag_ops(c2)

    def reads_for(n):
        m = M[n]; ops = []; fr = freg(n)
        if m["ph"] == "QK":
            return [Op(f"ds_read_b128 v[{fr}:{fr+3}], v{VA} offset:{m['kt']*256 + m['k4']*64}", kind="lds", prod=("F", n))]
        for hh in range(2):
            if m["ph"] == "Q": off = hh*512 + (m["dt"] >> 1)*64 + (m["dt"] & 1)*8
            elif m["ph"] == "PV": off = hh*512 + m["dt"]*32
            else: off = (m["k4"] >> 1)*8*ST + ((m["k4"] & 1)*4 + 2*hh)*128 + m["nt"]*32
            ops.append(Op(f"ds_read_b64_tr_b16 v[{fr+2*hh}:{fr+2*hh+1}], v{VA} offset:{off}", kind="lds", prod=("F", n)))
        return ops
    def mfma(n, cb):
        m = M[n]; fr = freg(n); cons = [("F", n)]; z = False
        if m["ph"] == "Q":
            d = acc(m["dt"] >> 1, cb, m["dt"] & 1); xn = 2*m["tt"] + cb; cons.append(("X", xn)); b = f"a[{xr(xn)}:{xr(xn)+3}]"; z = m["tt"] == 0
        elif m["ph"] == "QK":
            d = Sreg(m["j"]) + 8*cb + 4*m["kt"]; f = (4*m["half"] + m["k4"])*2 + cb; cons.append(("Q", f)); b = f"a[{QF+4*f}:{QF+4*f+3}]"; z = m["half"] == 0 and m["k4"] == 0
            if m["j"] == 0 and m["half"] == 0: b = f"v[{OA+4*f}:{OA+4*f+3}]"; cons.pop()
            if z and m["j"] > 0: z = f"v[{NM+4*cb}:{NM+4*cb+3}]"
        elif m["ph"] == "PV":
            d = acc(4*m["half"] + (m["dt"] >> 1), cb, m["dt"] & 1); p = Sreg(m["j"]) + 4*cb; b = f"v[{p}:{p+3}]"
        else:
            d = Y(m["c"], cb, m["nt"]); f = m["k4"]*2 + cb; z = m["hh"] == 0 and m["k4"] == 0
            if m["hh"] == 0: b = f"v[{OA+4*f}:{OA+4*f+3}]"
            else: b = f"a[{4*f}:{4*f+3}]"; cons.append(("Of", f))
        if cfg.w2 and cb == 0 and n % 2 == 0 and n + 1 < N and read_gap(n + 1) < n: cons.append(("F", n + 1))
        dd = f"v[{d}:{d+3}]"
        return Op(f"v_mfma_f32_16x16x32_bf16 {dd}, v[{fr}:{fr+3}], {b}, {z if isinstance(z, str) else ('0' if z else dd)}", kind="use", cons=cons)
    rd = {}
    for n in range(N): rd.setdefault(read_gap(n), []).append(n)
    stamp_at = [-1, 0, 64, 110, 111, a0+15, None, None, None, o0-2, o0-1, N-2, N-1] if cfg.fold else [-1, 0, 64, 110, 111, a0+15, a0+16+128, a0+16+256, a0+16+384, o0-2, o0-1, N-2, N-1]
    def wt(o): return 0 if o.text.startswith((";", "L_")) else (2 if o.text.startswith("v_exp") else 1)
    def haswait(n): return not (cfg.w2 and n % 2 == 1 and read_gap(n) < n - 1)
    half = {}
    carry = []
    for g in range(-1, N):
        r_ = [o for n in rd.get(g, []) for o in reads_for(n)]
        if g == o0 - 1 and cfg.woe:
            half[2*(g-3)+1].append(post[g][0])
            half[2*g] = carry + post[g][1:] + r_; half[2*g+1] = pre[g] + fill[g]; carry = []; continue
        if g < 0 or pre[g]:
            half[2*g] = carry; half[2*g+1] = pre[g] + post[g] + r_ + fill[g]; carry = []; continue
        h0 = carry + post[g]; h1 = r_[:(len(r_)+1)//2]; carry = r_[(len(r_)+1)//2:]
        if g == a0 - 1: h1 += carry; carry = []
        w1 = (1 if g + 1 < N and haswait(g + 1) else 0) + sum(wt(o) for o in tailf[g])
        fl_ = list(fill[g]); tot = sum(wt(o) for o in h0 + h1 + fl_) + w1
        while fl_ and sum(wt(o) for o in h0) + wt(fl_[0]) <= (tot + 1) // 2: h0.append(fl_.pop(0))
        half[2*g] = h0; half[2*g+1] = h1 + fl_
    def fixed(h):
        w = sum(wt(o) for o in half[h])
        if h & 1: w += sum(wt(o) for o in tailf[h >> 1]) + (1 if haswait((h >> 1) + 1) else 0)
        return w
    def sched(L_, a, b, dl):
        fx = [fixed(h) for h in range(a, b)]
        late = [k for k, (o, d) in enumerate(L_) if o.text.startswith("v_add") and int(o.text.split("v")[-1]) % 16 >= cfg.defer]
        free = sum(max(0, 2 - f) for f in fx[:dl]); tot = sum(wt(o) for k, (o, _) in enumerate(L_) if k not in late)
        over = max(0, tot - free)
        done = {}; asg = []; used_over = 0.0; lastop = None
        for hi, f in enumerate(fx):
            cap = 2 - f
            budget = over * (hi + 1) / dl * cfg.ovf - used_over
            while True:
                rdy = [k for k, (o, d) in enumerate(L_) if k not in done and all(x in done for x in d) and not (lastop in d and L_[lastop][0].text.startswith("v_exp") and done[lastop] == hi)]
                if hi < dl: rdy = [k for k in rdy if k not in late]
                fit = [k for k in rdy if wt(L_[k][0]) <= cap]
                if fit:
                    k = max(fit, key=lambda k: (wt(L_[k][0]), -k))
                else:
                    fit = [k for k in rdy if (wt(L_[k][0]) - max(cap, 0) <= budget + 1e-9 and cap > -1) or cap == 1]
                    if not fit: break
                    k = min(fit, key=lambda k: (wt(L_[k][0]) - max(cap, 0), -wt(L_[k][0]), k))
                    o_ = wt(L_[k][0]) - max(cap, 0); used_over += o_; budget -= o_
                cap -= wt(L_[k][0]); done[k] = hi; asg.append((k, hi)); lastop = k
        rest = [k for k in range(len(L_)) if k not in done]
        assert all(k in late for k in rest), rest
        assert all(h < dl for k, h in asg if k not in late)
        asg += [(k, b - a - 1) for k in rest]
        SCHED["info"] = (tot, free, over, len(rest), [f + sum(wt(L_[k][0]) for k, h in asg if h == hi) for hi, f in enumerate(fx)])
        return asg
    pv4 = start[("V", 4, 0)]
    A0 = 3
    asg = sched(step_ops(5), 2*pv4 + A0, 2*pv4 + A0 + 64, 64 - A0 - 2)
    bnd = 32 - A0
    for j in range(16):
        L_ = step_ops(j)
        a = 2*(start[("V", j-1, 0)] if j > 0 else a0) + A0
        early0 = []
        for k, r in asg:
            o = L_[k][0]
            if j == 0 and r < bnd:
                if k >= 10: early0.append(o)
            elif j == 15 and r >= bnd: early0.append(o)
            else:
                assert not (j == 0 and k < 10)
                half[a + r].append(o)
        early0 = [o for o in early0 if o.text.startswith("v_exp")] + [Op("s_nop 0")] + [o for o in early0 if not o.text.startswith("v_exp")]
        if j == 15: tailf[start[("V", 15, 0)] - 1] += early0
        if j == 0: tailf[a0 + 15] += [Op(x) for x in im] + early0 + [Op("s_nop 1"), Op("; STEP 0")]
    tailf[start[("V", 15, 0)] - 1].append(Op("s_nop 1"))
    ops = []
    for g in range(-1, N):
        if g >= 0: ops += [mfma(g, 0)] + half[2*g] + [mfma(g, 1)] + half[2*g+1]
        else: ops += half[2*g+1]
        if cfg.stamps and g in stamp_at:
            tl_ = [Op(stamp(cfg, 1 + stamp_at.index(g))), Op("s_waitcnt lgkmcnt(0)")]
            if g == a0 + 15: ops += tl_ + tailf[g]
            else: ops += tailf[g] + tl_
        else: ops += tailf[g]
    nb = 0; relbar = {}; chkbar = {}; hold = set(); boost = {}
    for o in ops:
        if o.text == "; need":
            for p_ in o.prod: chkbar.setdefault(p_, nb)
        if o.kind == "rel": relbar[o.prod] = nb + 1
        if o.text == "; HOLD": hold.add(nb)
        if o.text == "; BOOST": boost.update({nb + i_: int(x) for i_, x in enumerate(cfg.bst.split("_"))})
        if o.text == "; BOOST1":
            boost[nb] = cfg.b1
            if cfg.b1 == 0: hold.add(nb)
        if o.text == "s_barrier": nb += 1
    SCHED.update(rel=relbar, chk=chkbar, nbar=nb, hold=hold, boost=boost)
    txt = []; q = []
    for o in ops:
        if o.kind == "lds":
            if len(q) >= 15:
                txt.append("s_waitcnt lgkmcnt(10)"); q = q[-10:]
            q.append(o.prod)
        elif o.kind == "use":
            last = max((i for i, t in enumerate(q) if t in o.cons), default=-1)
            if last >= 0:
                txt.append(f"s_waitcnt lgkmcnt({len(q) - 1 - last})"); q = q[last+1:]
        elif o.kind == "drain": q = []
        if not o.text.startswith(";") or o.text.startswith("; STEP"): txt.append(o.text)
    A(f"s_mov_b32 s{S_T}, {f32(cfg.thr):#x}")
    js = list(range(15))
    def fin(lines, toff=0): return [re.sub(r"@(\d+)@", r"\1", re.sub(r"@T(\d+)@", lambda m_: str(int(m_.group(1)) - toff), x)) for x in lines]
    if cfg.fold:
        pos = {int(x.split()[2]): i for i, x in enumerate(txt) if x.startswith("; STEP")}
        def norm(a, b, it):
            o = []
            for x in txt[pos[a]+1:pos[b]]:
                if x.startswith("; STEP"): continue
                x = re.sub(r"@T(\d+)@", lambda m_: "@T%d@" % (int(m_.group(1)) - 32*it), x)
                x = re.sub(r"_@(\d+)@", lambda m_: "_@%d@" % (int(m_.group(1)) - 2*it), x)
                o.append(x)
            return o
        f0 = cfg.f0; nit = (14 - f0) // 2
        body = norm(f0, f0 + 2, 0)
        for it in range(1, nit):
            b2 = norm(f0 + 2*it, f0 + 2*it + 2, it)
            assert b2 == body, (it, [(x, y) for x, y in zip(body, b2) if x != y][:5])
        for x in fin(txt[:pos[f0]]): A(x)
        A(f"s_mov_b32 s{S_LC}, {nit}")
        A(".p2align 6")
        A("L_attn:")
        lt = max(i for i, x in enumerate(body) if "@T" in x)
        body = body[:lt+1] + [f"v_add_u32 v{VLA}, 32, v{VLA}"] + body[lt+1:]
        dr = tuple(d.replace("-", "_") for d in cfg.drop.split("_") if d)
        if dr:
            body = [x for x in body if not x.startswith(dr)]; body = ["s_mov_b64 vcc, 0" if x.startswith("s_or_b64") else x for x in body]
        for x in fin(body): A(x)
        A(f"s_sub_u32 s{S_LC}, s{S_LC}, 1"); A(f"s_cmp_lg_u32 s{S_LC}, 0"); A("s_cbranch_scc1 L_attn")
        for x in fin(txt[pos[f0 + 2*nit]:], 32*nit): A(x)
        js = list(range(f0 + 2)) + list(range(f0 + 2*nit, 15))
    else:
        for x in fin(txt): A(x)
    A(f"s_add_u32 s{S_G}, s{S_W}, 4"); A(f"s_cmp_eq_u32 s{S_W}, 3"); A("s_cbranch_scc1 L_fin")
    if cfg.tagc < 7:
        assert cfg.tagc == 4
        gen_reduce_tagged(A, cfg)
    gen_reduce(A, cfg)
    for j in js:
        A(f"L_ra_{j}:"); A(f"s_call_b64 s[{S_RET}:{S_RET+1}], L_resa{j % 2}"); A(f"s_branch L_rab_{j}")
        A(f"L_rb_{j}:"); A(f"s_call_b64 s[{S_RET}:{S_RET+1}], L_resb{j % 2}"); A(f"s_branch L_rbb_{j}")
    for par in range(2):
        sn = Sreg(par + 1); t0 = Sreg(par) + 8
        A(f"L_resa{par}:")
        for x in max_cb(sn, t0, t0+1) + xlane("v_max_f32", (t0, t0+1), (t0+2, t0+3)): A(x)
        for cb in range(2):
            A(f"v_max_f32 v{t0+cb}, 0, v{t0+cb}")
            for r in range(8): A(f"v_sub_f32 v{sn+8*cb+r}, v{sn+8*cb+r}, v{t0+cb}")
            for k in range(4): A(f"v_sub_f32 v{NM+4*cb+k}, v{NM+4*cb+k}, v{t0+cb}")
            A(f"v_exp_f32 v{t0+cb}, -v{t0+cb}"); A("s_nop 0"); A(f"v_mul_f32 v{VL0+cb}, v{VL0+cb}, v{t0+cb}")
        A(f"s_setpc_b64 s[{S_RET}:{S_RET+1}]")
        A(f"L_resb{par}:")
        A("s_nop 7")
        for r in range(128): A(f"v_mul_f32 v{OA+r}, v{OA+r}, v{t0 + ((r >> 3) & 1)}")
        A("s_nop 1"); A(f"s_setpc_b64 s[{S_RET}:{S_RET+1}]")
    return L

DOC = """
Fused GQA block (generated by the author's own script tools/gen9.py): Q-projection, online-softmax attention, output projection
and the cross-head reduction in one launch.  One workgroup per CU = (batch, head, 64 query rows).
 waves 0-3: compute, wave = (32-row block, key half); 16x16x32 bf16 MFMA on transposed tiles (S^T = K Q^T, O^T = V^T P^T, Y^T = Wo^T O^T)
 waves 4-7: loaders, LDS-DMA of x / Wq / K / V / Wo tiles into 9 padded LDS slots, paced by one barrier per 16 KiB tile
 softmax: running row max kept as the MFMA C-initialiser, rescale taken when a block exceeds it by 2^8 (rare path subroutines)
 the 4 workgroups that share one K/V head take turns fetching tiles first (L2 locality only, no correctness dependence)
 per-head bf16 partial outputs go write-through to d_ws, launch-tagged flags hand them to the 16 workgroups that sum them
"""
def gen(cfg):
    comp = build_compute(cfg)
    out = [HEADER.rstrip()]; A = out.append
    A("; @launch grid=(256,1,1) block=(512,1,1) lds=163840")
    for l in DOC.strip().split("\n"): A("; " + l)
    A('.amdgcn_target "amdgcn-amd-amdhsa--gfx950"'); A(".text")
    A(f".globl {KNAME}"); A(".p2align 8"); A(f".type {KNAME},@function"); A(f"{KNAME}:")
    gen_entry(A, cfg); gen_loader(A, cfg)
    A(".p2align 6")
    out += comp
    A(".p2align 8"); A(".type L_table,@object"); A("L_table:")
    for j in range(4):
        t = [0] * 128
        for e in make_table(j, cfg): t[e["p"]] = SLOT0 + e["slot"]*SLOTSZ
        for i in range(0, 128, 8): A(".long " + ", ".join(f"{x:#x}" for x in t[i:i+8]))
    A('.section .rodata,"a"'); A(".p2align 6")
    A(f""".amdhsa_kernel {KNAME}
  .amdhsa_next_free_vgpr 256
  .amdhsa_next_free_sgpr 102
  .amdhsa_accum_offset 192
  .amdhsa_group_segment_fixed_size 0
  .amdhsa_kernarg_size 64
  .amdhsa_user_sgpr_count 2
  .amdhsa_user_sgpr_kernarg_segment_ptr 1
  .amdhsa_system_sgpr_workgroup_id_x 1
.end_amdhsa_kernel""")
    return "\n".join(out) + "\n"

if __name__ == "__main__":
    cfg = Cfg()
    for a in sys.argv[2:]:
        k, v = a.split("=")
        setattr(cfg, k, int(v) if v.lstrip("-").isdigit() else (v if "_" in v else float(v)))
    open(sys.argv[1], "w").write(gen(cfg))
```
